```python
import torch

def _softmax(x, axis=-1):
    return torch.softmax(x, dim=axis)
def _gelu(x):
    return torch.nn.functional.gelu(x, approximate="tanh")
def _silu(x):
    return torch.nn.functional.silu(x)
def _sigmoid(x):
    return torch.sigmoid(x)
def _layernorm(x, axis=-1, eps=1e-5):
    m = x.mean(dim=axis, keepdim=True)
    v = x.var(dim=axis, keepdim=True, unbiased=False)
    return (x - m) / torch.sqrt(v + eps)
def _scatter_add(tgt, idx, src, axis=0):
    return tgt.clone().index_add_(axis, idx, src)
def _segment_sum(src, seg, n):
    out = torch.zeros((n,) + src.shape[1:], dtype=src.dtype)
    return out.index_add_(0, seg, src)
def _pad(x, pw):
    flat = tuple(v for pair in reversed(pw) for v in pair)
    return torch.nn.functional.pad(x, flat)

kernel_name = 'standalone__gqa_block_cached__decode'

def setup_inputs():

    _w = (lambda a: (lambda t: t.to(torch.bfloat16) if t.is_floating_point() else t)(torch.as_tensor(a)))
    B, Sq, D = 4, 1, 576
    Hq, Hkv, Sk, Dh = 32, 16, 8192, 128
    assert Hq % Hkv == 0, (Hq, Hkv)
    return {
        "x": _w((lambda *s: torch.randn(*s, dtype=torch.bfloat16) * 0.8)(B, Sq, D)),
        "k_cache": _w((lambda *s: torch.randn(*s, dtype=torch.bfloat16) * 0.8)(B, Hkv, Sk, Dh)),
        "v_cache": _w((lambda *s: torch.randn(*s, dtype=torch.bfloat16) * 0.05)(B, Hkv, Sk, Dh)),
        "wq": _w((lambda *s: torch.randn(*s, dtype=torch.bfloat16) * 0.8)(D, Hq * Dh) * (D ** -0.5)),
        "wo": _w((lambda *s: torch.randn(*s, dtype=torch.bfloat16) * 0.05)(Hq * Dh, D) * ((Hq * Dh) ** -0.5)),
    }

def reference(x, k_cache, v_cache, wq, wo):
    B, Sq, D = x.shape
    Hq, Dh = 32, 128
    Hkv = k_cache.shape[1]
    rep = Hq // Hkv
    q = (lambda x, *d: x.permute(*d))((x @ wq).reshape(B, Sq, Hq, Dh), 0, 2, 1, 3)
    k = (lambda x, n, axis: torch.repeat_interleave(x, n, dim=axis))(k_cache, rep, axis=1)
    v = (lambda x, n, axis: torch.repeat_interleave(x, n, dim=axis))(v_cache, rep, axis=1)
    scores = torch.einsum("bhqd,bhkd->bhqk", q, k) * (Dh ** -0.5)
    p = _softmax(scores, axis=-1)
    o = torch.einsum("bhqk,bhkd->bhqd", p, v)
    return (lambda x, *d: x.permute(*d))(o, 0, 2, 1, 3).reshape(B, Sq, Hq * Dh) @ wo
```

```python
import re

def _regs(tok):
    tok = tok.strip()
    m = re.fullmatch(r'-?\|?([vas])(\d+)\|?', tok)
    if m:
        return {(m.group(1), int(m.group(2)))}
    m = re.fullmatch(r'-?([vas])\[(\d+):(\d+)\]', tok)
    if m:
        return {(m.group(1), i) for i in range(int(m.group(2)), int(m.group(3)) + 1)}
    if tok == 'vcc':
        return {('s', 'vcc')}
    if tok == 'exec':
        return {('s', 'exec')}
    if tok == 'm0':
        return {('s', 'm0')}
    return set()

TRANS = ('v_exp_f32', 'v_log_f32', 'v_rcp_f32', 'v_rsq_f32', 'v_sqrt_f32')

class Ins:
    def __init__(self, text):
        self.text = text
        t = text.split(';')[0].strip()
        parts = t.split(None, 1)
        self.op = parts[0]
        rest = parts[1] if len(parts) > 1 else ''
        ops = [x.strip() for x in re.split(r',\s*(?![^\[]*\])', rest)] if rest else []
        if ops:
            last = ops[-1].split()
            ops[-1] = last[0] if last else ''
            self.mods = ' '.join(last[1:])
        else:
            self.mods = ''
        self.ops = ops
        op = self.op
        self.mfma = op.startswith('v_mfma')
        self.valu = op.startswith('v_') and not self.mfma
        self.salu = op.startswith('s_')
        self.vmem = op.startswith(('buffer_', 'global_'))
        self.ds = op.startswith('ds_')
        self.dpp = op.endswith('_dpp')
        self.perml = op.startswith('v_permlane')
        self.trans = op in TRANS
        self.states = 1
        if op == 's_nop':
            self.states = int(ops[0], 0) + 1
        w, r = set(), set()
        R = [_regs(o) for o in ops]
        if self.mfma:
            w = R[0]; r = R[1] | R[2] | R[3]
            self.A, self.B, self.C = R[1], R[2], R[3]
        elif self.valu:
            w = set(R[0])
            r = set().union(*R[1:]) if len(R) > 1 else set()
            if self.perml:
                w |= R[1]; r |= R[0]
            if op.startswith(('v_fmac', 'v_dot2c')) or self.dpp:
                r |= R[0]
            if op.startswith(('v_add_co', 'v_addc_co', 'v_sub_co')):
                w |= R[1]
            if op.startswith('v_cmpx'):
                w |= {('s', 'exec')}
            self.dppsrc = R[1] if self.dpp else set()
        elif self.vmem:
            lds = ' lds' in (' ' + self.mods)
            if 'load' in op and not lds:
                w = R[0]; r = set().union(*R[1:])
            elif 'atomic' in op and 'sc0' in self.mods and op.startswith('global'):
                w = R[0]; r = set().union(*R[1:])
            else:
                r = set().union(*R)
            if lds:
                r |= {('s', 'm0')}
            self.lds = lds
            self.store_data = set()
            if 'store' in op and ('x3' in op or 'x4' in op):
                self.store_data = R[0] if op.startswith('buffer') else R[1]
        elif self.ds:
            if 'read' in op or 'swizzle' in op or 'permute' in op:
                w = R[0]; r = set().union(*R[1:])
            else:
                r = set().union(*R)
        elif self.salu:
            if op.startswith(('s_cmp', 's_cbranch', 's_branch', 's_waitcnt', 's_barrier', 's_nop', 's_sleep', 's_endpgm', 's_setprio', 's_bitcmp')):
                r = set().union(*R) if R else set()
            else:
                w = set(R[0]) if R else set()
                r = set().union(*R[1:]) if len(R) > 1 else set()
                if 'saveexec' in op:
                    w |= {('s', 'exec')}
        self.w, self.r = w, r

def need(p, c):
    n = 0
    vw = {x for x in p.w if x[0] in 'va'}
    sw = {x for x in p.w if x[0] == 's'}
    if p.mfma:
        if c.mfma:
            if p.w & (c.A | c.B): n = max(n, 8)
            if p.w & c.C and p.w != c.C: n = max(n, 6)
        elif (c.valu or c.vmem or c.ds) and (p.w & (c.r | c.w)):
            n = max(n, 8)
        if c.valu and (p.C & c.w):
            n = max(n, 3)
    if p.valu:
        if c.mfma and (vw & c.r): n = max(n, 2)
        if c.valu and c.dpp and (vw & c.dppsrc): n = max(n, 2)
        if c.perml and (vw & c.r): n = max(n, 2)
        if p.trans and c.valu and not c.trans and (vw & c.r): n = max(n, 1)
        if c.op in ('v_readfirstlane_b32', 'v_readlane_b32') and (vw & c.r): n = max(n, 1)
        if c.vmem and (sw & c.r): n = max(n, 5)
        if c.valu and (sw & c.r): n = max(n, 2)
        if ('s', 'exec') in sw and (c.dpp or c.mfma or c.perml): n = max(n, 5)
    if p.salu and ('s', 'm0') in p.w and c.vmem and getattr(c, 'lds', False): n = max(n, 1)
    if p.vmem and p.store_data and (p.store_data & c.w): n = max(n, 2)
    return n

def check(lines):
    ins, labels = [], {}
    for ln in lines:
        t = ln.split(';')[0].strip()
        if not t or t.startswith('.'):
            continue
        if t.endswith(':'):
            labels[t[:-1]] = len(ins)
            continue
        ins.append(Ins(t))
    errs = []
    def succ(i):
        x = ins[i]
        if x.op == 's_endpgm':
            return []
        if x.op == 's_branch':
            return [labels[x.ops[0]]]
        out = [i + 1] if i + 1 < len(ins) else []
        if x.op.startswith('s_cbranch'):
            out.append(labels[x.ops[0]])
        return out
    for i, p in enumerate(ins):
        if not (p.mfma or p.valu or p.vmem or (p.salu and ('s', 'm0') in p.w)):
            continue
        stack = [(j, 0) for j in succ(i)]
        seen = set()
        while stack:
            j, d = stack.pop()
            if (j, d) in seen or d >= 9:
                continue
            seen.add((j, d))
            c = ins[j]
            n = need(p, c)
            if n > d:
                errs.append(f"need {n} have {d}: [{p.text}] -> [{c.text}]")
            for k in succ(j):
                stack.append((k, d + c.states))
    return errs
```

```python
import sys, struct
from hazard import check

NAME = "standalone__gqa_block_cached__decode_kernel"

HEADER = """; Kernarg layout for this problem (64 bytes, ptrs only, base s[0:1]):
"""

QOFF = 0x1000
ROFF = 0x40000
POFF = 0x80000
WSWIN = 0x100000
STAMP0 = 0x10000000
STAMP1 = 0x10100000

L_WQ = 0x0000
L_WO = 0x5000
L_Q = 0xD000
L_ML = 0xD200
L_O = 0xD400
LDS_BYTES = 0xE400

def f2u(x):
    return struct.unpack('<I', struct.pack('<f', x))[0]

SCALE = f2u(128 ** -0.5 * 1.4426950408889634)
SPIN = 1 << 19


class G:
    def __init__(self, D=5, LV=16, stamps=False, D0=None):
        self.o = []
        self.D = D
        self.D0 = D0 or D
        self.LV = LV
        self.stamps = stamps

    def e(self, s):
        self.o.append(s if s.endswith(':') or s.startswith('.') or s.startswith(';') else '    ' + s)

    def stamp(self, idx, sbase=80):
        if not self.stamps:
            return
        e = self.e
        e('s_memrealtime s[80:81]')
        e(f's_add_u32 s82, s18, {STAMP1 + idx * 8}')
        e('s_addc_u32 s83, s19, 0')
        e('s_lshl_b32 s84, s2, 7')
        e('s_waitcnt lgkmcnt(0)')
        e('v_mov_b32 v250, s84')
        e('v_mov_b32 v252, s80')
        e('v_mov_b32 v253, s81')
        e('s_mov_b64 s[86:87], exec')
        e('s_mov_b64 exec, 1')
        e('global_store_dwordx2 v250, v[252:253], s[82:83]')
        e('s_mov_b64 exec, s[86:87]')

    def keep_time(self, sreg):
        if self.stamps:
            self.e(f's_memrealtime s[{sreg}:{sreg+1}]')

    def flush_time(self, idx, sreg):
        if not self.stamps:
            return
        e = self.e
        e(f's_add_u32 s82, s18, {STAMP1 + idx * 8}')
        e('s_addc_u32 s83, s19, 0')
        e('s_lshl_b32 s84, s2, 7')
        e('s_waitcnt lgkmcnt(0)')
        e('v_mov_b32 v250, s84')
        e(f'v_mov_b32 v252, s{sreg}')
        e(f'v_mov_b32 v253, s{sreg+1}')
        e('s_mov_b64 s[86:87], exec')
        e('s_mov_b64 exec, 1')
        e('global_store_dwordx2 v250, v[252:253], s[82:83]')
        e('s_mov_b64 exec, s[86:87]')

    def srd(self, d, base, size, add=None):
        e = self.e
        if add is None:
            e(f's_mov_b32 s{d}, s{base}')
            e(f's_mov_b32 s{d+1}, s{base+1}')
        else:
            e(f's_add_u32 s{d}, s{base}, {add}')
            e(f's_addc_u32 s{d+1}, s{base+1}, 0')
        e(f's_mov_b32 s{d+2}, {size:#x}')
        e(f's_mov_b32 s{d+3}, 0x20000')

    def stream(self):
        e, D, LV = self.e, self.D, self.LV
        vK, vV = 1, 2
        QB = [4, 8]
        DT = [12, 16]
        T, X = 20, 21
        A = 24
        MK = 28
        OA = 32
        M, L, T2, T3 = 36, 37, 38, 39
        S = 40
        RING = 56
        slot = lambda n: RING + 4 * (n % 32)
        rng = lambda r: f'v[{r}:{r+3}]'

        st = {'issued': -1, 'landed': -1}

        def need_landed(x):
            if x > st['landed']:
                e(f's_waitcnt vmcnt({st["issued"] - x})')
                st['landed'] = x

        def issue(n, gate=True, d=None):
            d = d or D
            if gate:
                e(f's_waitcnt vmcnt({d-1})')
                st['landed'] = max(st['landed'], n - d)
            st['issued'] = n
            srd, vo = ('s[20:23]', vK) if n < 128 else ('s[24:27]', vV)
            e(f'buffer_load_dwordx4 {rng(slot(n))}, v{vo}, {srd}, s28 offen offset:{(n % 4) * 1024} nt')
            if n % 4 == 3:
                e('s_add_u32 s28, s28, 0x4000')

        def kadds(pair, sreg):
            d = DT[pair & 1]
            i = pair & 3
            e(f'v_add_f32_dpp v{T}, v{d + (i+1) % 4}, v{d + i} row_ror:12 row_mask:0xf bank_mask:0xf')
            e(f'v_add_f32_dpp v{T}, v{d + (i+2) % 4}, v{T} row_ror:8 row_mask:0xf bank_mask:0xf')
            e(f'v_add_f32_dpp v{sreg}, v{d + (i+3) % 4}, v{T} row_ror:4 row_mask:0xf bank_mask:{1 << i:#x}')

        def kmfma(n):
            d = DT[(n >> 1) & 1]
            c = '0' if n % 2 == 0 else rng(d)
            e(f'v_mfma_f32_16x16x32_bf16 {rng(d)}, {rng(slot(n))}, {rng(QB[n & 1])}, {c}')

        def shift4():
            for i in range(12):
                e(f'v_mov_b32 v{S+i}, v{S+i+4}')

        def vprep(pn, yreg):
            i = pn & 7
            e(f'v_mov_b32_dpp v{X}, v{yreg} row_newbcast:{2*i} row_mask:0xf bank_mask:0x3')
            e(f'v_mov_b32_dpp v{X}, v{yreg} row_newbcast:{2*i+1} row_mask:0xf bank_mask:0xc')
            for r in range(4):
                e(f'v_and_b32 v{A+r}, v{X}, v{MK+r}')

        def vmfma(pn, first=False):
            c = '0' if first else rng(OA)
            e(f'v_mfma_f32_16x16x32_bf16 {rng(OA)}, {rng(A)}, {rng(slot(pn))}, {c}')

        e('v_lshrrev_b32 v3, 4, v0')
        e('v_bfe_u32 v4, v0, 2, 2')
        e('v_and_b32 v5, 3, v0')
        e('v_lshlrev_b32 v3, 6, v3')
        e('v_lshlrev_b32 v4, 8, v4')
        e('v_lshlrev_b32 v5, 4, v5')
        e(f'v_add3_u32 v{vK}, v3, v4, v5')
        e(f'v_lshlrev_b32 v{vV}, 4, v0')
        e('s_lshl_b32 s31, s2, 19')
        e('s_lshl_b32 s28, s3, 12')
        e('s_waitcnt lgkmcnt(0)')
        self.srd(20, 6, 0x80000, add='s31')
        for n in range(self.D0):
            issue(n, gate=False)
        self.srd(24, 8, 0x80000, add='s31')
        e(f's_mov_b32 s30, {SCALE:#x}')
        e('v_lshrrev_b32 v3, 3, v0')
        e('v_xor_b32 v3, v3, v0')
        e('v_and_b32 v3, 1, v3')
        e('v_lshlrev_b32 v3, 4, v3')
        e('v_mov_b32 v4, 0xffff')
        e('v_lshlrev_b32 v3, v3, v4')
        e('v_bfe_u32 v4, v0, 1, 2')
        for r in range(4):
            e(f'v_cmp_eq_u32 vcc, {r}, v4')
            e('s_nop 1')
            e(f'v_cndmask_b32 v{MK+r}, 0, v3, vcc')
        e('v_and_b32 v3, 1, v0')
        e('v_lshlrev_b32 v3, 8, v3')
        e('v_lshrrev_b32 v4, 2, v0')
        e(f'v_lshl_add_u32 v{T2}, v4, 4, v3')
        e('v_and_b32 v3, 2, v0')
        e('v_cmp_ne_u32 vcc, 0, v3')
        for n in range(self.D0, 32):
            issue(n, d=self.D0)
        self.keep_time(60)
        e('s_barrier')
        e(f'ds_read_b128 {rng(DT[0])}, v{T2} offset:{L_Q}')
        e('s_mov_b32 s29, 0')
        e('s_waitcnt lgkmcnt(0)')
        self.keep_time(62)
        for r in range(4):
            e(f'v_cndmask_b32 v{QB[1]+r}, 0, v{DT[0]+r}, vcc')
            e(f'v_cndmask_b32 v{QB[0]+r}, v{DT[0]+r}, 0, vcc')
        e('s_nop 1')
        e('L_kloop:')
        for p in range(16):
            n = 2 * p
            kmfma(n)
            issue(n + 32)
            kmfma(n + 1)
            kadds((p - 1) % 16, S + 12 + (((p - 1) % 16) >> 2))
            if p == 0:
                shift4()
            issue(n + 33)
        e('s_add_u32 s29, s29, 1')
        e('s_cmp_lt_u32 s29, 3')
        e('s_cbranch_scc1 L_kloop')
        e('s_lshl_b32 s28, s3, 12')
        nv = 128
        st['issued'], st['landed'] = 127, 127 - D
        for p in range(16):
            n = 2 * p
            need_landed(96 + n + 1)
            kmfma(n)
            kmfma(n + 1)
            if p % 2 == 1:
                e('s_nop 2')
            kadds((p - 1) % 16, S + 12 + (((p - 1) % 16) >> 2))
            if p == 0:
                shift4()
            if p % 2 == 1:
                issue(nv); nv += 1
            else:
                e('s_nop 1')
        e('s_nop 3')
        kadds(15, S + 15)
        issue(nv); nv += 1
        e(f'v_max3_f32 v{M}, v{S}, v{S+1}, v{S+2}')
        e(f'v_max3_f32 v{T}, v{S+3}, v{S+4}, v{S+5}')
        for i in range(6, 14, 4):
            e(f'v_max3_f32 v{M}, v{M}, v{S+i}, v{S+i+1}')
            e(f'v_max3_f32 v{T}, v{T}, v{S+i+2}, v{S+i+3}')
        e(f'v_max3_f32 v{M}, v{M}, v{S+14}, v{S+15}')
        e(f'v_max_f32 v{M}, v{M}, v{T}')

        def allreduce(reg, op):
            for k in (2, 4, 8):
                e('s_nop 1')
                e(f'{op}_dpp v{reg}, v{reg}, v{reg} row_ror:{k} row_mask:0xf bank_mask:0xf')
            for sw in ('v_permlane16_swap_b32', 'v_permlane32_swap_b32'):
                e(f'v_mov_b32 v{T}, v{reg}')
                e('s_nop 1')
                e(f'{sw} v{reg}, v{T}')
                e(f'{op} v{reg}, v{reg}, v{T}')
        allreduce(M, 'v_max_f32')
        e(f'v_mul_f32 v{M}, s30, v{M}')
        issue(nv); nv += 1
        for i in range(16):
            e(f'v_fma_f32 v{S+i}, v{S+i}, s30, -v{M}')
            e(f'v_exp_f32 v{S+i}, v{S+i}')
            if i % 8 == 7:
                issue(nv); nv += 1
        e(f'v_add_f32 v{L}, v{S}, v{S+1}')
        for i in range(2, 16):
            e(f'v_add_f32 v{L}, v{L}, v{S+i}')
        issue(nv); nv += 1
        for i in range(16):
            t = T2 if i & 1 else T3
            e(f'v_mov_b32_dpp v{t}, v{S+i} quad_perm:[1,0,3,2] row_mask:0xf bank_mask:0xf')
            e(f'v_cvt_pk_bf16_f32 v{S+i}, v{S+i}, v{t}')
            if i % 8 == 7:
                issue(nv); nv += 1
        allreduce(L, 'v_add_f32')
        e(f'v_lshlrev_b32 v{T2}, 3, v0')
        e('s_lshl_b32 s31, s3, 4')
        e(f'v_add_u32 v{T2}, s31, v{T2}')
        e('s_mov_b64 exec, 3')
        e(f'ds_write_b64 v{T2}, v[{M}:{L}] offset:{L_ML}')
        e('s_mov_b64 exec, -1')
        self.keep_time(64)
        pn = 0
        target = 32 - LV
        while nv < 160:
            k = 0
            while pn < target and pn + 128 <= st['landed'] and k < 2:
                vprep(pn, S + (pn >> 3))
                e('s_nop 1')
                vmfma(pn + 128, first=(pn == 0))
                pn += 1; k += 1
            issue(nv); nv += 1
        assert pn == target, (pn, target)
        e('s_mov_b32 s29, 0')
        e('L_vloop:')
        for i in range(32):
            p2 = target + i
            vprep(p2, S + (p2 >> 3))
            issue(160 + i)
            vmfma(p2 + 128)
        shift4()
        e('s_add_u32 s29, s29, 1')
        e('s_cmp_lt_u32 s29, 3')
        e('s_cbranch_scc1 L_vloop')
        self.keep_time(66)
        e(f'v_lshlrev_b32 v{T2}, 4, v0')
        e('s_lshl_b32 s31, s3, 10')
        e(f'v_add_u32 v{T2}, s31, v{T2}')
        for i in range(LV):
            p2 = target + i
            vprep(p2, S + (p2 >> 3))
            if LV - 1 - i < D:
                e(f's_waitcnt vmcnt({LV - 1 - i})')
                e('s_nop 0')
            else:
                e('s_nop 1')
            vmfma(p2 + 128)
        e('s_nop 7')
        e(f'ds_write_b128 v{T2}, {rng(OA)} offset:{L_O}')
        e('s_waitcnt lgkmcnt(0)')
        self.keep_time(68)
        e('s_barrier')
        if self.stamps:
            e('s_cmp_lg_u32 s3, 0')
            e('s_cbranch_scc1 L_end')
            for k, sr in enumerate((58, 60, 62, 64, 66, 68)):
                self.flush_time(k, sr)
        e('s_endpgm')

    def ready_check(self, lab, srd, vaddr, vtmp, scnt):
        e = self.e
        e(f'v_lshlrev_b32 v{vaddr}, 2, v0')
        e(f's_mov_b32 s{scnt}, 0')
        e(f'{lab}:')
        e(f'buffer_load_dword v{vtmp}, v{vaddr}, s[{srd}:{srd+3}], 0 offen sc1')
        e('s_waitcnt vmcnt(0)')
        e(f'v_cmp_ne_u32 vcc, 0x01010101, v{vtmp}')
        e(f's_add_u32 s{scnt}, s{scnt}, 1')
        e(f's_cbranch_vccz {lab}_ok')
        e('s_sleep 32')
        e(f's_cmp_lt_u32 s{scnt}, {SPIN}')
        e(f's_cbranch_scc1 {lab}')
        e(f'{lab}_ok:')

    def maxu(self, dst, regs):
        e = self.e
        regs = list(regs)
        e(f'v_max3_u32 v{dst}, v{regs[0]}, v{regs[1]}, v{regs[2]}')
        regs = regs[3:]
        while len(regs) >= 2:
            e(f'v_max3_u32 v{dst}, v{dst}, v{regs[0]}, v{regs[1]}')
            regs = regs[2:]
        if regs:
            e(f'v_max_u32 v{dst}, v{dst}, v{regs[0]}')

    def helper(self):
        e = self.e
        rng = lambda r: f'v[{r}:{r+3}]'
        XA = 16
        WB = 96
        e('s_and_b32 s40, s2, 7')
        e('s_lshl_b32 s40, s40, 5')
        e('s_lshr_b32 s41, s2, 3')
        e('s_add_u32 s40, s40, s41')
        e('v_lshrrev_b32 v1, 1, v0')
        e('v_lshlrev_b32 v1, 13, v1')
        e('v_and_b32 v2, 1, v0')
        e('v_lshl_add_u32 v1, v2, 4, v1')
        e('s_lshl_b32 s41, s40, 5')
        e('v_add_u32 v1, s41, v1')
        e('v_and_b32 v2, 3, v0')
        e('v_mul_u32_u24 v2, 1152, v2')
        e('v_lshrrev_b32 v3, 4, v0')
        e('v_lshl_add_u32 v2, v3, 4, v2')
        e('s_waitcnt lgkmcnt(0)')
        e('s_load_dwordx2 s[32:33], s[18:19], 0')
        self.srd(20, 10, 576 * 4096 * 2)
        e('s_mov_b32 s42, 0')
        e(f's_mov_b32 m0, {L_WQ}')
        for i in range(18):
            if i:
                e(f's_mov_b32 m0, {L_WQ + 1024 * i}')
                e('s_add_u32 s42, s42, 0x40000')
            else:
                e('s_nop 0')
            e('buffer_load_dwordx4 v1, s[20:23], s42 offen nt lds')
        self.srd(24, 4, 4 * 576 * 2)
        for kk in range(18):
            e(f'buffer_load_dwordx4 {rng(XA + 4*kk)}, v2, s[24:27], 0 offen offset:{kk*64}')
        self.srd(28, 18, WSWIN)
        self.srd(36, 16, 256)
        for r in range(4):
            e(f'v_mov_b32 v{8+r}, -1')
        e('v_lshlrev_b32 v4, 4, v0')
        e('s_lshl_b32 s43, s2, 10')
        e(f's_add_u32 s44, s43, {ROFF}')
        e(f's_add_u32 s45, s43, {POFF}')
        e('buffer_store_dwordx4 v[8:11], v4, s[28:31], s45 offen sc1')
        e('s_mov_b32 exec_hi, 1')
        e('buffer_store_dwordx4 v[8:11], v4, s[28:31], s44 offen sc1')
        e('s_mov_b64 exec, 15')
        e(f'ds_write_b128 v4, v[8:11] offset:{L_ML}')
        e('s_mov_b64 exec, -1')
        e('v_lshrrev_b32 v3, 4, v0')
        e('v_lshlrev_b32 v3, 8, v3')
        e('v_and_b32 v5, 15, v0')
        e('v_lshl_add_u32 v3, v5, 3, v3')
        e('v_lshrrev_b32 v6, 4, v0')
        e('v_lshlrev_b32 v6, 15, v6')
        e('v_lshl_add_u32 v6, v5, 3, v6')
        e('s_lshl_b32 s41, s40, 7')
        e(f's_add_u32 s46, s41, {QOFF}')
        e('v_lshlrev_b32 v7, 5, v0')
        e('s_lshr_b32 s41, s2, 2')
        e('s_lshl_b32 s41, s41, 11')
        e(f's_add_u32 s47, s41, {QOFF}')
        e('s_waitcnt lgkmcnt(0)')
        e('s_add_u32 s32, s32, 0x7f4a7c15')
        e('s_addc_u32 s33, s33, 0x9e3779b9')
        e('s_lshl_b32 s34, s32, 16')
        e('s_mov_b32 s35, s33')
        e('s_waitcnt vmcnt(20)')
        self.keep_time(60)
        for kk in range(18):
            e(f'ds_read_b64_tr_b16 v[{WB+4*kk}:{WB+4*kk+1}], v3 offset:{L_WQ + kk*1024}')
            e(f'ds_read_b64_tr_b16 v[{WB+4*kk+2}:{WB+4*kk+3}], v3 offset:{L_WQ + kk*1024 + 128}')
        e('s_waitcnt vmcnt(2)')
        for kk in range(18):
            left = 2 * (17 - kk)
            if left <= 15 or kk == 0:
                e(f's_waitcnt lgkmcnt({min(left, 15)})')
            c = '0' if kk == 0 else 'v[12:15]'
            e(f'v_mfma_f32_16x16x32_bf16 v[12:15], {rng(XA + 4*kk)}, {rng(WB + 4*kk)}, {c}')
        e('v_mov_b32 v9, s35')
        e('s_nop 6')
        for b in range(1, 4):
            e(f'v_mov_b32_dpp v12, v{12+b} quad_perm:[0,1,2,3] row_mask:{1 << b:#x} bank_mask:0xf')
        e('v_cvt_pk_bf16_f32 v8, v12, v12')
        e('v_and_b32 v8, 0xffff, v8')
        e('v_or_b32 v8, s34, v8')
        e('buffer_store_dwordx2 v[8:9], v6, s[28:31], s46 offen sc1')
        self.keep_time(62)
        e('s_mov_b32 s48, 0')
        e('s_mov_b32 s49, 0x05040100')
        e('L_qpoll:')
        e('buffer_load_dwordx4 v[16:19], v7, s[28:31], s47 offen sc1')
        e('buffer_load_dwordx4 v[20:23], v7, s[28:31], s47 offen offset:16 sc1')
        e('s_add_u32 s48, s48, 1')
        e('s_waitcnt vmcnt(0)')
        e('v_xor_b32 v24, s34, v16')
        e('v_xor_b32 v25, s34, v18')
        e('v_xor_b32 v26, s34, v20')
        e('v_xor_b32 v27, s34, v22')
        e('v_or3_b32 v24, v24, v25, v26')
        e('v_or_b32 v24, v24, v27')
        e('v_lshrrev_b32 v24, 16, v24')
        e('v_xor_b32 v25, s35, v17')
        e('v_xor_b32 v26, s35, v19')
        e('v_or3_b32 v24, v24, v25, v26')
        e('v_xor_b32 v25, s35, v21')
        e('v_xor_b32 v26, s35, v23')
        e('v_or3_b32 v24, v24, v25, v26')
        e('v_cmp_ne_u32 vcc, 0, v24')
        e('s_nop 0')
        e('s_cbranch_vccz L_qok')
        e(f's_cmp_lt_u32 s48, {SPIN}')
        e('s_cbranch_scc1 L_qpoll')
        e('L_qok:')
        e('v_perm_b32 v24, v18, v16, s49')
        e('v_perm_b32 v25, v22, v20, s49')
        e('v_lshlrev_b32 v5, 3, v0')
        e(f'ds_write_b64 v5, v[24:25] offset:{L_Q}')
        e('s_waitcnt lgkmcnt(0)')
        self.keep_time(64)
        e('s_barrier')
        e('v_mov_b32 v8, 1')
        e('v_mov_b32 v9, s2')
        e('s_mov_b64 exec, 1')
        e('buffer_store_byte v8, v9, s[36:39], 0 offen sc1')
        e('s_mov_b64 exec, -1')
        e('v_mov_b32 v5, 0')
        e('s_mov_b32 s48, 0')
        e('L_mlwait:')
        e('s_sleep 16')
        for w in range(4):
            e(f'ds_read_b128 {rng(16 + 4*w)}, v5 offset:{L_ML + 16*w}')
        e('s_add_u32 s48, s48, 1')
        e('s_waitcnt lgkmcnt(0)')
        self.maxu(32, range(16, 32))
        e('v_cmp_eq_u32 vcc, -1, v32')
        e('s_nop 0')
        e('s_cbranch_vccz L_mlok')
        e(f's_cmp_lt_u32 s48, {SPIN}')
        e('s_cbranch_scc1 L_mlwait')
        e('L_mlok:')
        for h in range(2):
            m = [16 + 4*w + 2*h for w in range(4)]
            e(f'v_max3_f32 v{36+2*h}, v{m[0]}, v{m[1]}, v{m[2]}')
            e(f'v_max_f32 v{36+2*h}, v{36+2*h}, v{m[3]}')
            for w in range(4):
                e(f'v_sub_f32 v{40+w}, v{m[w]}, v{36+2*h}')
                e(f'v_exp_f32 v{40+w}, v{40+w}')
            e('s_nop 0')
            e(f'v_mul_f32 v{37+2*h}, v40, v{m[0]+1}')
            for w in range(1, 4):
                e(f'v_fmac_f32 v{37+2*h}, v{40+w}, v{m[w]+1}')
        for r in range(4):
            e(f'v_min_u32 v{36+r}, 0xfffffffe, v{36+r}')
        e('s_mov_b64 exec, 1')
        e('buffer_store_dwordx4 v[36:39], v5, s[28:31], s44 offen offset:512 sc1')
        e('s_mov_b64 exec, -1')
        self.ready_check('L_hrdy', 36, 8, 9, 48)
        e('s_and_b32 s41, s2, 0xfc')
        e('s_lshl_b32 s41, s41, 10')
        e(f's_add_u32 s41, s41, {ROFF + 512}')
        e('s_mov_b32 s48, 0')
        e('s_mov_b64 exec, 1')
        e('L_gml:')
        for s in range(4):
            e(f'buffer_load_dwordx4 {rng(48 + 4*s)}, v5, s[28:31], s41 offen offset:{1024*s} sc1')
        e('s_add_u32 s48, s48, 1')
        e('s_waitcnt vmcnt(0)')
        self.maxu(32, range(48, 64))
        e('v_cmp_eq_u32 vcc, -1, v32')
        e('s_nop 0')
        e('s_cbranch_vccz L_gmlok')
        e('s_sleep 16')
        e(f's_cmp_lt_u32 s48, {SPIN}')
        e('s_cbranch_scc1 L_gml')
        e('L_gmlok:')
        for h in range(2):
            m = [48 + 4*s + 2*h for s in range(4)]
            e(f'v_max3_f32 v36, v{m[0]}, v{m[1]}, v{m[2]}')
            e(f'v_max_f32 v36, v36, v{m[3]}')
            for s in range(4):
                e(f'v_sub_f32 v{40+s}, v{m[s]}, v36')
                e(f'v_exp_f32 v{40+s}, v{40+s}')
            e('s_nop 0')
            e(f'v_mul_f32 v37, v40, v{m[0]+1}')
            for s in range(1, 4):
                e(f'v_fmac_f32 v37, v{40+s}, v{m[s]+1}')
            e('v_rcp_f32 v37, v37')
            for w in range(4):
                e(f'v_sub_f32 v{40+w}, v{16 + 4*w + 2*h}, v36')
                e(f'v_exp_f32 v{40+w}, v{40+w}')
            e('s_nop 0')
            for w in range(4):
                e(f'v_mul_f32 v{40+w}, v{40+w}, v37')
            e('s_nop 0')
            for w in range(4):
                e(f'v_readfirstlane_b32 s{50 + 2*w + h}, v{40+w}')
        e('s_mov_b64 exec, -1')
        e('v_lshlrev_b32 v5, 3, v0')
        self.keep_time(66)
        e('s_barrier')
        self.keep_time(68)
        for w in range(4):
            e(f'ds_read_b128 {rng(16 + 4*w)}, v4 offset:{L_O + 1024*w}')
        for w in range(4):
            e(f's_waitcnt lgkmcnt({3-w})')
            for r in range(4):
                if w == 0:
                    e(f'v_mul_f32 v{32+r}, s{50 + (r & 1)}, v{16+r}')
                else:
                    e(f'v_fmac_f32 v{32+r}, s{50 + 2*w + (r & 1)}, v{16 + 4*w + r}')
        e('v_cvt_pk_bf16_f32 v36, v32, v34')
        e('v_cvt_pk_bf16_f32 v37, v33, v35')
        e('v_min_u32 v36, 0xfffffffe, v36')
        e('v_min_u32 v37, 0xfffffffe, v37')
        e('s_mov_b32 s48, 0x55555555')
        e('v_mov_b32_dpp v38, v36 quad_perm:[1,1,3,3] row_mask:0xf bank_mask:0xf')
        e('v_mov_b32_dpp v39, v37 quad_perm:[1,1,3,3] row_mask:0xf bank_mask:0xf')
        e('s_mov_b32 exec_lo, s48')
        e('s_mov_b32 exec_hi, s48')
        e('buffer_store_dwordx4 v[36:39], v5, s[28:31], s44 offen sc1')
        if self.stamps:
            self.keep_time(70)
            e('s_mov_b64 exec, -1')
            for k, sr in enumerate((60, 62, 64, 66, 68, 70)):
                self.flush_time(6 + k, sr)
        e('s_endpgm')

    def wave5(self):
        e = self.e
        rng = lambda r: f'v[{r}:{r+3}]'
        e('s_cmp_ge_u32 s2, 180')
        e('s_cbranch_scc1 L_end')
        e('s_waitcnt lgkmcnt(0)')
        self.srd(28, 18, WSWIN)
        self.srd(36, 16, 256)
        e('s_cmp_ge_u32 s2, 144')
        e('s_cbranch_scc1 L_reduce')
        BW = 64
        AO = 32
        e('s_mul_i32 s40, s2, 57')
        e('s_lshr_b32 s40, s40, 9')
        e('s_mul_i32 s41, s40, 9')
        e('s_sub_u32 s41, s2, s41')
        self.srd(20, 12, 4096 * 576 * 2)
        e('v_lshrrev_b32 v1, 3, v0')
        e('v_mul_u32_u24 v1, 1152, v1')
        e('v_and_b32 v2, 7, v0')
        e('v_lshl_add_u32 v1, v2, 4, v1')
        e(f's_mul_i32 s42, s40, {256 * 1152}')
        e('s_lshl_b32 s43, s41, 7')
        e('s_add_u32 s42, s42, s43')
        e('v_bfe_u32 v4, v0, 3, 1')
        e('v_bfe_u32 v5, v0, 2, 1')
        e('v_lshl_add_u32 v6, v5, 1, v4')
        e('v_lshrrev_b32 v7, 4, v0')
        e('v_lshlrev_b32 v7, 4, v7')
        e('v_lshl_add_u32 v7, v4, 7, v7')
        e('v_add_u32 v2, v7, v6')
        e('v_xor_b32 v3, 1, v2')
        e('v_and_b32 v4, 3, v0')
        e('v_lshlrev_b32 v4, 3, v4')
        e('v_lshl_add_u32 v2, v2, 7, v4')
        e('v_lshl_add_u32 v3, v3, 7, v4')
        e('v_bfe_u32 v4, v0, 2, 2')
        e('v_lshlrev_b32 v4, 6, v4')
        e('v_and_b32 v5, 3, v0')
        e('v_add_u32 v4, v4, v5')
        e('v_lshlrev_b32 v4, 10, v4')
        e('v_lshrrev_b32 v5, 4, v0')
        e('v_lshl_add_u32 v4, v5, 4, v4')
        e('s_lshl_b32 s44, s40, 12')
        e(f's_add_u32 s44, s44, {ROFF}')
        e('s_lshl_b32 s45, s2, 10')
        e(f's_add_u32 s45, s45, {POFF}')
        e('v_lshlrev_b32 v5, 4, v0')
        e('s_barrier')
        e(f's_mov_b32 s46, {L_WO}')
        e('L_wo:')
        e('s_mov_b32 m0, s46')
        e('s_add_u32 s46, s46, 1024')
        e('buffer_load_dwordx4 v1, s[20:23], s42 offen nt lds')
        e('s_add_u32 s42, s42, 9216')
        e('s_waitcnt vmcnt(1)')
        e(f's_cmp_lt_u32 s46, {L_WO + 32768}')
        e('s_cbranch_scc1 L_wo')
        e('s_waitcnt vmcnt(0)')
        for t in range(4):
            for kk in range(8):
                gp = kk >> 1
                for hf in range(2):
                    row = 64 * (kk & 1) + 8 * hf + 4 * (gp & 1)
                    r = BW + (t * 8 + kk) * 4 + 2 * hf
                    e(f'ds_read_b64_tr_b16 v[{r}:{r+1}], v{2 + (gp >> 1)} offset:{L_WO + row * 128 + t * 32}')
            e('s_waitcnt lgkmcnt(0)')
        self.ready_check('L_wrdy', 36, 8, 9, 48)
        e('s_mov_b32 s48, 0')
        e('s_barrier')
        self.keep_time(60)
        e('L_opoll:')
        for kk in range(8):
            e(f'buffer_load_dwordx4 {rng(AO + 4*kk)}, v4, s[28:31], s44 offen offset:{64*kk} sc1')
        e('s_add_u32 s48, s48, 1')
        e('s_waitcnt vmcnt(0)')
        self.maxu(8, range(AO, AO + 32))
        e('v_cmp_eq_u32 vcc, -1, v8')
        e('s_nop 0')
        e('s_cbranch_vccz L_ook')
        e(f's_cmp_lt_u32 s48, {SPIN}')
        e('s_cbranch_scc1 L_opoll')
        e('L_ook:')
        self.keep_time(62)
        for t in range(4):
            for kk in range(8):
                c = '0' if kk == 0 else rng(16 + 4*t)
                e(f'v_mfma_f32_16x16x32_bf16 {rng(16 + 4*t)}, {rng(AO + 4*kk)}, {rng(BW + (t*8 + kk)*4)}, {c}')
        for t in range(4):
            d = 16 + 4 * t
            if t == 3:
                e('s_nop 0')
            e(f'v_add_f32 v{d}, v{d}, v{d+1}')
            e(f'v_add_f32 v{d+2}, v{d+2}, v{d+3}')
            e(f'v_add_f32 v{12+t}, v{d}, v{d+2}')
        for t in range(4):
            e(f'v_min_u32 v{12+t}, 0xfffffffe, v{12+t}')
        e('buffer_store_dwordx4 v[12:15], v5, s[28:31], s45 offen sc1')
        if self.stamps:
            self.keep_time(64)
            for k, sr in enumerate((60, 62, 64)):
                self.flush_time(12 + k, sr)
        e('s_endpgm')

        e('L_reduce:')
        e('s_load_dwordx2 s[32:33], s[18:19], 0')
        e('s_sub_u32 s40, s2, 144')
        e('s_lshr_b32 s41, s40, 2')
        e('s_and_b32 s40, s40, 3')
        self.srd(20, 14, 4 * 576 * 2)
        e('v_lshrrev_b32 v1, 4, v0')
        e('v_mul_u32_u24 v1, 9216, v1')
        e('v_and_b32 v2, 15, v0')
        e('v_lshl_add_u32 v1, v2, 4, v1')
        e('s_lshl_b32 s42, s41, 10')
        e('s_lshl_b32 s43, s40, 8')
        e('s_add_u32 s42, s42, s43')
        e(f's_add_u32 s42, s42, {POFF}')
        for i in range(1, 4):
            e(f's_add_u32 s{42+i}, s42, {36864*i}')
        e('s_mul_i32 s46, s40, 1152')
        e('s_lshl_b32 s47, s41, 7')
        e('s_add_u32 s46, s46, s47')
        e('v_lshlrev_b32 v2, 1, v0')
        e('s_waitcnt lgkmcnt(0)')
        e('s_add_u32 s32, s32, 0x7f4a7c15')
        e('s_addc_u32 s33, s33, 0x9e3779b9')
        e('s_barrier')
        e('s_sleep 127')
        self.ready_check('L_rrdy', 36, 8, 9, 48)
        e('s_mov_b32 s48, 0')
        e('s_barrier')
        self.keep_time(60)
        e('L_ppoll:')
        for i in range(4):
            e(f'buffer_load_dwordx4 {rng(16 + 4*i)}, v1, s[28:31], s{42+i} offen sc1')
        e('s_add_u32 s48, s48, 1')
        e('s_waitcnt vmcnt(0)')
        self.maxu(8, range(16, 32))
        e('v_cmp_eq_u32 vcc, -1, v8')
        e('s_nop 0')
        e('s_cbranch_vccz L_pok')
        e(f's_cmp_lt_u32 s48, {SPIN}')
        e('s_cbranch_scc1 L_ppoll')
        e('L_pok:')
        self.keep_time(62)
        for t in range(4):
            e(f'v_add_f32 v{16+t}, v{16+t}, v{20+t}')
            e(f'v_add_f32 v{24+t}, v{24+t}, v{28+t}')
        for t in range(4):
            e(f'v_add_f32 v{16+t}, v{16+t}, v{24+t}')
        e('s_nop 0')
        e('v_permlane32_swap_b32 v16, v18')
        e('v_permlane32_swap_b32 v17, v19')
        e('v_add_f32 v16, v16, v18')
        e('v_add_f32 v17, v17, v19')
        e('s_nop 1')
        e('v_permlane16_swap_b32 v16, v17')
        e('v_add_f32 v16, v16, v17')
        e('v_cvt_pk_bf16_f32 v16, v16, v16')
        e('buffer_store_short v16, v2, s[20:23], s46 offen')
        e('s_cmp_lg_u32 s2, 144')
        e('s_cbranch_scc1 L_rdone')
        e('v_mov_b32 v4, s32')
        e('v_mov_b32 v5, s33')
        e('v_mov_b32 v6, 0')
        e('s_mov_b64 exec, 1')
        e('buffer_store_dwordx2 v[4:5], v6, s[28:31], 0 offen sc1')
        e('s_mov_b64 exec, -1')
        e('L_rdone:')
        if self.stamps:
            self.keep_time(64)
            for k, sr in enumerate((60, 62, 64)):
                self.flush_time(12 + k, sr)
        e('s_endpgm')

    def build(self):
        e = self.e
        e('.amdgcn_target "amdgcn-amd-amdhsa--gfx950"')
        e('.text')
        e(f'.globl {NAME}')
        e('.p2align 8')
        e(f'.type {NAME},@function')
        e(f'{NAME}:')
        e('s_cmp_ge_u32 s2, 256')
        e('s_cbranch_scc1 L_end')
        self.keep_time(58)
        e('s_load_dwordx16 s[4:19], s[0:1], 0')
        e('v_lshrrev_b32 v1, 6, v0')
        e('v_and_b32 v0, 63, v0')
        e('v_readfirstlane_b32 s3, v1')
        e('s_cmp_eq_u32 s3, 4')
        e('s_cbranch_scc1 L_helper')
        e('s_cmp_eq_u32 s3, 5')
        e('s_cbranch_scc1 L_wave5')
        self.stream()
        e('L_helper:')
        self.helper()
        e('L_wave5:')
        self.wave5()
        e('L_end:')
        e('s_endpgm')
        nv = 256 if self.stamps else 192
        e('.section .rodata,"a"')
        e('.p2align 6')
        e(f'.amdhsa_kernel {NAME}')
        e(f'  .amdhsa_next_free_vgpr {nv}')
        e('  .amdhsa_next_free_sgpr 96')
        e(f'  .amdhsa_accum_offset {nv}')
        e('  .amdhsa_group_segment_fixed_size 0')
        e('  .amdhsa_kernarg_size 64')
        e('  .amdhsa_user_sgpr_count 2')
        e('  .amdhsa_user_sgpr_kernarg_segment_ptr 1')
        e('  .amdhsa_system_sgpr_workgroup_id_x 1')
        e('.end_amdhsa_kernel')
        errs = check([l.lstrip() if l.lstrip().startswith('.') else l for l in self.o])
        for x in errs:
            print('HAZARD', x, file=sys.stderr)
        txt = HEADER + f'; @launch grid=(256,1,1) block=(384,1,1) lds={LDS_BYTES}\n' + '\n'.join(self.o) + '\n'
        return txt, errs


if __name__ == '__main__':
    kw = {}
    out = sys.argv[1]
    for a in sys.argv[2:]:
        k, v = a.split('=')
        kw[k] = int(v)
    txt, errs = G(**kw).build()
    open(out, 'w').write(txt)
    sys.exit(1 if errs else 0)
```

```python
import sys, struct
from hazard import check

NAME = "standalone__gqa_block_cached__decode_kernel"

HEADER = """; Kernarg layout for this problem (64 bytes, ptrs only, base s[0:1]):
"""

QOFF = 0x1000
ROFF = 0x40000
POFF = 0x80000
WSWIN = 0x100000
STAMP0 = 0x10000000
STAMP1 = 0x10100000

L_WQ = 0x0000
L_WO = 0x5000
L_Q = 0xD000
L_ML = 0xD200
L_O = 0xD400
LDS_BYTES = 0xE400

def f2u(x):
    return struct.unpack('<I', struct.pack('<f', x))[0]

SCALE = f2u(128 ** -0.5 * 1.4426950408889634)
SPIN = 1 << 19


class G:
    def __init__(self, D=5, LV=16, stamps=False, D0=None):
        self.o = []
        self.D = D
        self.D0 = D0 or D
        self.LV = LV
        self.stamps = stamps

    def e(self, s):
        self.o.append(s if s.endswith(':') or s.startswith('.') or s.startswith(';') else '    ' + s)

    def stamp(self, idx, sbase=80):
        if not self.stamps:
            return
        e = self.e
        e('s_memrealtime s[80:81]')
        e(f's_add_u32 s82, s18, {STAMP1 + idx * 8}')
        e('s_addc_u32 s83, s19, 0')
        e('s_lshl_b32 s84, s2, 8')
        e('s_waitcnt lgkmcnt(0)')
        e('v_mov_b32 v250, s84')
        e('v_mov_b32 v252, s80')
        e('v_mov_b32 v253, s81')
        e('s_mov_b64 s[86:87], exec')
        e('s_mov_b64 exec, 1')
        e('global_store_dwordx2 v250, v[252:253], s[82:83]')
        e('s_mov_b64 exec, s[86:87]')

    def keep_time(self, sreg):
        if self.stamps:
            self.e(f's_memrealtime s[{sreg}:{sreg+1}]')

    def flush_time(self, idx, sreg):
        if not self.stamps:
            return
        e = self.e
        e(f's_add_u32 s82, s18, {STAMP1 + idx * 8}')
        e('s_addc_u32 s83, s19, 0')
        e('s_lshl_b32 s84, s2, 8')
        e('s_waitcnt lgkmcnt(0)')
        e('v_mov_b32 v250, s84')
        e(f'v_mov_b32 v252, s{sreg}')
        e(f'v_mov_b32 v253, s{sreg+1}')
        e('s_mov_b64 s[86:87], exec')
        e('s_mov_b64 exec, 1')
        e('global_store_dwordx2 v250, v[252:253], s[82:83]')
        e('s_mov_b64 exec, s[86:87]')

    def srd(self, d, base, size, add=None):
        e = self.e
        if add is None:
            e(f's_mov_b32 s{d}, s{base}')
            e(f's_mov_b32 s{d+1}, s{base+1}')
        else:
            e(f's_add_u32 s{d}, s{base}, {add}')
            e(f's_addc_u32 s{d+1}, s{base+1}, 0')
        e(f's_mov_b32 s{d+2}, {size:#x}')
        e(f's_mov_b32 s{d+3}, 0x20000')

    def stream(self):
        e, D, LV = self.e, self.D, self.LV
        vK, vV = 1, 2
        QB = [4, 8]
        DT = [12, 16]
        T, X = 20, 21
        A = 24
        MK = 28
        OA = 32
        M, L, T2, T3 = 36, 37, 38, 39
        S = 40
        RING = 56
        slot = lambda n: RING + 4 * (n % 32)
        rng = lambda r: f'v[{r}:{r+3}]'

        st = {'issued': -1, 'landed': -1}

        def need_landed(x):
            if x > st['landed']:
                e(f's_waitcnt vmcnt({st["issued"] - x})')
                st['landed'] = x

        def issue(n, gate=True, d=None):
            d = d or D
            if gate:
                e(f's_waitcnt vmcnt({d-1})')
                st['landed'] = max(st['landed'], n - d)
            st['issued'] = n
            srd, vo = ('s[20:23]', vK) if n < 128 else ('s[24:27]', vV)
            e(f'buffer_load_dwordx4 {rng(slot(n))}, v{vo}, {srd}, s28 offen offset:{(n % 4) * 1024} nt')
            if n % 4 == 3:
                e('s_add_u32 s28, s28, 0x4000')

        def kadds(pair, sreg):
            d = DT[pair & 1]
            i = pair & 3
            e(f'v_add_f32_dpp v{T}, v{d + (i+1) % 4}, v{d + i} row_ror:12 row_mask:0xf bank_mask:0xf')
            e(f'v_add_f32_dpp v{T}, v{d + (i+2) % 4}, v{T} row_ror:8 row_mask:0xf bank_mask:0xf')
            e(f'v_add_f32_dpp v{sreg}, v{d + (i+3) % 4}, v{T} row_ror:4 row_mask:0xf bank_mask:{1 << i:#x}')

        def kmfma(n):
            d = DT[(n >> 1) & 1]
            c = '0' if n % 2 == 0 else rng(d)
            e(f'v_mfma_f32_16x16x32_bf16 {rng(d)}, {rng(slot(n))}, {rng(QB[n & 1])}, {c}')

        def shift4():
            for i in range(12):
                e(f'v_mov_b32 v{S+i}, v{S+i+4}')

        def vprep(pn, yreg):
            i = pn & 7
            e(f'v_mov_b32_dpp v{X}, v{yreg} row_newbcast:{2*i} row_mask:0xf bank_mask:0x3')
            e(f'v_mov_b32_dpp v{X}, v{yreg} row_newbcast:{2*i+1} row_mask:0xf bank_mask:0xc')
            for r in range(4):
                e(f'v_and_b32 v{A+r}, v{X}, v{MK+r}')

        def vmfma(pn, first=False):
            c = '0' if first else rng(OA)
            e(f'v_mfma_f32_16x16x32_bf16 {rng(OA)}, {rng(A)}, {rng(slot(pn))}, {c}')

        e('v_lshrrev_b32 v3, 4, v0')
        e('v_bfe_u32 v4, v0, 2, 2')
        e('v_and_b32 v5, 3, v0')
        e('v_lshlrev_b32 v3, 6, v3')
        e('v_lshlrev_b32 v4, 8, v4')
        e('v_lshlrev_b32 v5, 4, v5')
        e(f'v_add3_u32 v{vK}, v3, v4, v5')
        e(f'v_lshlrev_b32 v{vV}, 4, v0')
        e('s_lshl_b32 s31, s2, 19')
        e('s_lshl_b32 s28, s3, 12')
        e('s_waitcnt lgkmcnt(0)')
        self.keep_time(70)
        self.srd(20, 6, 0x80000, add='s31')
        for n in range(self.D0):
            issue(n, gate=False)
        self.srd(24, 8, 0x80000, add='s31')
        e(f's_mov_b32 s30, {SCALE:#x}')
        e('v_lshrrev_b32 v3, 3, v0')
        e('v_xor_b32 v3, v3, v0')
        e('v_and_b32 v3, 1, v3')
        e('v_lshlrev_b32 v3, 4, v3')
        e('v_mov_b32 v4, 0xffff')
        e('v_lshlrev_b32 v3, v3, v4')
        e('v_bfe_u32 v4, v0, 1, 2')
        for r in range(4):
            e(f'v_cmp_eq_u32 vcc, {r}, v4')
            e('s_nop 1')
            e(f'v_cndmask_b32 v{MK+r}, 0, v3, vcc')
        e('v_and_b32 v3, 1, v0')
        e('v_lshlrev_b32 v3, 8, v3')
        e('v_lshrrev_b32 v4, 2, v0')
        e(f'v_lshl_add_u32 v{T2}, v4, 4, v3')
        e('v_and_b32 v3, 2, v0')
        e('v_cmp_ne_u32 vcc, 0, v3')
        for n in range(self.D0, 32):
            issue(n, d=self.D0)
            if n == self.D0:
                self.keep_time(72)
        self.keep_time(60)
        e('s_barrier')
        e(f'ds_read_b128 {rng(DT[0])}, v{T2} offset:{L_Q}')
        e('s_mov_b32 s29, 0')
        e('s_waitcnt lgkmcnt(0)')
        self.keep_time(62)
        for r in range(4):
            e(f'v_cndmask_b32 v{QB[1]+r}, 0, v{DT[0]+r}, vcc')
            e(f'v_cndmask_b32 v{QB[0]+r}, v{DT[0]+r}, 0, vcc')
        e('s_nop 1')
        e('L_kloop:')
        for p in range(16):
            n = 2 * p
            kmfma(n)
            issue(n + 32)
            kmfma(n + 1)
            kadds((p - 1) % 16, S + 12 + (((p - 1) % 16) >> 2))
            if p == 0:
                shift4()
            issue(n + 33)
        e('s_add_u32 s29, s29, 1')
        e('s_cmp_lt_u32 s29, 3')
        e('s_cbranch_scc1 L_kloop')
        e('s_lshl_b32 s28, s3, 12')
        nv = 128
        st['issued'], st['landed'] = 127, 127 - D
        for p in range(16):
            n = 2 * p
            need_landed(96 + n + 1)
            kmfma(n)
            kmfma(n + 1)
            if p % 2 == 1:
                e('s_nop 2')
            kadds((p - 1) % 16, S + 12 + (((p - 1) % 16) >> 2))
            if p == 0:
                shift4()
            if p % 2 == 1:
                issue(nv); nv += 1
            else:
                e('s_nop 1')
        e('s_nop 3')
        kadds(15, S + 15)
        issue(nv); nv += 1
        e(f'v_max3_f32 v{M}, v{S}, v{S+1}, v{S+2}')
        e(f'v_max3_f32 v{T}, v{S+3}, v{S+4}, v{S+5}')
        for i in range(6, 14, 4):
            e(f'v_max3_f32 v{M}, v{M}, v{S+i}, v{S+i+1}')
            e(f'v_max3_f32 v{T}, v{T}, v{S+i+2}, v{S+i+3}')
        e(f'v_max3_f32 v{M}, v{M}, v{S+14}, v{S+15}')
        e(f'v_max_f32 v{M}, v{M}, v{T}')

        def allreduce(reg, op):
            for k in (2, 4, 8):
                e('s_nop 1')
                e(f'{op}_dpp v{reg}, v{reg}, v{reg} row_ror:{k} row_mask:0xf bank_mask:0xf')
            for sw in ('v_permlane16_swap_b32', 'v_permlane32_swap_b32'):
                e(f'v_mov_b32 v{T}, v{reg}')
                e('s_nop 1')
                e(f'{sw} v{reg}, v{T}')
                e(f'{op} v{reg}, v{reg}, v{T}')
        allreduce(M, 'v_max_f32')
        e(f'v_mul_f32 v{M}, s30, v{M}')
        issue(nv); nv += 1
        for i in range(16):
            e(f'v_fma_f32 v{S+i}, v{S+i}, s30, -v{M}')
            e(f'v_exp_f32 v{S+i}, v{S+i}')
            if i % 8 == 7:
                issue(nv); nv += 1
        e(f'v_add_f32 v{L}, v{S}, v{S+1}')
        for i in range(2, 16):
            e(f'v_add_f32 v{L}, v{L}, v{S+i}')
        issue(nv); nv += 1
        for i in range(16):
            t = T2 if i & 1 else T3
            e(f'v_mov_b32_dpp v{t}, v{S+i} quad_perm:[1,0,3,2] row_mask:0xf bank_mask:0xf')
            e(f'v_cvt_pk_bf16_f32 v{S+i}, v{S+i}, v{t}')
            if i % 8 == 7:
                issue(nv); nv += 1
        allreduce(L, 'v_add_f32')
        e(f'v_lshlrev_b32 v{T2}, 3, v0')
        e('s_lshl_b32 s31, s3, 4')
        e(f'v_add_u32 v{T2}, s31, v{T2}')
        e('s_mov_b64 exec, 3')
        e(f'ds_write_b64 v{T2}, v[{M}:{L}] offset:{L_ML}')
        e('s_mov_b64 exec, -1')
        self.keep_time(64)
        pn = 0
        target = 32 - LV
        while nv < 160:
            k = 0
            while pn < target and pn + 128 <= st['landed'] and k < 2:
                vprep(pn, S + (pn >> 3))
                e('s_nop 1')
                vmfma(pn + 128, first=(pn == 0))
                pn += 1; k += 1
            issue(nv); nv += 1
        assert pn == target, (pn, target)
        e('s_mov_b32 s29, 0')
        e('L_vloop:')
        for i in range(32):
            p2 = target + i
            vprep(p2, S + (p2 >> 3))
            issue(160 + i)
            vmfma(p2 + 128)
        shift4()
        e('s_add_u32 s29, s29, 1')
        e('s_cmp_lt_u32 s29, 3')
        e('s_cbranch_scc1 L_vloop')
        self.keep_time(66)
        e(f'v_lshlrev_b32 v{T2}, 4, v0')
        e('s_lshl_b32 s31, s3, 10')
        e(f'v_add_u32 v{T2}, s31, v{T2}')
        for i in range(LV):
            p2 = target + i
            vprep(p2, S + (p2 >> 3))
            if LV - 1 - i < D:
                e(f's_waitcnt vmcnt({LV - 1 - i})')
                e('s_nop 0')
            else:
                e('s_nop 1')
            vmfma(p2 + 128)
        e('s_nop 7')
        e(f'ds_write_b128 v{T2}, {rng(OA)} offset:{L_O}')
        e('s_waitcnt lgkmcnt(0)')
        self.keep_time(68)
        e('s_barrier')
        if self.stamps:
            e('s_cmp_lg_u32 s3, 0')
            e('s_cbranch_scc1 L_end')
            for k, sr in enumerate((58, 60, 62, 64, 66, 68)):
                self.flush_time(k, sr)
            self.flush_time(16, 70)
            self.flush_time(17, 72)
        e('s_endpgm')

    def ready_check(self, lab, srd, vaddr, vtmp, scnt):
        e = self.e
        e(f'v_lshlrev_b32 v{vaddr}, 2, v0')
        e(f's_mov_b32 s{scnt}, 0')
        e(f'{lab}:')
        e(f'buffer_load_dword v{vtmp}, v{vaddr}, s[{srd}:{srd+3}], 0 offen sc1')
        e('s_waitcnt vmcnt(0)')
        e(f'v_cmp_ne_u32 vcc, 0x01010101, v{vtmp}')
        e(f's_add_u32 s{scnt}, s{scnt}, 1')
        e(f's_cbranch_vccz {lab}_ok')
        e('s_sleep 32')
        e(f's_cmp_lt_u32 s{scnt}, {SPIN}')
        e(f's_cbranch_scc1 {lab}')
        e(f'{lab}_ok:')

    def maxu(self, dst, regs):
        e = self.e
        regs = list(regs)
        e(f'v_max3_u32 v{dst}, v{regs[0]}, v{regs[1]}, v{regs[2]}')
        regs = regs[3:]
        while len(regs) >= 2:
            e(f'v_max3_u32 v{dst}, v{dst}, v{regs[0]}, v{regs[1]}')
            regs = regs[2:]
        if regs:
            e(f'v_max_u32 v{dst}, v{dst}, v{regs[0]}')

    def helper(self):
        e = self.e
        rng = lambda r: f'v[{r}:{r+3}]'
        XA = 16
        WB = 96
        e('s_and_b32 s40, s2, 7')
        e('s_lshl_b32 s40, s40, 5')
        e('s_lshr_b32 s41, s2, 3')
        e('s_add_u32 s40, s40, s41')
        e('v_lshrrev_b32 v1, 1, v0')
        e('v_lshlrev_b32 v1, 13, v1')
        e('v_and_b32 v2, 1, v0')
        e('v_lshl_add_u32 v1, v2, 4, v1')
        e('s_lshl_b32 s41, s40, 5')
        e('v_add_u32 v1, s41, v1')
        e('v_and_b32 v2, 3, v0')
        e('v_mul_u32_u24 v2, 1152, v2')
        e('v_lshrrev_b32 v3, 4, v0')
        e('v_lshl_add_u32 v2, v3, 4, v2')
        e('s_waitcnt lgkmcnt(0)')
        e('s_load_dwordx2 s[32:33], s[18:19], 0')
        self.srd(20, 10, 576 * 4096 * 2)
        e('s_mov_b32 s42, 0')
        e(f's_mov_b32 m0, {L_WQ}')
        for i in range(18):
            if i:
                e(f's_mov_b32 m0, {L_WQ + 1024 * i}')
                e('s_add_u32 s42, s42, 0x40000')
            else:
                e('s_nop 0')
            e('buffer_load_dwordx4 v1, s[20:23], s42 offen nt lds')
        self.srd(24, 4, 4 * 576 * 2)
        for kk in range(18):
            e(f'buffer_load_dwordx4 {rng(XA + 4*kk)}, v2, s[24:27], 0 offen offset:{kk*64}')
        self.srd(28, 18, WSWIN)
        self.srd(36, 16, 256)
        for r in range(4):
            e(f'v_mov_b32 v{8+r}, -1')
        e('v_lshlrev_b32 v4, 4, v0')
        e('s_lshl_b32 s43, s2, 10')
        e(f's_add_u32 s44, s43, {ROFF}')
        e(f's_add_u32 s45, s43, {POFF}')
        e('buffer_store_dwordx4 v[8:11], v4, s[28:31], s45 offen sc1')
        e('s_mov_b32 exec_hi, 1')
        e('buffer_store_dwordx4 v[8:11], v4, s[28:31], s44 offen sc1')
        e('s_mov_b64 exec, 15')
        e(f'ds_write_b128 v4, v[8:11] offset:{L_ML}')
        e('s_mov_b64 exec, -1')
        e('v_lshrrev_b32 v3, 4, v0')
        e('v_lshlrev_b32 v3, 8, v3')
        e('v_and_b32 v5, 15, v0')
        e('v_lshl_add_u32 v3, v5, 3, v3')
        e('v_lshrrev_b32 v6, 4, v0')
        e('v_lshlrev_b32 v6, 15, v6')
        e('v_lshl_add_u32 v6, v5, 3, v6')
        e('s_lshl_b32 s41, s40, 7')
        e(f's_add_u32 s46, s41, {QOFF}')
        e('v_lshlrev_b32 v7, 5, v0')
        e('s_lshr_b32 s41, s2, 2')
        e('s_lshl_b32 s41, s41, 11')
        e(f's_add_u32 s47, s41, {QOFF}')
        e('s_waitcnt lgkmcnt(0)')
        e('s_add_u32 s32, s32, 0x7f4a7c15')
        e('s_addc_u32 s33, s33, 0x9e3779b9')
        e('s_lshl_b32 s34, s32, 16')
        e('s_mov_b32 s35, s33')
        self.keep_time(74)
        e('s_waitcnt vmcnt(20)')
        self.keep_time(60)
        for kk in range(18):
            e(f'ds_read_b64_tr_b16 v[{WB+4*kk}:{WB+4*kk+1}], v3 offset:{L_WQ + kk*1024}')
            e(f'ds_read_b64_tr_b16 v[{WB+4*kk+2}:{WB+4*kk+3}], v3 offset:{L_WQ + kk*1024 + 128}')
        e('s_waitcnt vmcnt(2)')
        self.keep_time(72)
        for kk in range(18):
            left = 2 * (17 - kk)
            if left <= 15 or kk == 0:
                e(f's_waitcnt lgkmcnt({min(left, 15)})')
            c = '0' if kk == 0 else 'v[12:15]'
            e(f'v_mfma_f32_16x16x32_bf16 v[12:15], {rng(XA + 4*kk)}, {rng(WB + 4*kk)}, {c}')
        e('v_mov_b32 v9, s35')
        e('s_nop 6')
        for b in range(1, 4):
            e(f'v_mov_b32_dpp v12, v{12+b} quad_perm:[0,1,2,3] row_mask:{1 << b:#x} bank_mask:0xf')
        e('v_cvt_pk_bf16_f32 v8, v12, v12')
        e('v_and_b32 v8, 0xffff, v8')
        e('v_or_b32 v8, s34, v8')
        e('buffer_store_dwordx2 v[8:9], v6, s[28:31], s46 offen sc1')
        self.keep_time(62)
        e('s_mov_b32 s48, 0')
        e('s_mov_b32 s49, 0x05040100')
        e('L_qpoll:')
        e('buffer_load_dwordx4 v[16:19], v7, s[28:31], s47 offen sc1')
        e('buffer_load_dwordx4 v[20:23], v7, s[28:31], s47 offen offset:16 sc1')
        e('s_add_u32 s48, s48, 1')
        e('s_waitcnt vmcnt(0)')
        e('v_xor_b32 v24, s34, v16')
        e('v_xor_b32 v25, s34, v18')
        e('v_xor_b32 v26, s34, v20')
        e('v_xor_b32 v27, s34, v22')
        e('v_or3_b32 v24, v24, v25, v26')
        e('v_or_b32 v24, v24, v27')
        e('v_lshrrev_b32 v24, 16, v24')
        e('v_xor_b32 v25, s35, v17')
        e('v_xor_b32 v26, s35, v19')
        e('v_or3_b32 v24, v24, v25, v26')
        e('v_xor_b32 v25, s35, v21')
        e('v_xor_b32 v26, s35, v23')
        e('v_or3_b32 v24, v24, v25, v26')
        e('v_cmp_ne_u32 vcc, 0, v24')
        e('s_nop 0')
        e('s_cbranch_vccz L_qok')
        e(f's_cmp_lt_u32 s48, {SPIN}')
        e('s_cbranch_scc1 L_qpoll')
        e('L_qok:')
        e('v_perm_b32 v24, v18, v16, s49')
        e('v_perm_b32 v25, v22, v20, s49')
        e('v_lshlrev_b32 v5, 3, v0')
        e(f'ds_write_b64 v5, v[24:25] offset:{L_Q}')
        e('s_waitcnt lgkmcnt(0)')
        self.keep_time(64)
        e('s_barrier')
        e('v_mov_b32 v8, 1')
        e('v_mov_b32 v9, s2')
        e('s_mov_b64 exec, 1')
        e('buffer_store_byte v8, v9, s[36:39], 0 offen sc1')
        e('s_mov_b64 exec, -1')
        e('v_mov_b32 v5, 0')
        e('s_mov_b32 s48, 0')
        e('L_mlwait:')
        e('s_sleep 16')
        for w in range(4):
            e(f'ds_read_b128 {rng(16 + 4*w)}, v5 offset:{L_ML + 16*w}')
        e('s_add_u32 s48, s48, 1')
        e('s_waitcnt lgkmcnt(0)')
        self.maxu(32, range(16, 32))
        e('v_cmp_eq_u32 vcc, -1, v32')
        e('s_nop 0')
        e('s_cbranch_vccz L_mlok')
        e(f's_cmp_lt_u32 s48, {SPIN}')
        e('s_cbranch_scc1 L_mlwait')
        e('L_mlok:')
        for h in range(2):
            m = [16 + 4*w + 2*h for w in range(4)]
            e(f'v_max3_f32 v{36+2*h}, v{m[0]}, v{m[1]}, v{m[2]}')
            e(f'v_max_f32 v{36+2*h}, v{36+2*h}, v{m[3]}')
            for w in range(4):
                e(f'v_sub_f32 v{40+w}, v{m[w]}, v{36+2*h}')
                e(f'v_exp_f32 v{40+w}, v{40+w}')
            e('s_nop 0')
            e(f'v_mul_f32 v{37+2*h}, v40, v{m[0]+1}')
            for w in range(1, 4):
                e(f'v_fmac_f32 v{37+2*h}, v{40+w}, v{m[w]+1}')
        for r in range(4):
            e(f'v_min_u32 v{36+r}, 0xfffffffe, v{36+r}')
        e('s_mov_b64 exec, 1')
        e('buffer_store_dwordx4 v[36:39], v5, s[28:31], s44 offen offset:512 sc1')
        e('s_mov_b64 exec, -1')
        self.ready_check('L_hrdy', 36, 8, 9, 48)
        e('s_and_b32 s41, s2, 0xfc')
        e('s_lshl_b32 s41, s41, 10')
        e(f's_add_u32 s41, s41, {ROFF + 512}')
        e('s_mov_b32 s48, 0')
        e('s_mov_b64 exec, 1')
        e('L_gml:')
        for s in range(4):
            e(f'buffer_load_dwordx4 {rng(48 + 4*s)}, v5, s[28:31], s41 offen offset:{1024*s} sc1')
        e('s_add_u32 s48, s48, 1')
        e('s_waitcnt vmcnt(0)')
        self.maxu(32, range(48, 64))
        e('v_cmp_eq_u32 vcc, -1, v32')
        e('s_nop 0')
        e('s_cbranch_vccz L_gmlok')
        e('s_sleep 16')
        e(f's_cmp_lt_u32 s48, {SPIN}')
        e('s_cbranch_scc1 L_gml')
        e('L_gmlok:')
        for h in range(2):
            m = [48 + 4*s + 2*h for s in range(4)]
            e(f'v_max3_f32 v36, v{m[0]}, v{m[1]}, v{m[2]}')
            e(f'v_max_f32 v36, v36, v{m[3]}')
            for s in range(4):
                e(f'v_sub_f32 v{40+s}, v{m[s]}, v36')
                e(f'v_exp_f32 v{40+s}, v{40+s}')
            e('s_nop 0')
            e(f'v_mul_f32 v37, v40, v{m[0]+1}')
            for s in range(1, 4):
                e(f'v_fmac_f32 v37, v{40+s}, v{m[s]+1}')
            e('v_rcp_f32 v37, v37')
            for w in range(4):
                e(f'v_sub_f32 v{40+w}, v{16 + 4*w + 2*h}, v36')
                e(f'v_exp_f32 v{40+w}, v{40+w}')
            e('s_nop 0')
            for w in range(4):
                e(f'v_mul_f32 v{40+w}, v{40+w}, v37')
            e('s_nop 0')
            for w in range(4):
                e(f'v_readfirstlane_b32 s{50 + 2*w + h}, v{40+w}')
        e('s_mov_b64 exec, -1')
        e('v_lshlrev_b32 v5, 3, v0')
        self.keep_time(66)
        e('s_barrier')
        self.keep_time(68)
        for w in range(4):
            e(f'ds_read_b128 {rng(16 + 4*w)}, v4 offset:{L_O + 1024*w}')
        for w in range(4):
            e(f's_waitcnt lgkmcnt({3-w})')
            for r in range(4):
                if w == 0:
                    e(f'v_mul_f32 v{32+r}, s{50 + (r & 1)}, v{16+r}')
                else:
                    e(f'v_fmac_f32 v{32+r}, s{50 + 2*w + (r & 1)}, v{16 + 4*w + r}')
        e('v_cvt_pk_bf16_f32 v36, v32, v34')
        e('v_cvt_pk_bf16_f32 v37, v33, v35')
        e('v_min_u32 v36, 0xfffffffe, v36')
        e('v_min_u32 v37, 0xfffffffe, v37')
        e('s_mov_b32 s48, 0x55555555')
        e('v_mov_b32_dpp v38, v36 quad_perm:[1,1,3,3] row_mask:0xf bank_mask:0xf')
        e('v_mov_b32_dpp v39, v37 quad_perm:[1,1,3,3] row_mask:0xf bank_mask:0xf')
        e('s_mov_b32 exec_lo, s48')
        e('s_mov_b32 exec_hi, s48')
        e('buffer_store_dwordx4 v[36:39], v5, s[28:31], s44 offen sc1')
        if self.stamps:
            self.keep_time(70)
            e('s_mov_b64 exec, -1')
            for k, sr in enumerate((60, 62, 64, 66, 68, 70)):
                self.flush_time(6 + k, sr)
            self.flush_time(18, 74)
            self.flush_time(19, 72)
        e('s_endpgm')

    def wave5(self):
        e = self.e
        rng = lambda r: f'v[{r}:{r+3}]'
        e('s_cmp_ge_u32 s2, 180')
        e('s_cbranch_scc1 L_end')
        e('s_waitcnt lgkmcnt(0)')
        self.srd(28, 18, WSWIN)
        self.srd(36, 16, 256)
        e('s_cmp_ge_u32 s2, 144')
        e('s_cbranch_scc1 L_reduce')
        BW = 64
        AO = 32
        e('s_mul_i32 s40, s2, 57')
        e('s_lshr_b32 s40, s40, 9')
        e('s_mul_i32 s41, s40, 9')
        e('s_sub_u32 s41, s2, s41')
        self.srd(20, 12, 4096 * 576 * 2)
        e('v_lshrrev_b32 v1, 3, v0')
        e('v_mul_u32_u24 v1, 1152, v1')
        e('v_and_b32 v2, 7, v0')
        e('v_lshl_add_u32 v1, v2, 4, v1')
        e(f's_mul_i32 s42, s40, {256 * 1152}')
        e('s_lshl_b32 s43, s41, 7')
        e('s_add_u32 s42, s42, s43')
        e('v_bfe_u32 v4, v0, 3, 1')
        e('v_bfe_u32 v5, v0, 2, 1')
        e('v_lshl_add_u32 v6, v5, 1, v4')
        e('v_lshrrev_b32 v7, 4, v0')
        e('v_lshlrev_b32 v7, 4, v7')
        e('v_lshl_add_u32 v7, v4, 7, v7')
        e('v_add_u32 v2, v7, v6')
        e('v_xor_b32 v3, 1, v2')
        e('v_and_b32 v4, 3, v0')
        e('v_lshlrev_b32 v4, 3, v4')
        e('v_lshl_add_u32 v2, v2, 7, v4')
        e('v_lshl_add_u32 v3, v3, 7, v4')
        e('v_bfe_u32 v4, v0, 2, 2')
        e('v_lshlrev_b32 v4, 6, v4')
        e('v_and_b32 v5, 3, v0')
        e('v_add_u32 v4, v4, v5')
        e('v_lshlrev_b32 v4, 10, v4')
        e('v_lshrrev_b32 v5, 4, v0')
        e('v_lshl_add_u32 v4, v5, 4, v4')
        e('s_lshl_b32 s44, s40, 12')
        e(f's_add_u32 s44, s44, {ROFF}')
        e('s_lshl_b32 s45, s2, 10')
        e(f's_add_u32 s45, s45, {POFF}')
        e('v_lshlrev_b32 v5, 4, v0')
        e('s_barrier')
        e(f's_mov_b32 s46, {L_WO}')
        e('L_wo:')
        e('s_mov_b32 m0, s46')
        e('s_add_u32 s46, s46, 1024')
        e('buffer_load_dwordx4 v1, s[20:23], s42 offen nt lds')
        e('s_add_u32 s42, s42, 9216')
        e('s_waitcnt vmcnt(1)')
        e(f's_cmp_lt_u32 s46, {L_WO + 32768}')
        e('s_cbranch_scc1 L_wo')
        e('s_waitcnt vmcnt(0)')
        for t in range(4):
            for kk in range(8):
                gp = kk >> 1
                for hf in range(2):
                    row = 64 * (kk & 1) + 8 * hf + 4 * (gp & 1)
                    r = BW + (t * 8 + kk) * 4 + 2 * hf
                    e(f'ds_read_b64_tr_b16 v[{r}:{r+1}], v{2 + (gp >> 1)} offset:{L_WO + row * 128 + t * 32}')
            e('s_waitcnt lgkmcnt(0)')
        self.ready_check('L_wrdy', 36, 8, 9, 48)
        e('s_mov_b32 s48, 0')
        e('s_barrier')
        self.keep_time(60)
        e('L_opoll:')
        for kk in range(8):
            e(f'buffer_load_dwordx4 {rng(AO + 4*kk)}, v4, s[28:31], s44 offen offset:{64*kk} sc1')
        e('s_add_u32 s48, s48, 1')
        e('s_waitcnt vmcnt(0)')
        self.maxu(8, range(AO, AO + 32))
        e('v_cmp_eq_u32 vcc, -1, v8')
        e('s_nop 0')
        e('s_cbranch_vccz L_ook')
        e(f's_cmp_lt_u32 s48, {SPIN}')
        e('s_cbranch_scc1 L_opoll')
        e('L_ook:')
        self.keep_time(62)
        for t in range(4):
            for kk in range(8):
                c = '0' if kk == 0 else rng(16 + 4*t)
                e(f'v_mfma_f32_16x16x32_bf16 {rng(16 + 4*t)}, {rng(AO + 4*kk)}, {rng(BW + (t*8 + kk)*4)}, {c}')
        for t in range(4):
            d = 16 + 4 * t
            if t == 3:
                e('s_nop 0')
            e(f'v_add_f32 v{d}, v{d}, v{d+1}')
            e(f'v_add_f32 v{d+2}, v{d+2}, v{d+3}')
            e(f'v_add_f32 v{12+t}, v{d}, v{d+2}')
        for t in range(4):
            e(f'v_min_u32 v{12+t}, 0xfffffffe, v{12+t}')
        e('buffer_store_dwordx4 v[12:15], v5, s[28:31], s45 offen sc1')
        if self.stamps:
            self.keep_time(64)
            for k, sr in enumerate((60, 62, 64)):
                self.flush_time(12 + k, sr)
        e('s_endpgm')

        e('L_reduce:')
        e('s_load_dwordx2 s[32:33], s[18:19], 0')
        e('s_sub_u32 s40, s2, 144')
        e('s_lshr_b32 s41, s40, 2')
        e('s_and_b32 s40, s40, 3')
        self.srd(20, 14, 4 * 576 * 2)
        e('v_lshrrev_b32 v1, 4, v0')
        e('v_mul_u32_u24 v1, 9216, v1')
        e('v_and_b32 v2, 15, v0')
        e('v_lshl_add_u32 v1, v2, 4, v1')
        e('s_lshl_b32 s42, s41, 10')
        e('s_lshl_b32 s43, s40, 8')
        e('s_add_u32 s42, s42, s43')
        e(f's_add_u32 s42, s42, {POFF}')
        for i in range(1, 4):
            e(f's_add_u32 s{42+i}, s42, {36864*i}')
        e('s_mul_i32 s46, s40, 1152')
        e('s_lshl_b32 s47, s41, 7')
        e('s_add_u32 s46, s46, s47')
        e('v_lshlrev_b32 v2, 1, v0')
        e('s_waitcnt lgkmcnt(0)')
        e('s_add_u32 s32, s32, 0x7f4a7c15')
        e('s_addc_u32 s33, s33, 0x9e3779b9')
        e('s_barrier')
        e('s_sleep 127')
        self.ready_check('L_rrdy', 36, 8, 9, 48)
        e('s_mov_b32 s48, 0')
        e('s_barrier')
        self.keep_time(60)
        e('L_ppoll:')
        for i in range(4):
            e(f'buffer_load_dwordx4 {rng(16 + 4*i)}, v1, s[28:31], s{42+i} offen sc1')
        e('s_add_u32 s48, s48, 1')
        e('s_waitcnt vmcnt(0)')
        self.maxu(8, range(16, 32))
        e('v_cmp_eq_u32 vcc, -1, v8')
        e('s_nop 0')
        e('s_cbranch_vccz L_pok')
        e(f's_cmp_lt_u32 s48, {SPIN}')
        e('s_cbranch_scc1 L_ppoll')
        e('L_pok:')
        self.keep_time(62)
        for t in range(4):
            e(f'v_add_f32 v{16+t}, v{16+t}, v{20+t}')
            e(f'v_add_f32 v{24+t}, v{24+t}, v{28+t}')
        for t in range(4):
            e(f'v_add_f32 v{16+t}, v{16+t}, v{24+t}')
        e('s_nop 0')
        e('v_permlane32_swap_b32 v16, v18')
        e('v_permlane32_swap_b32 v17, v19')
        e('v_add_f32 v16, v16, v18')
        e('v_add_f32 v17, v17, v19')
        e('s_nop 1')
        e('v_permlane16_swap_b32 v16, v17')
        e('v_add_f32 v16, v16, v17')
        e('v_cvt_pk_bf16_f32 v16, v16, v16')
        e('buffer_store_short v16, v2, s[20:23], s46 offen')
        e('s_cmp_lg_u32 s2, 144')
        e('s_cbranch_scc1 L_rdone')
        e('v_mov_b32 v4, s32')
        e('v_mov_b32 v5, s33')
        e('v_mov_b32 v6, 0')
        e('s_mov_b64 exec, 1')
        e('buffer_store_dwordx2 v[4:5], v6, s[28:31], 0 offen sc1')
        e('s_mov_b64 exec, -1')
        e('L_rdone:')
        if self.stamps:
            self.keep_time(64)
            for k, sr in enumerate((60, 62, 64)):
                self.flush_time(12 + k, sr)
        e('s_endpgm')

    def build(self):
        e = self.e
        e('.amdgcn_target "amdgcn-amd-amdhsa--gfx950"')
        e('.text')
        e(f'.globl {NAME}')
        e('.p2align 8')
        e(f'.type {NAME},@function')
        e(f'{NAME}:')
        e('s_cmp_ge_u32 s2, 256')
        e('s_cbranch_scc1 L_end')
        self.keep_time(58)
        e('s_load_dwordx16 s[4:19], s[0:1], 0')
        e('v_lshrrev_b32 v1, 6, v0')
        e('v_and_b32 v0, 63, v0')
        e('v_readfirstlane_b32 s3, v1')
        e('s_cmp_eq_u32 s3, 4')
        e('s_cbranch_scc1 L_helper')
        e('s_cmp_eq_u32 s3, 5')
        e('s_cbranch_scc1 L_wave5')
        self.stream()
        e('L_helper:')
        self.helper()
        e('L_wave5:')
        self.wave5()
        e('L_end:')
        e('s_endpgm')
        nv = 256 if self.stamps else 192
        e('.section .rodata,"a"')
        e('.p2align 6')
        e(f'.amdhsa_kernel {NAME}')
        e(f'  .amdhsa_next_free_vgpr {nv}')
        e('  .amdhsa_next_free_sgpr 96')
        e(f'  .amdhsa_accum_offset {nv}')
        e('  .amdhsa_group_segment_fixed_size 0')
        e('  .amdhsa_kernarg_size 64')
        e('  .amdhsa_user_sgpr_count 2')
        e('  .amdhsa_user_sgpr_kernarg_segment_ptr 1')
        e('  .amdhsa_system_sgpr_workgroup_id_x 1')
        e('.end_amdhsa_kernel')
        errs = check([l.lstrip() if l.lstrip().startswith('.') else l for l in self.o])
        for x in errs:
            print('HAZARD', x, file=sys.stderr)
        txt = HEADER + f'; @launch grid=(256,1,1) block=(384,1,1) lds={LDS_BYTES}\n' + '\n'.join(self.o) + '\n'
        return txt, errs


if __name__ == '__main__':
    kw = {}
    out = sys.argv[1]
    for a in sys.argv[2:]:
        k, v = a.split('=')
        kw[k] = int(v)
    txt, errs = G(**kw).build()
    open(out, 'w').write(txt)
    sys.exit(1 if errs else 0)
```

```python
import sys, struct
from hazard import check

NAME = "standalone__gqa_block_cached__decode_kernel"

HEADER = """; Kernarg layout for this problem (64 bytes, ptrs only, base s[0:1]):
"""

QOFF = 0x1000
ROFF = 0x40000
POFF = 0x80000
WSWIN = 0x100000
STAMP0 = 0x10000000
STAMP1 = 0x10100000

L_WQ = 0x0000
L_WO = 0x5000
L_Q = 0xD000
L_ML = 0xD200
L_O = 0xD400
LDS_BYTES = 0xE400

def f2u(x):
    return struct.unpack('<I', struct.pack('<f', x))[0]

SCALE = f2u(128 ** -0.5 * 1.4426950408889634)
SPIN = 1 << 19


class G:
    def __init__(self, D=5, LV=16, stamps=False, D0=None, dbgt=0, nt=1, pf=0):
        self.o = []
        self.D = D
        self.D0 = D0 or D
        self.LV = LV
        self.stamps = stamps
        self.dbgt = dbgt
        self.nt = ' nt' if nt else ''
        self.pf = pf

    def e(self, s):
        self.o.append(s if s.endswith(':') or s.startswith('.') or s.startswith(';') else '    ' + s)

    def stamp(self, idx, sbase=80):
        if not self.stamps:
            return
        e = self.e
        e('s_memrealtime s[80:81]')
        e(f's_add_u32 s82, s18, {STAMP1 + idx * 8}')
        e('s_addc_u32 s83, s19, 0')
        e('s_lshl_b32 s84, s2, 8')
        e('s_waitcnt lgkmcnt(0)')
        e('v_mov_b32 v250, s84')
        e('v_mov_b32 v252, s80')
        e('v_mov_b32 v253, s81')
        e('s_mov_b64 s[86:87], exec')
        e('s_mov_b64 exec, 1')
        e('global_store_dwordx2 v250, v[252:253], s[82:83]')
        e('s_mov_b64 exec, s[86:87]')

    def keep_time(self, sreg):
        if self.stamps:
            self.e(f's_memrealtime s[{sreg}:{sreg+1}]')

    def flush_time(self, idx, sreg):
        if not self.stamps:
            return
        e = self.e
        e(f's_add_u32 s82, s18, {STAMP1 + idx * 8}')
        e('s_addc_u32 s83, s19, 0')
        e('s_lshl_b32 s84, s2, 8')
        e('s_waitcnt lgkmcnt(0)')
        e('v_mov_b32 v250, s84')
        e(f'v_mov_b32 v252, s{sreg}')
        e(f'v_mov_b32 v253, s{sreg+1}')
        e('s_mov_b64 s[86:87], exec')
        e('s_mov_b64 exec, 1')
        e('global_store_dwordx2 v250, v[252:253], s[82:83]')
        e('s_mov_b64 exec, s[86:87]')

    def srd(self, d, base, size, add=None):
        e = self.e
        if add is None:
            e(f's_mov_b32 s{d}, s{base}')
            e(f's_mov_b32 s{d+1}, s{base+1}')
        else:
            e(f's_add_u32 s{d}, s{base}, {add}')
            e(f's_addc_u32 s{d+1}, s{base+1}, 0')
        e(f's_mov_b32 s{d+2}, {size:#x}')
        e(f's_mov_b32 s{d+3}, 0x20000')

    def stream(self):
        e, D, LV = self.e, self.D, self.LV
        vK, vV = 1, 2
        QB = [4, 8]
        DT = [12, 16]
        T, X = 20, 21
        A = 24
        MK = 28
        OA = 32
        M, L, T2, T3 = 36, 37, 38, 39
        S = 40
        RING = 56
        slot = lambda n: RING + 4 * (n % 32)
        rng = lambda r: f'v[{r}:{r+3}]'

        st = {'issued': -1, 'landed': -1}

        def need_landed(x):
            if x > st['landed']:
                e(f's_waitcnt vmcnt({st["issued"] - x})')
                st['landed'] = x

        def issue(n, gate=True, d=None):
            d = d or D
            if gate:
                e(f's_waitcnt vmcnt({d-1})')
                st['landed'] = max(st['landed'], n - d)
            st['issued'] = n
            srd, vo = ('s[20:23]', vK) if n < 128 else ('s[24:27]', vV)
            e(f'buffer_load_dwordx4 {rng(slot(n))}, v{vo}, {srd}, s28 offen offset:{(n % 4) * 1024}{self.nt}')
            if n % 4 == 3:
                e('s_add_u32 s28, s28, 0x4000')

        def kadds(pair, sreg):
            d = DT[pair & 1]
            i = pair & 3
            e(f'v_add_f32_dpp v{T}, v{d + (i+1) % 4}, v{d + i} row_ror:12 row_mask:0xf bank_mask:0xf')
            e(f'v_add_f32_dpp v{T}, v{d + (i+2) % 4}, v{T} row_ror:8 row_mask:0xf bank_mask:0xf')
            e(f'v_add_f32_dpp v{sreg}, v{d + (i+3) % 4}, v{T} row_ror:4 row_mask:0xf bank_mask:{1 << i:#x}')

        def kmfma(n):
            d = DT[(n >> 1) & 1]
            c = '0' if n % 2 == 0 else rng(d)
            e(f'v_mfma_f32_16x16x32_bf16 {rng(d)}, {rng(slot(n))}, {rng(QB[n & 1])}, {c}')

        def shift4():
            for i in range(12):
                e(f'v_mov_b32 v{S+i}, v{S+i+4}')

        def vprep(pn, yreg):
            i = pn & 7
            e(f'v_mov_b32_dpp v{X}, v{yreg} row_newbcast:{2*i} row_mask:0xf bank_mask:0x3')
            e(f'v_mov_b32_dpp v{X}, v{yreg} row_newbcast:{2*i+1} row_mask:0xf bank_mask:0xc')
            for r in range(4):
                e(f'v_and_b32 v{A+r}, v{X}, v{MK+r}')

        def vmfma(pn, first=False):
            c = '0' if first else rng(OA)
            e(f'v_mfma_f32_16x16x32_bf16 {rng(OA)}, {rng(A)}, {rng(slot(pn))}, {c}')

        e('v_lshrrev_b32 v3, 4, v0')
        e('v_bfe_u32 v4, v0, 2, 2')
        e('v_and_b32 v5, 3, v0')
        e('v_lshlrev_b32 v3, 6, v3')
        e('v_lshlrev_b32 v4, 8, v4')
        e('v_lshlrev_b32 v5, 4, v5')
        e(f'v_add3_u32 v{vK}, v3, v4, v5')
        e(f'v_lshlrev_b32 v{vV}, 4, v0')
        e('s_lshl_b32 s31, s2, 19')
        e('s_lshl_b32 s28, s3, 12')
        e('s_waitcnt lgkmcnt(0)')
        self.keep_time(70)
        self.srd(20, 6, 0x80000, add='s31')
        for n in range(self.D0):
            issue(n, gate=False)
        self.srd(24, 8, 0x80000, add='s31')
        e(f's_mov_b32 s30, {SCALE:#x}')
        e('v_lshrrev_b32 v3, 3, v0')
        e('v_xor_b32 v3, v3, v0')
        e('v_and_b32 v3, 1, v3')
        e('v_lshlrev_b32 v3, 4, v3')
        e('v_mov_b32 v4, 0xffff')
        e('v_lshlrev_b32 v3, v3, v4')
        e('v_bfe_u32 v4, v0, 1, 2')
        for r in range(4):
            e(f'v_cmp_eq_u32 vcc, {r}, v4')
            e('s_nop 1')
            e(f'v_cndmask_b32 v{MK+r}, 0, v3, vcc')
        e('v_and_b32 v3, 1, v0')
        e('v_lshlrev_b32 v3, 8, v3')
        e('v_lshrrev_b32 v4, 2, v0')
        e(f'v_lshl_add_u32 v{T2}, v4, 4, v3')
        e('v_and_b32 v3, 2, v0')
        e('v_cmp_ne_u32 vcc, 0, v3')
        for n in range(self.D0, 32):
            issue(n, d=self.D0)
            if n == self.D0:
                self.keep_time(72)
        self.keep_time(60)
        e('s_barrier')
        e(f'ds_read_b128 {rng(DT[0])}, v{T2} offset:{L_Q}')
        e('s_mov_b32 s29, 0')
        e('s_waitcnt lgkmcnt(0)')
        self.keep_time(62)
        for r in range(4):
            e(f'v_cndmask_b32 v{QB[1]+r}, 0, v{DT[0]+r}, vcc')
            e(f'v_cndmask_b32 v{QB[0]+r}, v{DT[0]+r}, 0, vcc')
        e('s_nop 1')
        e('L_kloop:')
        for p in range(16):
            n = 2 * p
            kmfma(n)
            issue(n + 32)
            kmfma(n + 1)
            kadds((p - 1) % 16, S + 12 + (((p - 1) % 16) >> 2))
            if p == 0:
                shift4()
            issue(n + 33)
        e('s_add_u32 s29, s29, 1')
        e('s_cmp_lt_u32 s29, 3')
        e('s_cbranch_scc1 L_kloop')
        e('s_lshl_b32 s28, s3, 12')
        nv = 128
        st['issued'], st['landed'] = 127, 127 - D
        for p in range(16):
            n = 2 * p
            need_landed(96 + n + 1)
            kmfma(n)
            kmfma(n + 1)
            if p % 2 == 1:
                e('s_nop 2')
            kadds((p - 1) % 16, S + 12 + (((p - 1) % 16) >> 2))
            if p == 0:
                shift4()
            if p % 2 == 1:
                issue(nv); nv += 1
            else:
                e('s_nop 1')
        e('s_nop 3')
        kadds(15, S + 15)
        issue(nv); nv += 1
        e(f'v_max3_f32 v{M}, v{S}, v{S+1}, v{S+2}')
        e(f'v_max3_f32 v{T}, v{S+3}, v{S+4}, v{S+5}')
        for i in range(6, 14, 4):
            e(f'v_max3_f32 v{M}, v{M}, v{S+i}, v{S+i+1}')
            e(f'v_max3_f32 v{T}, v{T}, v{S+i+2}, v{S+i+3}')
        e(f'v_max3_f32 v{M}, v{M}, v{S+14}, v{S+15}')
        e(f'v_max_f32 v{M}, v{M}, v{T}')

        def allreduce(reg, op):
            for k in (2, 4, 8):
                e('s_nop 1')
                e(f'{op}_dpp v{reg}, v{reg}, v{reg} row_ror:{k} row_mask:0xf bank_mask:0xf')
            for sw in ('v_permlane16_swap_b32', 'v_permlane32_swap_b32'):
                e(f'v_mov_b32 v{T}, v{reg}')
                e('s_nop 1')
                e(f'{sw} v{reg}, v{T}')
                e(f'{op} v{reg}, v{reg}, v{T}')
        allreduce(M, 'v_max_f32')
        e(f'v_mul_f32 v{M}, s30, v{M}')
        issue(nv); nv += 1
        for i in range(16):
            e(f'v_fma_f32 v{S+i}, v{S+i}, s30, -v{M}')
            e(f'v_exp_f32 v{S+i}, v{S+i}')
            if i % 8 == 7:
                issue(nv); nv += 1
        e(f'v_add_f32 v{L}, v{S}, v{S+1}')
        for i in range(2, 16):
            e(f'v_add_f32 v{L}, v{L}, v{S+i}')
        issue(nv); nv += 1
        for i in range(16):
            t = T2 if i & 1 else T3
            e(f'v_mov_b32_dpp v{t}, v{S+i} quad_perm:[1,0,3,2] row_mask:0xf bank_mask:0xf')
            e(f'v_cvt_pk_bf16_f32 v{S+i}, v{S+i}, v{t}')
            if i % 8 == 7:
                issue(nv); nv += 1
        allreduce(L, 'v_add_f32')
        e(f'v_lshlrev_b32 v{T2}, 3, v0')
        e('s_lshl_b32 s31, s3, 4')
        e(f'v_add_u32 v{T2}, s31, v{T2}')
        e('s_mov_b64 exec, 3')
        e(f'ds_write_b64 v{T2}, v[{M}:{L}] offset:{L_ML}')
        e('s_mov_b64 exec, -1')
        self.keep_time(64)
        pn = 0
        target = 32 - LV
        while nv < 160:
            k = 0
            while pn < target and pn + 128 <= st['landed'] and k < 2:
                vprep(pn, S + (pn >> 3))
                e('s_nop 1')
                vmfma(pn + 128, first=(pn == 0))
                pn += 1; k += 1
            issue(nv); nv += 1
        assert pn == target, (pn, target)
        e('s_mov_b32 s29, 0')
        e('L_vloop:')
        for i in range(32):
            p2 = target + i
            vprep(p2, S + (p2 >> 3))
            issue(160 + i)
            vmfma(p2 + 128)
        shift4()
        e('s_add_u32 s29, s29, 1')
        e('s_cmp_lt_u32 s29, 3')
        e('s_cbranch_scc1 L_vloop')
        self.keep_time(66)
        e(f'v_lshlrev_b32 v{T2}, 4, v0')
        e('s_lshl_b32 s31, s3, 10')
        e(f'v_add_u32 v{T2}, s31, v{T2}')
        for i in range(LV):
            p2 = target + i
            vprep(p2, S + (p2 >> 3))
            if LV - 1 - i < D:
                e(f's_waitcnt vmcnt({LV - 1 - i})')
                e('s_nop 0')
            else:
                e('s_nop 1')
            vmfma(p2 + 128)
        e('s_nop 7')
        e(f'ds_write_b128 v{T2}, {rng(OA)} offset:{L_O}')
        e('s_waitcnt lgkmcnt(0)')
        self.keep_time(68)
        e('s_barrier')
        if self.stamps:
            e('s_cmp_lg_u32 s3, 0')
            e('s_cbranch_scc1 L_end')
            for k, sr in enumerate((58, 60, 62, 64, 66, 68)):
                self.flush_time(k, sr)
            self.flush_time(16, 70)
            self.flush_time(17, 72)
        e('s_endpgm')

    def ready_check(self, lab, srd, vaddr, vtmp, scnt):
        e = self.e
        e(f'v_lshlrev_b32 v{vaddr}, 2, v0')
        e(f's_mov_b32 s{scnt}, 0')
        e(f'{lab}:')
        e(f'buffer_load_dword v{vtmp}, v{vaddr}, s[{srd}:{srd+3}], 0 offen sc1')
        e('s_waitcnt vmcnt(0)')
        e(f'v_cmp_ne_u32 vcc, 0x01010101, v{vtmp}')
        e(f's_add_u32 s{scnt}, s{scnt}, 1')
        e(f's_cbranch_vccz {lab}_ok')
        e('s_sleep 32')
        e(f's_cmp_lt_u32 s{scnt}, {SPIN}')
        e(f's_cbranch_scc1 {lab}')
        e(f'{lab}_ok:')

    def maxu(self, dst, regs):
        e = self.e
        regs = list(regs)
        e(f'v_max3_u32 v{dst}, v{regs[0]}, v{regs[1]}, v{regs[2]}')
        regs = regs[3:]
        while len(regs) >= 2:
            e(f'v_max3_u32 v{dst}, v{dst}, v{regs[0]}, v{regs[1]}')
            regs = regs[2:]
        if regs:
            e(f'v_max_u32 v{dst}, v{dst}, v{regs[0]}')

    def helper(self):
        e = self.e
        rng = lambda r: f'v[{r}:{r+3}]'
        XA = 16
        WB = 96
        e('s_and_b32 s40, s2, 7')
        e('s_lshl_b32 s40, s40, 5')
        e('s_lshr_b32 s41, s2, 3')
        e('s_add_u32 s40, s40, s41')
        e('v_lshrrev_b32 v1, 1, v0')
        e('v_lshlrev_b32 v1, 13, v1')
        e('v_and_b32 v2, 1, v0')
        e('v_lshl_add_u32 v1, v2, 4, v1')
        e('s_lshl_b32 s41, s40, 5')
        e('v_add_u32 v1, s41, v1')
        e('v_and_b32 v2, 3, v0')
        e('v_mul_u32_u24 v2, 1152, v2')
        e('v_lshrrev_b32 v3, 4, v0')
        e('v_lshl_add_u32 v2, v3, 4, v2')
        e('s_waitcnt lgkmcnt(0)')
        e('s_load_dwordx2 s[32:33], s[18:19], 0')
        self.srd(20, 10, 576 * 4096 * 2)
        e('s_mov_b32 s42, 0')
        e(f's_mov_b32 m0, {L_WQ}')
        for i in range(18):
            if i:
                e(f's_mov_b32 m0, {L_WQ + 1024 * i}')
                e('s_add_u32 s42, s42, 0x40000')
            else:
                e('s_nop 0')
            e('buffer_load_dwordx4 v1, s[20:23], s42 offen nt lds')
        self.srd(24, 4, 4 * 576 * 2)
        for kk in range(18):
            e(f'buffer_load_dwordx4 {rng(XA + 4*kk)}, v2, s[24:27], 0 offen offset:{kk*64}')
        self.srd(28, 18, WSWIN)
        self.srd(36, 16, 256)
        for r in range(4):
            e(f'v_mov_b32 v{8+r}, -1')
        e('v_lshlrev_b32 v4, 4, v0')
        e('s_lshl_b32 s43, s2, 10')
        e(f's_add_u32 s44, s43, {ROFF}')
        e(f's_add_u32 s45, s43, {POFF}')
        e('buffer_store_dwordx4 v[8:11], v4, s[28:31], s45 offen sc1')
        e('s_mov_b32 exec_hi, 1')
        e('buffer_store_dwordx4 v[8:11], v4, s[28:31], s44 offen sc1')
        e('s_mov_b64 exec, 15')
        e(f'ds_write_b128 v4, v[8:11] offset:{L_ML}')
        e('s_mov_b64 exec, -1')
        e('v_lshrrev_b32 v3, 4, v0')
        e('v_lshlrev_b32 v3, 8, v3')
        e('v_and_b32 v5, 15, v0')
        e('v_lshl_add_u32 v3, v5, 3, v3')
        e('v_lshrrev_b32 v6, 4, v0')
        e('v_lshlrev_b32 v6, 15, v6')
        e('v_lshl_add_u32 v6, v5, 3, v6')
        e('s_lshl_b32 s41, s40, 7')
        e(f's_add_u32 s46, s41, {QOFF}')
        e('v_lshlrev_b32 v7, 5, v0')
        e('s_lshr_b32 s41, s2, 2')
        e('s_lshl_b32 s41, s41, 11')
        e(f's_add_u32 s47, s41, {QOFF}')
        e('s_waitcnt lgkmcnt(0)')
        e('s_add_u32 s32, s32, 0x7f4a7c15')
        e('s_addc_u32 s33, s33, 0x9e3779b9')
        e('s_lshl_b32 s34, s32, 16')
        e('s_mov_b32 s35, s33')
        self.keep_time(74)
        e('s_waitcnt vmcnt(20)')
        self.keep_time(60)
        for kk in range(18):
            e(f'ds_read_b64_tr_b16 v[{WB+4*kk}:{WB+4*kk+1}], v3 offset:{L_WQ + kk*1024}')
            e(f'ds_read_b64_tr_b16 v[{WB+4*kk+2}:{WB+4*kk+3}], v3 offset:{L_WQ + kk*1024 + 128}')
        e('s_waitcnt vmcnt(2)')
        self.keep_time(72)
        for kk in range(18):
            left = 2 * (17 - kk)
            if left <= 15 or kk == 0:
                e(f's_waitcnt lgkmcnt({min(left, 15)})')
            c = '0' if kk == 0 else 'v[12:15]'
            e(f'v_mfma_f32_16x16x32_bf16 v[12:15], {rng(XA + 4*kk)}, {rng(WB + 4*kk)}, {c}')
        e('v_mov_b32 v9, s35')
        e('s_nop 6')
        for b in range(1, 4):
            e(f'v_mov_b32_dpp v12, v{12+b} quad_perm:[0,1,2,3] row_mask:{1 << b:#x} bank_mask:0xf')
        e('v_cvt_pk_bf16_f32 v8, v12, v12')
        e('v_and_b32 v8, 0xffff, v8')
        e('v_or_b32 v8, s34, v8')
        e('buffer_store_dwordx2 v[8:9], v6, s[28:31], s46 offen sc1')
        self.keep_time(62)
        e('s_mov_b32 s48, 0')
        e('s_mov_b32 s49, 0x05040100')
        e('L_qpoll:')
        e('buffer_load_dwordx4 v[16:19], v7, s[28:31], s47 offen sc1')
        e('buffer_load_dwordx4 v[20:23], v7, s[28:31], s47 offen offset:16 sc1')
        e('s_add_u32 s48, s48, 1')
        e('s_waitcnt vmcnt(0)')
        e('v_xor_b32 v24, s34, v16')
        e('v_xor_b32 v25, s34, v18')
        e('v_xor_b32 v26, s34, v20')
        e('v_xor_b32 v27, s34, v22')
        e('v_or3_b32 v24, v24, v25, v26')
        e('v_or_b32 v24, v24, v27')
        e('v_lshrrev_b32 v24, 16, v24')
        e('v_xor_b32 v25, s35, v17')
        e('v_xor_b32 v26, s35, v19')
        e('v_or3_b32 v24, v24, v25, v26')
        e('v_xor_b32 v25, s35, v21')
        e('v_xor_b32 v26, s35, v23')
        e('v_or3_b32 v24, v24, v25, v26')
        e('v_cmp_ne_u32 vcc, 0, v24')
        e('s_nop 0')
        e('s_cbranch_vccz L_qok')
        e(f's_cmp_lt_u32 s48, {SPIN}')
        e('s_cbranch_scc1 L_qpoll')
        e('L_qok:')
        e('v_perm_b32 v24, v18, v16, s49')
        e('v_perm_b32 v25, v22, v20, s49')
        e('v_lshlrev_b32 v5, 3, v0')
        e(f'ds_write_b64 v5, v[24:25] offset:{L_Q}')
        e('s_waitcnt lgkmcnt(0)')
        self.keep_time(64)
        e('s_barrier')
        e('v_mov_b32 v8, 1')
        e('v_mov_b32 v9, s2')
        e('s_mov_b64 exec, 1')
        e('buffer_store_byte v8, v9, s[36:39], 0 offen sc1')
        e('s_mov_b64 exec, -1')
        e('v_mov_b32 v5, 0')
        e('s_mov_b32 s48, 0')
        e('L_mlwait:')
        e('s_sleep 16')
        for w in range(4):
            e(f'ds_read_b128 {rng(16 + 4*w)}, v5 offset:{L_ML + 16*w}')
        e('s_add_u32 s48, s48, 1')
        e('s_waitcnt lgkmcnt(0)')
        self.maxu(32, range(16, 32))
        e('v_cmp_eq_u32 vcc, -1, v32')
        e('s_nop 0')
        e('s_cbranch_vccz L_mlok')
        e(f's_cmp_lt_u32 s48, {SPIN}')
        e('s_cbranch_scc1 L_mlwait')
        e('L_mlok:')
        for h in range(2):
            m = [16 + 4*w + 2*h for w in range(4)]
            e(f'v_max3_f32 v{36+2*h}, v{m[0]}, v{m[1]}, v{m[2]}')
            e(f'v_max_f32 v{36+2*h}, v{36+2*h}, v{m[3]}')
            for w in range(4):
                e(f'v_sub_f32 v{40+w}, v{m[w]}, v{36+2*h}')
                e(f'v_exp_f32 v{40+w}, v{40+w}')
            e('s_nop 0')
            e(f'v_mul_f32 v{37+2*h}, v40, v{m[0]+1}')
            for w in range(1, 4):
                e(f'v_fmac_f32 v{37+2*h}, v{40+w}, v{m[w]+1}')
        for r in range(4):
            e(f'v_min_u32 v{36+r}, 0xfffffffe, v{36+r}')
        e('s_mov_b64 exec, 1')
        e('buffer_store_dwordx4 v[36:39], v5, s[28:31], s44 offen offset:512 sc1')
        e('s_mov_b64 exec, -1')
        self.ready_check('L_hrdy', 36, 8, 9, 48)
        e('s_and_b32 s41, s2, 0xfc')
        e('s_lshl_b32 s41, s41, 10')
        e(f's_add_u32 s41, s41, {ROFF + 512}')
        e('s_mov_b32 s48, 0')
        e('s_mov_b64 exec, 1')
        e('L_gml:')
        for s in range(4):
            e(f'buffer_load_dwordx4 {rng(48 + 4*s)}, v5, s[28:31], s41 offen offset:{1024*s} sc1')
        e('s_add_u32 s48, s48, 1')
        e('s_waitcnt vmcnt(0)')
        self.maxu(32, range(48, 64))
        e('v_cmp_eq_u32 vcc, -1, v32')
        e('s_nop 0')
        e('s_cbranch_vccz L_gmlok')
        e('s_sleep 16')
        e(f's_cmp_lt_u32 s48, {SPIN}')
        e('s_cbranch_scc1 L_gml')
        e('L_gmlok:')
        for h in range(2):
            m = [48 + 4*s + 2*h for s in range(4)]
            e(f'v_max3_f32 v36, v{m[0]}, v{m[1]}, v{m[2]}')
            e(f'v_max_f32 v36, v36, v{m[3]}')
            for s in range(4):
                e(f'v_sub_f32 v{40+s}, v{m[s]}, v36')
                e(f'v_exp_f32 v{40+s}, v{40+s}')
            e('s_nop 0')
            e(f'v_mul_f32 v37, v40, v{m[0]+1}')
            for s in range(1, 4):
                e(f'v_fmac_f32 v37, v{40+s}, v{m[s]+1}')
            e('v_rcp_f32 v37, v37')
            for w in range(4):
                e(f'v_sub_f32 v{40+w}, v{16 + 4*w + 2*h}, v36')
                e(f'v_exp_f32 v{40+w}, v{40+w}')
            e('s_nop 0')
            for w in range(4):
                e(f'v_mul_f32 v{40+w}, v{40+w}, v37')
            e('s_nop 0')
            for w in range(4):
                e(f'v_readfirstlane_b32 s{50 + 2*w + h}, v{40+w}')
        e('s_mov_b64 exec, -1')
        e('v_lshlrev_b32 v5, 3, v0')
        self.keep_time(66)
        e('s_barrier')
        self.keep_time(68)
        for w in range(4):
            e(f'ds_read_b128 {rng(16 + 4*w)}, v4 offset:{L_O + 1024*w}')
        for w in range(4):
            e(f's_waitcnt lgkmcnt({3-w})')
            for r in range(4):
                if w == 0:
                    e(f'v_mul_f32 v{32+r}, s{50 + (r & 1)}, v{16+r}')
                else:
                    e(f'v_fmac_f32 v{32+r}, s{50 + 2*w + (r & 1)}, v{16 + 4*w + r}')
        e('v_cvt_pk_bf16_f32 v36, v32, v34')
        e('v_cvt_pk_bf16_f32 v37, v33, v35')
        e('v_min_u32 v36, 0xfffffffe, v36')
        e('v_min_u32 v37, 0xfffffffe, v37')
        e('s_mov_b32 s48, 0x55555555')
        e('v_mov_b32_dpp v38, v36 quad_perm:[1,1,3,3] row_mask:0xf bank_mask:0xf')
        e('v_mov_b32_dpp v39, v37 quad_perm:[1,1,3,3] row_mask:0xf bank_mask:0xf')
        e('s_mov_b32 exec_lo, s48')
        e('s_mov_b32 exec_hi, s48')
        e('buffer_store_dwordx4 v[36:39], v5, s[28:31], s44 offen sc1')
        if self.stamps:
            self.keep_time(70)
            e('s_mov_b64 exec, -1')
            for k, sr in enumerate((60, 62, 64, 66, 68, 70)):
                self.flush_time(6 + k, sr)
            self.flush_time(18, 74)
            self.flush_time(19, 72)
        e('s_endpgm')

    def wave5(self):
        e = self.e
        rng = lambda r: f'v[{r}:{r+3}]'
        if self.pf:
            e('s_getpc_b64 s[50:51]')
            e('L_pc:')
            e(f's_sub_u32 s50, s50, L_pc-{NAME}')
            e('s_subb_u32 s51, s51, 0')
            e('v_lshlrev_b32 v1, 7, v0')
            e('global_load_dword v2, v1, s[50:51]')
            e('v_add_u32 v1, 0x2000, v1')
            e(f'v_cmp_gt_u32 vcc, L_codeend-{NAME}, v1')
            e('s_and_saveexec_b64 s[52:53], vcc')
            e('global_load_dword v3, v1, s[50:51]')
            e('s_mov_b64 exec, s[52:53]')
        e('s_cmp_ge_u32 s2, 180')
        e('s_cbranch_scc1 L_end')
        e('s_waitcnt lgkmcnt(0)')
        self.srd(28, 18, WSWIN)
        self.srd(36, 16, 256)
        e('s_cmp_ge_u32 s2, 144')
        e('s_cbranch_scc1 L_reduce')
        BW = 64
        AO = 32
        e('s_mul_i32 s40, s2, 57')
        e('s_lshr_b32 s40, s40, 9')
        e('s_mul_i32 s41, s40, 9')
        e('s_sub_u32 s41, s2, s41')
        self.srd(20, 12, 4096 * 576 * 2)
        e('v_lshrrev_b32 v1, 3, v0')
        e('v_mul_u32_u24 v1, 1152, v1')
        e('v_and_b32 v2, 7, v0')
        e('v_lshl_add_u32 v1, v2, 4, v1')
        e(f's_mul_i32 s42, s40, {256 * 1152}')
        e('s_lshl_b32 s43, s41, 7')
        e('s_add_u32 s42, s42, s43')
        e('v_bfe_u32 v4, v0, 3, 1')
        e('v_bfe_u32 v5, v0, 2, 1')
        e('v_lshl_add_u32 v6, v5, 1, v4')
        e('v_lshrrev_b32 v7, 4, v0')
        e('v_lshlrev_b32 v7, 4, v7')
        e('v_lshl_add_u32 v7, v4, 7, v7')
        e('v_add_u32 v2, v7, v6')
        e('v_xor_b32 v3, 1, v2')
        e('v_and_b32 v4, 3, v0')
        e('v_lshlrev_b32 v4, 3, v4')
        e('v_lshl_add_u32 v2, v2, 7, v4')
        e('v_lshl_add_u32 v3, v3, 7, v4')
        e('v_bfe_u32 v4, v0, 2, 2')
        e('v_lshlrev_b32 v4, 6, v4')
        e('v_and_b32 v5, 3, v0')
        e('v_add_u32 v4, v4, v5')
        e('v_lshlrev_b32 v4, 10, v4')
        e('v_lshrrev_b32 v5, 4, v0')
        e('v_lshl_add_u32 v4, v5, 4, v4')
        e('s_lshl_b32 s44, s40, 12')
        e(f's_add_u32 s44, s44, {ROFF}')
        e('s_lshl_b32 s45, s2, 10')
        e(f's_add_u32 s45, s45, {POFF}')
        e('v_lshlrev_b32 v5, 4, v0')
        e('s_barrier')
        e(f's_mov_b32 s46, {L_WO}')
        e('L_wo:')
        e('s_mov_b32 m0, s46')
        e('s_add_u32 s46, s46, 1024')
        e('buffer_load_dwordx4 v1, s[20:23], s42 offen nt lds')
        e('s_add_u32 s42, s42, 9216')
        e('s_waitcnt vmcnt(1)')
        e(f's_cmp_lt_u32 s46, {L_WO + 32768}')
        e('s_cbranch_scc1 L_wo')
        e('s_waitcnt vmcnt(0)')
        for t in range(4):
            for kk in range(8):
                gp = kk >> 1
                for hf in range(2):
                    row = 64 * (kk & 1) + 8 * hf + 4 * (gp & 1)
                    r = BW + (t * 8 + kk) * 4 + 2 * hf
                    e(f'ds_read_b64_tr_b16 v[{r}:{r+1}], v{2 + (gp >> 1)} offset:{L_WO + row * 128 + t * 32}')
            e('s_waitcnt lgkmcnt(0)')
        self.ready_check('L_wrdy', 36, 8, 9, 48)
        e('s_mov_b32 s48, 0')
        e('s_barrier')
        self.keep_time(60)
        e('L_opoll:')
        for kk in range(8):
            e(f'buffer_load_dwordx4 {rng(AO + 4*kk)}, v4, s[28:31], s44 offen offset:{64*kk} sc1')
        e('s_add_u32 s48, s48, 1')
        e('s_waitcnt vmcnt(0)')
        self.maxu(8, range(AO, AO + 32))
        e('v_cmp_eq_u32 vcc, -1, v8')
        e('s_nop 0')
        e('s_cbranch_vccz L_ook')
        e(f's_cmp_lt_u32 s48, {SPIN}')
        e('s_cbranch_scc1 L_opoll')
        e('L_ook:')
        self.keep_time(62)
        for t in range(4):
            for kk in range(8):
                c = '0' if kk == 0 else rng(16 + 4*t)
                e(f'v_mfma_f32_16x16x32_bf16 {rng(16 + 4*t)}, {rng(AO + 4*kk)}, {rng(BW + (t*8 + kk)*4)}, {c}')
        for t in range(4):
            d = 16 + 4 * t
            if t == 3:
                e('s_nop 0')
            e(f'v_add_f32 v{d}, v{d}, v{d+1}')
            e(f'v_add_f32 v{d+2}, v{d+2}, v{d+3}')
            e(f'v_add_f32 v{12+t}, v{d}, v{d+2}')
        for t in range(4):
            e(f'v_min_u32 v{12+t}, 0xfffffffe, v{12+t}')
        e('buffer_store_dwordx4 v[12:15], v5, s[28:31], s45 offen sc1')
        if self.stamps:
            self.keep_time(64)
            for k, sr in enumerate((60, 62, 64)):
                self.flush_time(12 + k, sr)
        e('s_endpgm')

        e('L_reduce:')
        e('s_load_dwordx2 s[32:33], s[18:19], 0')
        e('s_sub_u32 s40, s2, 144')
        e('s_lshr_b32 s41, s40, 2')
        e('s_and_b32 s40, s40, 3')
        self.srd(20, 14, 4 * 576 * 2)
        e('v_lshrrev_b32 v1, 4, v0')
        e('v_mul_u32_u24 v1, 9216, v1')
        e('v_and_b32 v2, 15, v0')
        e('v_lshl_add_u32 v1, v2, 4, v1')
        e('s_lshl_b32 s42, s41, 10')
        e('s_lshl_b32 s43, s40, 8')
        e('s_add_u32 s42, s42, s43')
        e(f's_add_u32 s42, s42, {POFF}')
        for i in range(1, 4):
            e(f's_add_u32 s{42+i}, s42, {36864*i}')
        e('s_mul_i32 s46, s40, 1152')
        e('s_lshl_b32 s47, s41, 7')
        e('s_add_u32 s46, s46, s47')
        e('v_lshlrev_b32 v2, 1, v0')
        e('s_waitcnt lgkmcnt(0)')
        e('s_add_u32 s32, s32, 0x7f4a7c15')
        e('s_addc_u32 s33, s33, 0x9e3779b9')
        if self.dbgt:
            e('s_memrealtime s[70:71]')
        e('s_barrier')
        if self.dbgt:
            e('s_memrealtime s[72:73]')
        e('s_sleep 127')
        self.ready_check('L_rrdy', 36, 8, 9, 48)
        e('s_mov_b32 s48, 0')
        e('s_barrier')
        if self.dbgt:
            e('s_memrealtime s[74:75]')
        self.keep_time(60)
        e('L_ppoll:')
        for i in range(4):
            e(f'buffer_load_dwordx4 {rng(16 + 4*i)}, v1, s[28:31], s{42+i} offen sc1')
        e('s_add_u32 s48, s48, 1')
        e('s_waitcnt vmcnt(0)')
        self.maxu(8, range(16, 32))
        e('v_cmp_eq_u32 vcc, -1, v8')
        e('s_nop 0')
        e('s_cbranch_vccz L_pok')
        e(f's_cmp_lt_u32 s48, {SPIN}')
        e('s_cbranch_scc1 L_ppoll')
        e('L_pok:')
        self.keep_time(62)
        for t in range(4):
            e(f'v_add_f32 v{16+t}, v{16+t}, v{20+t}')
            e(f'v_add_f32 v{24+t}, v{24+t}, v{28+t}')
        for t in range(4):
            e(f'v_add_f32 v{16+t}, v{16+t}, v{24+t}')
        e('s_nop 0')
        e('v_permlane32_swap_b32 v16, v18')
        e('v_permlane32_swap_b32 v17, v19')
        e('v_add_f32 v16, v16, v18')
        e('v_add_f32 v17, v17, v19')
        e('s_nop 1')
        e('v_permlane16_swap_b32 v16, v17')
        e('v_add_f32 v16, v16, v17')
        e('v_cvt_pk_bf16_f32 v16, v16, v16')
        e('buffer_store_short v16, v2, s[20:23], s46 offen')
        e('s_cmp_lg_u32 s2, 144')
        e('s_cbranch_scc1 L_rdone')
        e('v_mov_b32 v4, s32')
        e('v_mov_b32 v5, s33')
        e('v_mov_b32 v6, 0')
        e('s_mov_b64 exec, 1')
        e('buffer_store_dwordx2 v[4:5], v6, s[28:31], 0 offen sc1')
        if self.dbgt:
            e('s_memrealtime s[76:77]')
            e('s_waitcnt lgkmcnt(0)')
            for i, r in enumerate((70, 72, 74, 76)):
                e(f's_sub_u32 s{r}, s{r}, s68')
                e(f'v_mov_b32 v{8+i}, s{r}')
            e('buffer_store_dwordx4 v[8:11], v6, s[36:39], 0 offen sc1')
        e('s_mov_b64 exec, -1')
        e('L_rdone:')
        if self.stamps:
            self.keep_time(64)
            for k, sr in enumerate((60, 62, 64)):
                self.flush_time(12 + k, sr)
        e('s_endpgm')

    def build(self):
        e = self.e
        e('.amdgcn_target "amdgcn-amd-amdhsa--gfx950"')
        e('.text')
        e(f'.globl {NAME}')
        e('.p2align 8')
        e(f'.type {NAME},@function')
        e(f'{NAME}:')
        e('s_cmp_ge_u32 s2, 256')
        e('s_cbranch_scc1 L_end')
        self.keep_time(58)
        if self.dbgt:
            e('s_memrealtime s[68:69]')
        e('s_load_dwordx16 s[4:19], s[0:1], 0')
        e('v_lshrrev_b32 v1, 6, v0')
        e('v_and_b32 v0, 63, v0')
        e('v_readfirstlane_b32 s3, v1')
        e('s_cmp_eq_u32 s3, 4')
        e('s_cbranch_scc1 L_helper')
        e('s_cmp_eq_u32 s3, 5')
        e('s_cbranch_scc1 L_wave5')
        self.stream()
        e('L_helper:')
        self.helper()
        e('L_wave5:')
        self.wave5()
        e('L_end:')
        e('s_endpgm')
        e('L_codeend:')
        nv = 256 if self.stamps else 192
        e('.section .rodata,"a"')
        e('.p2align 6')
        e(f'.amdhsa_kernel {NAME}')
        e(f'  .amdhsa_next_free_vgpr {nv}')
        e('  .amdhsa_next_free_sgpr 96')
        e(f'  .amdhsa_accum_offset {nv}')
        e('  .amdhsa_group_segment_fixed_size 0')
        e('  .amdhsa_kernarg_size 64')
        e('  .amdhsa_user_sgpr_count 2')
        e('  .amdhsa_user_sgpr_kernarg_segment_ptr 1')
        e('  .amdhsa_system_sgpr_workgroup_id_x 1')
        e('.end_amdhsa_kernel')
        errs = check([l.lstrip() if l.lstrip().startswith('.') else l for l in self.o])
        for x in errs:
            print('HAZARD', x, file=sys.stderr)
        txt = HEADER + f'; @launch grid=(256,1,1) block=(384,1,1) lds={LDS_BYTES}\n' + '\n'.join(self.o) + '\n'
        return txt, errs


if __name__ == '__main__':
    kw = {}
    out = sys.argv[1]
    for a in sys.argv[2:]:
        k, v = a.split('=')
        kw[k] = int(v)
    txt, errs = G(**kw).build()
    open(out, 'w').write(txt)
    sys.exit(1 if errs else 0)
```

```python
import sys, struct
from hazard import check

NAME = "standalone__gqa_block_cached__decode_kernel"

HEADER = """; Kernarg layout for this problem (64 bytes, ptrs only, base s[0:1]):
"""

QOFF = 0x1000
ROFF = 0x40000
POFF = 0x80000
WSWIN = 0x100000
STAMP0 = 0x10000000
STAMP1 = 0x10100000

L_WQ = 0x0000
L_WO = 0x5000
L_Q = 0xD000
L_ML = 0xD200
L_O = 0xD400
LDS_BYTES = 0xE400

def f2u(x):
    return struct.unpack('<I', struct.pack('<f', x))[0]

SCALE = f2u(128 ** -0.5 * 1.4426950408889634)
SPIN = 1 << 19


class G:
    def __init__(self, D=5, LV=16, stamps=False, D0=None, dbgt=0, kf=1, vf=1, pf=0):
        self.o = []
        self.D = D
        self.D0 = D0 or D
        self.LV = LV
        self.stamps = stamps
        self.dbgt = dbgt
        FL = ['', ' nt', ' sc1', ' sc1 nt', ' sc0 sc1', ' sc0 sc1 nt', ' sc0', ' sc0 nt']
        self.kf, self.vf = FL[kf], FL[vf]
        self.pf = pf

    def e(self, s):
        self.o.append(s if s.endswith(':') or s.startswith('.') or s.startswith(';') else '    ' + s)

    def stamp(self, idx, sbase=80):
        if not self.stamps:
            return
        e = self.e
        e('s_memrealtime s[80:81]')
        e(f's_add_u32 s82, s18, {STAMP1 + idx * 8}')
        e('s_addc_u32 s83, s19, 0')
        e('s_lshl_b32 s84, s2, 8')
        e('s_waitcnt lgkmcnt(0)')
        e('v_mov_b32 v250, s84')
        e('v_mov_b32 v252, s80')
        e('v_mov_b32 v253, s81')
        e('s_mov_b64 s[86:87], exec')
        e('s_mov_b64 exec, 1')
        e('global_store_dwordx2 v250, v[252:253], s[82:83]')
        e('s_mov_b64 exec, s[86:87]')

    def keep_time(self, sreg):
        if self.stamps:
            self.e(f's_memrealtime s[{sreg}:{sreg+1}]')

    def flush_time(self, idx, sreg):
        if not self.stamps:
            return
        e = self.e
        e(f's_add_u32 s82, s18, {STAMP1 + idx * 8}')
        e('s_addc_u32 s83, s19, 0')
        e('s_lshl_b32 s84, s2, 8')
        e('s_waitcnt lgkmcnt(0)')
        e('v_mov_b32 v250, s84')
        e(f'v_mov_b32 v252, s{sreg}')
        e(f'v_mov_b32 v253, s{sreg+1}')
        e('s_mov_b64 s[86:87], exec')
        e('s_mov_b64 exec, 1')
        e('global_store_dwordx2 v250, v[252:253], s[82:83]')
        e('s_mov_b64 exec, s[86:87]')

    def srd(self, d, base, size, add=None):
        e = self.e
        if add is None:
            e(f's_mov_b32 s{d}, s{base}')
            e(f's_mov_b32 s{d+1}, s{base+1}')
        else:
            e(f's_add_u32 s{d}, s{base}, {add}')
            e(f's_addc_u32 s{d+1}, s{base+1}, 0')
        e(f's_mov_b32 s{d+2}, {size:#x}')
        e(f's_mov_b32 s{d+3}, 0x20000')

    def stream(self):
        e, D, LV = self.e, self.D, self.LV
        vK, vV = 1, 2
        QB = [4, 8]
        DT = [12, 16]
        T, X = 20, 21
        A = 24
        MK = 28
        OA = 32
        M, L, T2, T3 = 36, 37, 38, 39
        S = 40
        RING = 56
        slot = lambda n: RING + 4 * (n % 32)
        rng = lambda r: f'v[{r}:{r+3}]'

        st = {'issued': -1, 'landed': -1}

        def need_landed(x):
            if x > st['landed']:
                e(f's_waitcnt vmcnt({st["issued"] - x})')
                st['landed'] = x

        def issue(n, gate=True, d=None):
            d = d or D
            if gate:
                e(f's_waitcnt vmcnt({d-1})')
                st['landed'] = max(st['landed'], n - d)
            st['issued'] = n
            srd, vo = ('s[20:23]', vK) if n < 128 else ('s[24:27]', vV)
            e(f'buffer_load_dwordx4 {rng(slot(n))}, v{vo}, {srd}, s28 offen offset:{(n % 4) * 1024}{self.kf if n < 128 else self.vf}')
            if n % 4 == 3:
                e('s_add_u32 s28, s28, 0x4000')

        def kadds(pair, sreg):
            d = DT[pair & 1]
            i = pair & 3
            e(f'v_add_f32_dpp v{T}, v{d + (i+1) % 4}, v{d + i} row_ror:12 row_mask:0xf bank_mask:0xf')
            e(f'v_add_f32_dpp v{T}, v{d + (i+2) % 4}, v{T} row_ror:8 row_mask:0xf bank_mask:0xf')
            e(f'v_add_f32_dpp v{sreg}, v{d + (i+3) % 4}, v{T} row_ror:4 row_mask:0xf bank_mask:{1 << i:#x}')

        def kmfma(n):
            d = DT[(n >> 1) & 1]
            c = '0' if n % 2 == 0 else rng(d)
            e(f'v_mfma_f32_16x16x32_bf16 {rng(d)}, {rng(slot(n))}, {rng(QB[n & 1])}, {c}')

        def shift4():
            for i in range(12):
                e(f'v_mov_b32 v{S+i}, v{S+i+4}')

        def vprep(pn, yreg):
            i = pn & 7
            e(f'v_mov_b32_dpp v{X}, v{yreg} row_newbcast:{2*i} row_mask:0xf bank_mask:0x3')
            e(f'v_mov_b32_dpp v{X}, v{yreg} row_newbcast:{2*i+1} row_mask:0xf bank_mask:0xc')
            for r in range(4):
                e(f'v_and_b32 v{A+r}, v{X}, v{MK+r}')

        def vmfma(pn, first=False):
            c = '0' if first else rng(OA)
            e(f'v_mfma_f32_16x16x32_bf16 {rng(OA)}, {rng(A)}, {rng(slot(pn))}, {c}')

        e('v_lshrrev_b32 v3, 4, v0')
        e('v_bfe_u32 v4, v0, 2, 2')
        e('v_and_b32 v5, 3, v0')
        e('v_lshlrev_b32 v3, 6, v3')
        e('v_lshlrev_b32 v4, 8, v4')
        e('v_lshlrev_b32 v5, 4, v5')
        e(f'v_add3_u32 v{vK}, v3, v4, v5')
        e(f'v_lshlrev_b32 v{vV}, 4, v0')
        e('s_lshl_b32 s31, s2, 19')
        e('s_lshl_b32 s28, s3, 12')
        e('s_waitcnt lgkmcnt(0)')
        self.keep_time(70)
        self.srd(20, 6, 0x80000, add='s31')
        for n in range(self.D0):
            issue(n, gate=False)
        self.srd(24, 8, 0x80000, add='s31')
        e(f's_mov_b32 s30, {SCALE:#x}')
        e('v_lshrrev_b32 v3, 3, v0')
        e('v_xor_b32 v3, v3, v0')
        e('v_and_b32 v3, 1, v3')
        e('v_lshlrev_b32 v3, 4, v3')
        e('v_mov_b32 v4, 0xffff')
        e('v_lshlrev_b32 v3, v3, v4')
        e('v_bfe_u32 v4, v0, 1, 2')
        for r in range(4):
            e(f'v_cmp_eq_u32 vcc, {r}, v4')
            e('s_nop 1')
            e(f'v_cndmask_b32 v{MK+r}, 0, v3, vcc')
        e('v_and_b32 v3, 1, v0')
        e('v_lshlrev_b32 v3, 8, v3')
        e('v_lshrrev_b32 v4, 2, v0')
        e(f'v_lshl_add_u32 v{T2}, v4, 4, v3')
        e('v_and_b32 v3, 2, v0')
        e('v_cmp_ne_u32 vcc, 0, v3')
        for n in range(self.D0, 32):
            issue(n, d=self.D0)
            if n == self.D0:
                self.keep_time(72)
        self.keep_time(60)
        e('s_barrier')
        e(f'ds_read_b128 {rng(DT[0])}, v{T2} offset:{L_Q}')
        e('s_mov_b32 s29, 0')
        e('s_waitcnt lgkmcnt(0)')
        self.keep_time(62)
        for r in range(4):
            e(f'v_cndmask_b32 v{QB[1]+r}, 0, v{DT[0]+r}, vcc')
            e(f'v_cndmask_b32 v{QB[0]+r}, v{DT[0]+r}, 0, vcc')
        e('s_nop 1')
        e('L_kloop:')
        for p in range(16):
            n = 2 * p
            kmfma(n)
            issue(n + 32)
            kmfma(n + 1)
            kadds((p - 1) % 16, S + 12 + (((p - 1) % 16) >> 2))
            if p == 0:
                shift4()
            issue(n + 33)
        e('s_add_u32 s29, s29, 1')
        e('s_cmp_lt_u32 s29, 3')
        e('s_cbranch_scc1 L_kloop')
        e('s_lshl_b32 s28, s3, 12')
        nv = 128
        st['issued'], st['landed'] = 127, 127 - D
        for p in range(16):
            n = 2 * p
            need_landed(96 + n + 1)
            kmfma(n)
            kmfma(n + 1)
            if p % 2 == 1:
                e('s_nop 2')
            kadds((p - 1) % 16, S + 12 + (((p - 1) % 16) >> 2))
            if p == 0:
                shift4()
            if p % 2 == 1:
                issue(nv); nv += 1
            else:
                e('s_nop 1')
        e('s_nop 3')
        kadds(15, S + 15)
        issue(nv); nv += 1
        e(f'v_max3_f32 v{M}, v{S}, v{S+1}, v{S+2}')
        e(f'v_max3_f32 v{T}, v{S+3}, v{S+4}, v{S+5}')
        for i in range(6, 14, 4):
            e(f'v_max3_f32 v{M}, v{M}, v{S+i}, v{S+i+1}')
            e(f'v_max3_f32 v{T}, v{T}, v{S+i+2}, v{S+i+3}')
        e(f'v_max3_f32 v{M}, v{M}, v{S+14}, v{S+15}')
        e(f'v_max_f32 v{M}, v{M}, v{T}')

        def allreduce(reg, op):
            for k in (2, 4, 8):
                e('s_nop 1')
                e(f'{op}_dpp v{reg}, v{reg}, v{reg} row_ror:{k} row_mask:0xf bank_mask:0xf')
            for sw in ('v_permlane16_swap_b32', 'v_permlane32_swap_b32'):
                e(f'v_mov_b32 v{T}, v{reg}')
                e('s_nop 1')
                e(f'{sw} v{reg}, v{T}')
                e(f'{op} v{reg}, v{reg}, v{T}')
        allreduce(M, 'v_max_f32')
        e(f'v_mul_f32 v{M}, s30, v{M}')
        issue(nv); nv += 1
        for i in range(16):
            e(f'v_fma_f32 v{S+i}, v{S+i}, s30, -v{M}')
            e(f'v_exp_f32 v{S+i}, v{S+i}')
            if i % 8 == 7:
                issue(nv); nv += 1
        e(f'v_add_f32 v{L}, v{S}, v{S+1}')
        for i in range(2, 16):
            e(f'v_add_f32 v{L}, v{L}, v{S+i}')
        issue(nv); nv += 1
        for i in range(16):
            t = T2 if i & 1 else T3
            e(f'v_mov_b32_dpp v{t}, v{S+i} quad_perm:[1,0,3,2] row_mask:0xf bank_mask:0xf')
            e(f'v_cvt_pk_bf16_f32 v{S+i}, v{S+i}, v{t}')
            if i % 8 == 7:
                issue(nv); nv += 1
        allreduce(L, 'v_add_f32')
        e(f'v_lshlrev_b32 v{T2}, 3, v0')
        e('s_lshl_b32 s31, s3, 4')
        e(f'v_add_u32 v{T2}, s31, v{T2}')
        e('s_mov_b64 exec, 3')
        e(f'ds_write_b64 v{T2}, v[{M}:{L}] offset:{L_ML}')
        e('s_mov_b64 exec, -1')
        self.keep_time(64)
        pn = 0
        target = 32 - LV
        while nv < 160:
            k = 0
            while pn < target and pn + 128 <= st['landed'] and k < 2:
                vprep(pn, S + (pn >> 3))
                e('s_nop 1')
                vmfma(pn + 128, first=(pn == 0))
                pn += 1; k += 1
            issue(nv); nv += 1
        assert pn == target, (pn, target)
        e('s_mov_b32 s29, 0')
        e('L_vloop:')
        for i in range(32):
            p2 = target + i
            vprep(p2, S + (p2 >> 3))
            issue(160 + i)
            vmfma(p2 + 128)
        shift4()
        e('s_add_u32 s29, s29, 1')
        e('s_cmp_lt_u32 s29, 3')
        e('s_cbranch_scc1 L_vloop')
        self.keep_time(66)
        e(f'v_lshlrev_b32 v{T2}, 4, v0')
        e('s_lshl_b32 s31, s3, 10')
        e(f'v_add_u32 v{T2}, s31, v{T2}')
        for i in range(LV):
            p2 = target + i
            vprep(p2, S + (p2 >> 3))
            if LV - 1 - i < D:
                e(f's_waitcnt vmcnt({LV - 1 - i})')
                e('s_nop 0')
            else:
                e('s_nop 1')
            vmfma(p2 + 128)
        e('s_nop 7')
        e(f'ds_write_b128 v{T2}, {rng(OA)} offset:{L_O}')
        e('s_waitcnt lgkmcnt(0)')
        self.keep_time(68)
        e('s_barrier')
        if self.stamps:
            e('s_cmp_lg_u32 s3, 0')
            e('s_cbranch_scc1 L_end')
            for k, sr in enumerate((58, 60, 62, 64, 66, 68)):
                self.flush_time(k, sr)
            self.flush_time(16, 70)
            self.flush_time(17, 72)
        e('s_endpgm')

    def ready_check(self, lab, srd, vaddr, vtmp, scnt):
        e = self.e
        e(f'v_lshlrev_b32 v{vaddr}, 2, v0')
        e(f's_mov_b32 s{scnt}, 0')
        e(f'{lab}:')
        e(f'buffer_load_dword v{vtmp}, v{vaddr}, s[{srd}:{srd+3}], 0 offen sc1')
        e('s_waitcnt vmcnt(0)')
        e(f'v_cmp_ne_u32 vcc, 0x01010101, v{vtmp}')
        e(f's_add_u32 s{scnt}, s{scnt}, 1')
        e(f's_cbranch_vccz {lab}_ok')
        e('s_sleep 32')
        e(f's_cmp_lt_u32 s{scnt}, {SPIN}')
        e(f's_cbranch_scc1 {lab}')
        e(f'{lab}_ok:')

    def maxu(self, dst, regs):
        e = self.e
        regs = list(regs)
        e(f'v_max3_u32 v{dst}, v{regs[0]}, v{regs[1]}, v{regs[2]}')
        regs = regs[3:]
        while len(regs) >= 2:
            e(f'v_max3_u32 v{dst}, v{dst}, v{regs[0]}, v{regs[1]}')
            regs = regs[2:]
        if regs:
            e(f'v_max_u32 v{dst}, v{dst}, v{regs[0]}')

    def helper(self):
        e = self.e
        rng = lambda r: f'v[{r}:{r+3}]'
        XA = 16
        WB = 96
        e('s_and_b32 s40, s2, 7')
        e('s_lshl_b32 s40, s40, 5')
        e('s_lshr_b32 s41, s2, 3')
        e('s_add_u32 s40, s40, s41')
        e('v_lshrrev_b32 v1, 1, v0')
        e('v_lshlrev_b32 v1, 13, v1')
        e('v_and_b32 v2, 1, v0')
        e('v_lshl_add_u32 v1, v2, 4, v1')
        e('s_lshl_b32 s41, s40, 5')
        e('v_add_u32 v1, s41, v1')
        e('v_and_b32 v2, 3, v0')
        e('v_mul_u32_u24 v2, 1152, v2')
        e('v_lshrrev_b32 v3, 4, v0')
        e('v_lshl_add_u32 v2, v3, 4, v2')
        e('s_waitcnt lgkmcnt(0)')
        e('s_load_dwordx2 s[32:33], s[18:19], 0')
        self.srd(20, 10, 576 * 4096 * 2)
        e('s_mov_b32 s42, 0')
        e(f's_mov_b32 m0, {L_WQ}')
        for i in range(18):
            if i:
                e(f's_mov_b32 m0, {L_WQ + 1024 * i}')
                e('s_add_u32 s42, s42, 0x40000')
            else:
                e('s_nop 0')
            e('buffer_load_dwordx4 v1, s[20:23], s42 offen nt lds')
        self.srd(24, 4, 4 * 576 * 2)
        for kk in range(18):
            e(f'buffer_load_dwordx4 {rng(XA + 4*kk)}, v2, s[24:27], 0 offen offset:{kk*64}')
        self.srd(28, 18, WSWIN)
        self.srd(36, 16, 256)
        for r in range(4):
            e(f'v_mov_b32 v{8+r}, -1')
        e('v_lshlrev_b32 v4, 4, v0')
        e('s_lshl_b32 s43, s2, 10')
        e(f's_add_u32 s44, s43, {ROFF}')
        e(f's_add_u32 s45, s43, {POFF}')
        e('buffer_store_dwordx4 v[8:11], v4, s[28:31], s45 offen sc1')
        e('s_mov_b32 exec_hi, 1')
        e('buffer_store_dwordx4 v[8:11], v4, s[28:31], s44 offen sc1')
        e('s_mov_b64 exec, 15')
        e(f'ds_write_b128 v4, v[8:11] offset:{L_ML}')
        e('s_mov_b64 exec, -1')
        e('v_lshrrev_b32 v3, 4, v0')
        e('v_lshlrev_b32 v3, 8, v3')
        e('v_and_b32 v5, 15, v0')
        e('v_lshl_add_u32 v3, v5, 3, v3')
        e('v_lshrrev_b32 v6, 4, v0')
        e('v_lshlrev_b32 v6, 15, v6')
        e('v_lshl_add_u32 v6, v5, 3, v6')
        e('s_lshl_b32 s41, s40, 7')
        e(f's_add_u32 s46, s41, {QOFF}')
        e('v_lshlrev_b32 v7, 5, v0')
        e('s_lshr_b32 s41, s2, 2')
        e('s_lshl_b32 s41, s41, 11')
        e(f's_add_u32 s47, s41, {QOFF}')
        e('s_waitcnt lgkmcnt(0)')
        e('s_add_u32 s32, s32, 0x7f4a7c15')
        e('s_addc_u32 s33, s33, 0x9e3779b9')
        e('s_lshl_b32 s34, s32, 16')
        e('s_mov_b32 s35, s33')
        self.keep_time(74)
        e('s_waitcnt vmcnt(20)')
        self.keep_time(60)
        for kk in range(18):
            e(f'ds_read_b64_tr_b16 v[{WB+4*kk}:{WB+4*kk+1}], v3 offset:{L_WQ + kk*1024}')
            e(f'ds_read_b64_tr_b16 v[{WB+4*kk+2}:{WB+4*kk+3}], v3 offset:{L_WQ + kk*1024 + 128}')
        e('s_waitcnt vmcnt(2)')
        self.keep_time(72)
        for kk in range(18):
            left = 2 * (17 - kk)
            if left <= 15 or kk == 0:
                e(f's_waitcnt lgkmcnt({min(left, 15)})')
            c = '0' if kk == 0 else 'v[12:15]'
            e(f'v_mfma_f32_16x16x32_bf16 v[12:15], {rng(XA + 4*kk)}, {rng(WB + 4*kk)}, {c}')
        e('v_mov_b32 v9, s35')
        e('s_nop 6')
        for b in range(1, 4):
            e(f'v_mov_b32_dpp v12, v{12+b} quad_perm:[0,1,2,3] row_mask:{1 << b:#x} bank_mask:0xf')
        e('v_cvt_pk_bf16_f32 v8, v12, v12')
        e('v_and_b32 v8, 0xffff, v8')
        e('v_or_b32 v8, s34, v8')
        e('buffer_store_dwordx2 v[8:9], v6, s[28:31], s46 offen sc1')
        self.keep_time(62)
        e('s_mov_b32 s48, 0')
        e('s_mov_b32 s49, 0x05040100')
        e('L_qpoll:')
        e('buffer_load_dwordx4 v[16:19], v7, s[28:31], s47 offen sc1')
        e('buffer_load_dwordx4 v[20:23], v7, s[28:31], s47 offen offset:16 sc1')
        e('s_add_u32 s48, s48, 1')
        e('s_waitcnt vmcnt(0)')
        e('v_xor_b32 v24, s34, v16')
        e('v_xor_b32 v25, s34, v18')
        e('v_xor_b32 v26, s34, v20')
        e('v_xor_b32 v27, s34, v22')
        e('v_or3_b32 v24, v24, v25, v26')
        e('v_or_b32 v24, v24, v27')
        e('v_lshrrev_b32 v24, 16, v24')
        e('v_xor_b32 v25, s35, v17')
        e('v_xor_b32 v26, s35, v19')
        e('v_or3_b32 v24, v24, v25, v26')
        e('v_xor_b32 v25, s35, v21')
        e('v_xor_b32 v26, s35, v23')
        e('v_or3_b32 v24, v24, v25, v26')
        e('v_cmp_ne_u32 vcc, 0, v24')
        e('s_nop 0')
        e('s_cbranch_vccz L_qok')
        e(f's_cmp_lt_u32 s48, {SPIN}')
        e('s_cbranch_scc1 L_qpoll')
        e('L_qok:')
        e('v_perm_b32 v24, v18, v16, s49')
        e('v_perm_b32 v25, v22, v20, s49')
        e('v_lshlrev_b32 v5, 3, v0')
        e(f'ds_write_b64 v5, v[24:25] offset:{L_Q}')
        e('s_waitcnt lgkmcnt(0)')
        self.keep_time(64)
        e('s_barrier')
        e('v_mov_b32 v8, 1')
        e('v_mov_b32 v9, s2')
        e('s_mov_b64 exec, 1')
        e('buffer_store_byte v8, v9, s[36:39], 0 offen sc1')
        e('s_mov_b64 exec, -1')
        e('v_mov_b32 v5, 0')
        e('s_mov_b32 s48, 0')
        e('L_mlwait:')
        e('s_sleep 16')
        for w in range(4):
            e(f'ds_read_b128 {rng(16 + 4*w)}, v5 offset:{L_ML + 16*w}')
        e('s_add_u32 s48, s48, 1')
        e('s_waitcnt lgkmcnt(0)')
        self.maxu(32, range(16, 32))
        e('v_cmp_eq_u32 vcc, -1, v32')
        e('s_nop 0')
        e('s_cbranch_vccz L_mlok')
        e(f's_cmp_lt_u32 s48, {SPIN}')
        e('s_cbranch_scc1 L_mlwait')
        e('L_mlok:')
        for h in range(2):
            m = [16 + 4*w + 2*h for w in range(4)]
            e(f'v_max3_f32 v{36+2*h}, v{m[0]}, v{m[1]}, v{m[2]}')
            e(f'v_max_f32 v{36+2*h}, v{36+2*h}, v{m[3]}')
            for w in range(4):
                e(f'v_sub_f32 v{40+w}, v{m[w]}, v{36+2*h}')
                e(f'v_exp_f32 v{40+w}, v{40+w}')
            e('s_nop 0')
            e(f'v_mul_f32 v{37+2*h}, v40, v{m[0]+1}')
            for w in range(1, 4):
                e(f'v_fmac_f32 v{37+2*h}, v{40+w}, v{m[w]+1}')
        for r in range(4):
            e(f'v_min_u32 v{36+r}, 0xfffffffe, v{36+r}')
        e('s_mov_b64 exec, 1')
        e('buffer_store_dwordx4 v[36:39], v5, s[28:31], s44 offen offset:512 sc1')
        e('s_mov_b64 exec, -1')
        self.ready_check('L_hrdy', 36, 8, 9, 48)
        e('s_and_b32 s41, s2, 0xfc')
        e('s_lshl_b32 s41, s41, 10')
        e(f's_add_u32 s41, s41, {ROFF + 512}')
        e('s_mov_b32 s48, 0')
        e('s_mov_b64 exec, 1')
        e('L_gml:')
        for s in range(4):
            e(f'buffer_load_dwordx4 {rng(48 + 4*s)}, v5, s[28:31], s41 offen offset:{1024*s} sc1')
        e('s_add_u32 s48, s48, 1')
        e('s_waitcnt vmcnt(0)')
        self.maxu(32, range(48, 64))
        e('v_cmp_eq_u32 vcc, -1, v32')
        e('s_nop 0')
        e('s_cbranch_vccz L_gmlok')
        e('s_sleep 16')
        e(f's_cmp_lt_u32 s48, {SPIN}')
        e('s_cbranch_scc1 L_gml')
        e('L_gmlok:')
        for h in range(2):
            m = [48 + 4*s + 2*h for s in range(4)]
            e(f'v_max3_f32 v36, v{m[0]}, v{m[1]}, v{m[2]}')
            e(f'v_max_f32 v36, v36, v{m[3]}')
            for s in range(4):
                e(f'v_sub_f32 v{40+s}, v{m[s]}, v36')
                e(f'v_exp_f32 v{40+s}, v{40+s}')
            e('s_nop 0')
            e(f'v_mul_f32 v37, v40, v{m[0]+1}')
            for s in range(1, 4):
                e(f'v_fmac_f32 v37, v{40+s}, v{m[s]+1}')
            e('v_rcp_f32 v37, v37')
            for w in range(4):
                e(f'v_sub_f32 v{40+w}, v{16 + 4*w + 2*h}, v36')
                e(f'v_exp_f32 v{40+w}, v{40+w}')
            e('s_nop 0')
            for w in range(4):
                e(f'v_mul_f32 v{40+w}, v{40+w}, v37')
            e('s_nop 0')
            for w in range(4):
                e(f'v_readfirstlane_b32 s{50 + 2*w + h}, v{40+w}')
        e('s_mov_b64 exec, -1')
        e('v_lshlrev_b32 v5, 3, v0')
        self.keep_time(66)
        e('s_barrier')
        self.keep_time(68)
        for w in range(4):
            e(f'ds_read_b128 {rng(16 + 4*w)}, v4 offset:{L_O + 1024*w}')
        for w in range(4):
            e(f's_waitcnt lgkmcnt({3-w})')
            for r in range(4):
                if w == 0:
                    e(f'v_mul_f32 v{32+r}, s{50 + (r & 1)}, v{16+r}')
                else:
                    e(f'v_fmac_f32 v{32+r}, s{50 + 2*w + (r & 1)}, v{16 + 4*w + r}')
        e('v_cvt_pk_bf16_f32 v36, v32, v34')
        e('v_cvt_pk_bf16_f32 v37, v33, v35')
        e('v_min_u32 v36, 0xfffffffe, v36')
        e('v_min_u32 v37, 0xfffffffe, v37')
        e('s_mov_b32 s48, 0x55555555')
        e('v_mov_b32_dpp v38, v36 quad_perm:[1,1,3,3] row_mask:0xf bank_mask:0xf')
        e('v_mov_b32_dpp v39, v37 quad_perm:[1,1,3,3] row_mask:0xf bank_mask:0xf')
        e('s_mov_b32 exec_lo, s48')
        e('s_mov_b32 exec_hi, s48')
        e('buffer_store_dwordx4 v[36:39], v5, s[28:31], s44 offen sc1')
        if self.stamps:
            self.keep_time(70)
            e('s_mov_b64 exec, -1')
            for k, sr in enumerate((60, 62, 64, 66, 68, 70)):
                self.flush_time(6 + k, sr)
            self.flush_time(18, 74)
            self.flush_time(19, 72)
        e('s_endpgm')

    def wave5(self):
        e = self.e
        rng = lambda r: f'v[{r}:{r+3}]'
        if self.pf:
            e('s_getpc_b64 s[50:51]')
            e('L_pc:')
            e(f's_sub_u32 s50, s50, L_pc-{NAME}')
            e('s_subb_u32 s51, s51, 0')
            e('v_lshlrev_b32 v1, 7, v0')
            e('global_load_dword v10, v1, s[50:51]')
            e('v_add_u32 v1, 0x2000, v1')
            e(f'v_cmp_gt_u32 vcc, L_codeend-{NAME}, v1')
            e('s_and_saveexec_b64 s[52:53], vcc')
            e('global_load_dword v11, v1, s[50:51]')
            e('s_mov_b64 exec, s[52:53]')
        e('s_cmp_ge_u32 s2, 180')
        e('s_cbranch_scc1 L_end')
        e('s_waitcnt lgkmcnt(0)')
        self.srd(28, 18, WSWIN)
        self.srd(36, 16, 256)
        e('s_cmp_ge_u32 s2, 144')
        e('s_cbranch_scc1 L_reduce')
        BW = 64
        AO = 32
        e('s_mul_i32 s40, s2, 57')
        e('s_lshr_b32 s40, s40, 9')
        e('s_mul_i32 s41, s40, 9')
        e('s_sub_u32 s41, s2, s41')
        self.srd(20, 12, 4096 * 576 * 2)
        e('v_lshrrev_b32 v1, 3, v0')
        e('v_mul_u32_u24 v1, 1152, v1')
        e('v_and_b32 v2, 7, v0')
        e('v_lshl_add_u32 v1, v2, 4, v1')
        e(f's_mul_i32 s42, s40, {256 * 1152}')
        e('s_lshl_b32 s43, s41, 7')
        e('s_add_u32 s42, s42, s43')
        e('v_bfe_u32 v4, v0, 3, 1')
        e('v_bfe_u32 v5, v0, 2, 1')
        e('v_lshl_add_u32 v6, v5, 1, v4')
        e('v_lshrrev_b32 v7, 4, v0')
        e('v_lshlrev_b32 v7, 4, v7')
        e('v_lshl_add_u32 v7, v4, 7, v7')
        e('v_add_u32 v2, v7, v6')
        e('v_xor_b32 v3, 1, v2')
        e('v_and_b32 v4, 3, v0')
        e('v_lshlrev_b32 v4, 3, v4')
        e('v_lshl_add_u32 v2, v2, 7, v4')
        e('v_lshl_add_u32 v3, v3, 7, v4')
        e('v_bfe_u32 v4, v0, 2, 2')
        e('v_lshlrev_b32 v4, 6, v4')
        e('v_and_b32 v5, 3, v0')
        e('v_add_u32 v4, v4, v5')
        e('v_lshlrev_b32 v4, 10, v4')
        e('v_lshrrev_b32 v5, 4, v0')
        e('v_lshl_add_u32 v4, v5, 4, v4')
        e('s_lshl_b32 s44, s40, 12')
        e(f's_add_u32 s44, s44, {ROFF}')
        e('s_lshl_b32 s45, s2, 10')
        e(f's_add_u32 s45, s45, {POFF}')
        e('v_lshlrev_b32 v5, 4, v0')
        e('s_barrier')
        e(f's_mov_b32 s46, {L_WO}')
        e('L_wo:')
        e('s_mov_b32 m0, s46')
        e('s_add_u32 s46, s46, 1024')
        e('buffer_load_dwordx4 v1, s[20:23], s42 offen nt lds')
        e('s_add_u32 s42, s42, 9216')
        e('s_waitcnt vmcnt(1)')
        e(f's_cmp_lt_u32 s46, {L_WO + 32768}')
        e('s_cbranch_scc1 L_wo')
        e('s_waitcnt vmcnt(0)')
        for t in range(4):
            for kk in range(8):
                gp = kk >> 1
                for hf in range(2):
                    row = 64 * (kk & 1) + 8 * hf + 4 * (gp & 1)
                    r = BW + (t * 8 + kk) * 4 + 2 * hf
                    e(f'ds_read_b64_tr_b16 v[{r}:{r+1}], v{2 + (gp >> 1)} offset:{L_WO + row * 128 + t * 32}')
            e('s_waitcnt lgkmcnt(0)')
        self.ready_check('L_wrdy', 36, 8, 9, 48)
        e('s_mov_b32 s48, 0')
        e('s_barrier')
        self.keep_time(60)
        e('L_opoll:')
        for kk in range(8):
            e(f'buffer_load_dwordx4 {rng(AO + 4*kk)}, v4, s[28:31], s44 offen offset:{64*kk} sc1')
        e('s_add_u32 s48, s48, 1')
        e('s_waitcnt vmcnt(0)')
        self.maxu(8, range(AO, AO + 32))
        e('v_cmp_eq_u32 vcc, -1, v8')
        e('s_nop 0')
        e('s_cbranch_vccz L_ook')
        e(f's_cmp_lt_u32 s48, {SPIN}')
        e('s_cbranch_scc1 L_opoll')
        e('L_ook:')
        self.keep_time(62)
        for t in range(4):
            for kk in range(8):
                c = '0' if kk == 0 else rng(16 + 4*t)
                e(f'v_mfma_f32_16x16x32_bf16 {rng(16 + 4*t)}, {rng(AO + 4*kk)}, {rng(BW + (t*8 + kk)*4)}, {c}')
        for t in range(4):
            d = 16 + 4 * t
            if t == 3:
                e('s_nop 0')
            e(f'v_add_f32 v{d}, v{d}, v{d+1}')
            e(f'v_add_f32 v{d+2}, v{d+2}, v{d+3}')
            e(f'v_add_f32 v{12+t}, v{d}, v{d+2}')
        for t in range(4):
            e(f'v_min_u32 v{12+t}, 0xfffffffe, v{12+t}')
        e('buffer_store_dwordx4 v[12:15], v5, s[28:31], s45 offen sc1')
        if self.stamps:
            self.keep_time(64)
            for k, sr in enumerate((60, 62, 64)):
                self.flush_time(12 + k, sr)
        e('s_endpgm')

        e('L_reduce:')
        e('s_load_dwordx2 s[32:33], s[18:19], 0')
        e('s_sub_u32 s40, s2, 144')
        e('s_lshr_b32 s41, s40, 2')
        e('s_and_b32 s40, s40, 3')
        self.srd(20, 14, 4 * 576 * 2)
        e('v_lshrrev_b32 v1, 4, v0')
        e('v_mul_u32_u24 v1, 9216, v1')
        e('v_and_b32 v2, 15, v0')
        e('v_lshl_add_u32 v1, v2, 4, v1')
        e('s_lshl_b32 s42, s41, 10')
        e('s_lshl_b32 s43, s40, 8')
        e('s_add_u32 s42, s42, s43')
        e(f's_add_u32 s42, s42, {POFF}')
        for i in range(1, 4):
            e(f's_add_u32 s{42+i}, s42, {36864*i}')
        e('s_mul_i32 s46, s40, 1152')
        e('s_lshl_b32 s47, s41, 7')
        e('s_add_u32 s46, s46, s47')
        e('v_lshlrev_b32 v2, 1, v0')
        e('s_waitcnt lgkmcnt(0)')
        e('s_add_u32 s32, s32, 0x7f4a7c15')
        e('s_addc_u32 s33, s33, 0x9e3779b9')
        if self.dbgt:
            e('s_memrealtime s[70:71]')
        e('s_barrier')
        if self.dbgt:
            e('s_memrealtime s[72:73]')
        e('s_sleep 127')
        self.ready_check('L_rrdy', 36, 8, 9, 48)
        e('s_mov_b32 s48, 0')
        e('s_barrier')
        if self.dbgt:
            e('s_memrealtime s[74:75]')
        self.keep_time(60)
        e('L_ppoll:')
        for i in range(4):
            e(f'buffer_load_dwordx4 {rng(16 + 4*i)}, v1, s[28:31], s{42+i} offen sc1')
        e('s_add_u32 s48, s48, 1')
        e('s_waitcnt vmcnt(0)')
        self.maxu(8, range(16, 32))
        e('v_cmp_eq_u32 vcc, -1, v8')
        e('s_nop 0')
        e('s_cbranch_vccz L_pok')
        e(f's_cmp_lt_u32 s48, {SPIN}')
        e('s_cbranch_scc1 L_ppoll')
        e('L_pok:')
        self.keep_time(62)
        for t in range(4):
            e(f'v_add_f32 v{16+t}, v{16+t}, v{20+t}')
            e(f'v_add_f32 v{24+t}, v{24+t}, v{28+t}')
        for t in range(4):
            e(f'v_add_f32 v{16+t}, v{16+t}, v{24+t}')
        e('s_nop 0')
        e('v_permlane32_swap_b32 v16, v18')
        e('v_permlane32_swap_b32 v17, v19')
        e('v_add_f32 v16, v16, v18')
        e('v_add_f32 v17, v17, v19')
        e('s_nop 1')
        e('v_permlane16_swap_b32 v16, v17')
        e('v_add_f32 v16, v16, v17')
        e('v_cvt_pk_bf16_f32 v16, v16, v16')
        e('buffer_store_short v16, v2, s[20:23], s46 offen')
        e('s_cmp_lg_u32 s2, 144')
        e('s_cbranch_scc1 L_rdone')
        e('v_mov_b32 v4, s32')
        e('v_mov_b32 v5, s33')
        e('v_mov_b32 v6, 0')
        e('s_mov_b64 exec, 1')
        e('buffer_store_dwordx2 v[4:5], v6, s[28:31], 0 offen sc1')
        if self.dbgt:
            e('s_memrealtime s[76:77]')
            e('s_waitcnt lgkmcnt(0)')
            for i, r in enumerate((70, 72, 74, 76)):
                e(f's_sub_u32 s{r}, s{r}, s68')
                e(f'v_mov_b32 v{8+i}, s{r}')
            e('buffer_store_dwordx4 v[8:11], v6, s[36:39], 0 offen sc1')
        e('s_mov_b64 exec, -1')
        e('L_rdone:')
        if self.stamps:
            self.keep_time(64)
            for k, sr in enumerate((60, 62, 64)):
                self.flush_time(12 + k, sr)
        e('s_endpgm')

    def build(self):
        e = self.e
        e('.amdgcn_target "amdgcn-amd-amdhsa--gfx950"')
        e('.text')
        e(f'.globl {NAME}')
        e('.p2align 8')
        e(f'.type {NAME},@function')
        e(f'{NAME}:')
        e('s_cmp_ge_u32 s2, 256')
        e('s_cbranch_scc1 L_end')
        self.keep_time(58)
        if self.dbgt:
            e('s_memrealtime s[68:69]')
        e('s_load_dwordx16 s[4:19], s[0:1], 0')
        e('v_lshrrev_b32 v1, 6, v0')
        e('v_and_b32 v0, 63, v0')
        e('v_readfirstlane_b32 s3, v1')
        e('s_cmp_eq_u32 s3, 4')
        e('s_cbranch_scc1 L_helper')
        e('s_cmp_eq_u32 s3, 5')
        e('s_cbranch_scc1 L_wave5')
        self.stream()
        e('L_helper:')
        self.helper()
        e('L_wave5:')
        self.wave5()
        e('L_end:')
        e('s_endpgm')
        e('L_codeend:')
        nv = 256 if self.stamps else 192
        e('.section .rodata,"a"')
        e('.p2align 6')
        e(f'.amdhsa_kernel {NAME}')
        e(f'  .amdhsa_next_free_vgpr {nv}')
        e('  .amdhsa_next_free_sgpr 96')
        e(f'  .amdhsa_accum_offset {nv}')
        e('  .amdhsa_group_segment_fixed_size 0')
        e('  .amdhsa_kernarg_size 64')
        e('  .amdhsa_user_sgpr_count 2')
        e('  .amdhsa_user_sgpr_kernarg_segment_ptr 1')
        e('  .amdhsa_system_sgpr_workgroup_id_x 1')
        e('.end_amdhsa_kernel')
        errs = check([l.lstrip() if l.lstrip().startswith('.') else l for l in self.o])
        for x in errs:
            print('HAZARD', x, file=sys.stderr)
        txt = HEADER + f'; @launch grid=(256,1,1) block=(384,1,1) lds={LDS_BYTES}\n' + '\n'.join(self.o) + '\n'
        return txt, errs


if __name__ == '__main__':
    kw = {}
    out = sys.argv[1]
    for a in sys.argv[2:]:
        k, v = a.split('=')
        kw[k] = int(v)
    txt, errs = G(**kw).build()
    open(out, 'w').write(txt)
    sys.exit(1 if errs else 0)
```

```python
import sys, struct
from hazard import check

NAME = "standalone__gqa_block_cached__decode_kernel"

HEADER = """; Kernarg layout for this problem (64 bytes, ptrs only, base s[0:1]):
"""

QOFF = 0xC0000
ROFF = 0x40000
POFF = 0x80000
WSWIN = 0x100000
STAMP0 = 0x10000000
STAMP1 = 0x10100000

L_WQ = 0x0000
L_WO = 0x5000
L_Q = 0xD000
L_ML = 0xD200
L_O = 0xD400
LDS_BYTES = 0xE400

def f2u(x):
    return struct.unpack('<I', struct.pack('<f', x))[0]

SCALE = f2u(128 ** -0.5 * 1.4426950408889634)
SPIN = 1 << 19


class G:
    def __init__(self, D=5, LV=16, stamps=False, D0=None, dbgt=0, kf=1, vf=1, pf=1, enc=-1, prio=3, slp=64, qslp=2, pre=0, dfn=0, d2=16, qd=0, clr=0, abl=0, kfirst=0, wqp=0):
        self.o = []
        self.D = D
        self.D0 = D0 or D
        self.LV = LV
        self.stamps = stamps
        self.dbgt = dbgt
        FL = ['', ' nt', ' sc1', ' sc1 nt', ' sc0 sc1', ' sc0 sc1 nt', ' sc0', ' sc0 nt']
        self.kf, self.vf = FL[kf], FL[vf]
        self.pf = pf
        self.enc = enc
        self.prio = prio
        self.slp = slp
        self.qslp = qslp
        self.pre = pre
        self.qd = qd
        self.abl = abl
        self.kfirst = kfirst
        self.wqp = wqp
        self.clr = clr
        self.dfn = dfn
        self.d2 = d2

    def e(self, s):
        self.o.append(s if s.endswith(':') or s.startswith('.') or s.startswith(';') else '    ' + s)

    def stamp(self, idx, sbase=80):
        if not self.stamps:
            return
        e = self.e
        e('s_memrealtime s[80:81]')
        e(f's_add_u32 s82, s18, {STAMP1 + idx * 8}')
        e('s_addc_u32 s83, s19, 0')
        e('s_lshl_b32 s84, s2, 8')
        e('s_waitcnt lgkmcnt(0)')
        e('v_mov_b32 v250, s84')
        e('v_mov_b32 v252, s80')
        e('v_mov_b32 v253, s81')
        e('s_mov_b64 s[86:87], exec')
        e('s_mov_b64 exec, 1')
        e('global_store_dwordx2 v250, v[252:253], s[82:83]')
        e('s_mov_b64 exec, s[86:87]')

    def keep_time(self, sreg):
        if self.stamps:
            self.e(f's_memrealtime s[{sreg}:{sreg+1}]')

    def flush_time(self, idx, sreg):
        if not self.stamps:
            return
        e = self.e
        e(f's_add_u32 s82, s18, {STAMP1 + idx * 8}')
        e('s_addc_u32 s83, s19, 0')
        e('s_lshl_b32 s84, s2, 8')
        e('s_waitcnt lgkmcnt(0)')
        e('v_mov_b32 v250, s84')
        e(f'v_mov_b32 v252, s{sreg}')
        e(f'v_mov_b32 v253, s{sreg+1}')
        e('s_mov_b64 s[86:87], exec')
        e('s_mov_b64 exec, 1')
        e('global_store_dwordx2 v250, v[252:253], s[82:83]')
        e('s_mov_b64 exec, s[86:87]')

    def srd(self, d, base, size, add=None):
        e = self.e
        if add is None:
            e(f's_mov_b32 s{d}, s{base}')
            e(f's_mov_b32 s{d+1}, s{base+1}')
        else:
            e(f's_add_u32 s{d}, s{base}, {add}')
            e(f's_addc_u32 s{d+1}, s{base+1}, 0')
        e(f's_mov_b32 s{d+2}, {size:#x}')
        e(f's_mov_b32 s{d+3}, 0x20000')

    def stream(self):
        e, D, LV = self.e, self.D, 16
        vK, vV = 1, 2
        QB = [4, 8]
        DT = [12, 16]
        T, X = 20, 21
        A = 24
        MK = 28
        OA = 32
        M, L, T2, T3 = 36, 37, 38, 39
        S = 40
        RING = 56
        VP = 184
        rng = lambda r: f'v[{r}:{r+3}]'
        kslot = lambda n: RING + 4 * (n % 32)
        vslot = lambda v: VP + 4 * v if v < 16 else RING + 4 * ((v - 16) % 32)
        kpos = lambda n: 16 + n
        vpos = lambda v: v if v < 16 else 128 + v
        st = {'issued': -1, 'landed': -1}

        def need_landed(x):
            if x > st['landed']:
                e(f's_waitcnt vmcnt({st["issued"] - x})')
                st['landed'] = x

        def gate(pos, d):
            if pos >= d:
                e(f's_waitcnt vmcnt({d-1})')
                st['landed'] = max(st['landed'], pos - d)
            st['issued'] = pos

        def kissue(n, d=None):
            gate(kpos(n), d or D)
            e(f'buffer_load_dwordx4 {rng(kslot(n))}, v{vK}, s[20:23], s28 offen offset:{(n % 4) * 1024}{self.kf}')
            if n % 4 == 3:
                e('s_add_u32 s28, s28, 0x4000')

        def vissue(v, d=None):
            gate(vpos(v), d or D)
            e(f'buffer_load_dwordx4 {rng(vslot(v))}, v{vV}, s[24:27], s33 offen offset:{(v % 4) * 1024}{self.vf}')
            if v % 4 == 3:
                e('s_add_u32 s33, s33, 0x4000')

        def kadds(pair, sreg):
            d = DT[pair & 1]
            i = pair & 3
            e(f'v_add_f32_dpp v{T}, v{d + (i+1) % 4}, v{d + i} row_ror:12 row_mask:0xf bank_mask:0xf')
            e(f'v_add_f32_dpp v{T}, v{d + (i+2) % 4}, v{T} row_ror:8 row_mask:0xf bank_mask:0xf')
            e(f'v_add_f32_dpp v{sreg}, v{d + (i+3) % 4}, v{T} row_ror:4 row_mask:0xf bank_mask:{1 << i:#x}')

        def kmfma(n):
            d = DT[(n >> 1) & 1]
            c = '0' if n % 2 == 0 else rng(d)
            e(f'v_mfma_f32_16x16x32_bf16 {rng(d)}, {rng(kslot(n))}, {rng(QB[n & 1])}, {c}')

        def shift4():
            for i in range(12):
                e(f'v_mov_b32 v{S+i}, v{S+i+4}')

        def vprep(pn, yreg):
            i = pn & 7
            e(f'v_mov_b32_dpp v{X}, v{yreg} row_newbcast:{2*i} row_mask:0xf bank_mask:0x3')
            e(f'v_mov_b32_dpp v{X}, v{yreg} row_newbcast:{2*i+1} row_mask:0xf bank_mask:0xc')
            for r in range(4):
                e(f'v_and_b32 v{A+r}, v{X}, v{MK+r}')

        def vmfma(v, first=False):
            c = '0' if first else rng(OA)
            e(f'v_mfma_f32_16x16x32_bf16 {rng(OA)}, {rng(A)}, {rng(vslot(v))}, {c}')

        e(f'v_lshlrev_b32 v{vV}, 4, v0')
        e('s_lshl_b32 s31, s2, 19')
        e('s_lshl_b32 s33, s3, 12')
        e('s_lshl_b32 s28, s3, 12')
        if self.prio:
            e(f's_setprio {self.prio}')
        e('s_waitcnt lgkmcnt(0)')
        self.keep_time(70)
        self.srd(24, 8, 0x80000, add='s31')
        for v in range(min(self.D0, 16)):
            vissue(v, d=self.D0)
        self.srd(20, 6, 0x80000, add='s31')
        e('v_lshrrev_b32 v3, 4, v0')
        e('v_bfe_u32 v4, v0, 2, 2')
        e('v_and_b32 v5, 3, v0')
        e('v_lshlrev_b32 v3, 6, v3')
        e('v_lshlrev_b32 v4, 8, v4')
        e('v_lshlrev_b32 v5, 4, v5')
        e(f'v_add3_u32 v{vK}, v3, v4, v5')
        e(f's_mov_b32 s30, {SCALE:#x}')
        e('v_lshrrev_b32 v3, 3, v0')
        e('v_xor_b32 v3, v3, v0')
        e('v_and_b32 v3, 1, v3')
        e('v_lshlrev_b32 v3, 4, v3')
        e('v_mov_b32 v4, 0xffff')
        e('v_lshlrev_b32 v3, v3, v4')
        e('v_bfe_u32 v4, v0, 1, 2')
        for r in range(4):
            e(f'v_cmp_eq_u32 vcc, {r}, v4')
            e('s_nop 1')
            e(f'v_cndmask_b32 v{MK+r}, 0, v3, vcc')
        e('v_and_b32 v3, 1, v0')
        e('v_lshlrev_b32 v3, 8, v3')
        e('v_lshrrev_b32 v4, 2, v0')
        e(f'v_lshl_add_u32 v{T2}, v4, 4, v3')
        e('v_and_b32 v3, 2, v0')
        e('v_cmp_ne_u32 vcc, 0, v3')
        for v in range(min(self.D0, 16), 16):
            vissue(v, d=self.D0)
            if v == self.D0:
                self.keep_time(72)
        self.keep_time(76)
        for n in range(32):
            kissue(n, d=self.D0 + max(0, n - (31 - self.pre)))
            if n == 8:
                self.keep_time(78)
        self.keep_time(60)
        e('s_barrier')
        e(f'ds_read_b128 {rng(DT[0])}, v{T2} offset:{L_Q}')
        e('s_mov_b32 s29, 0')
        e(f's_waitcnt lgkmcnt(0) vmcnt({min(self.D0, 30)})')
        self.keep_time(62)
        for r in range(4):
            e(f'v_cndmask_b32 v{QB[1]+r}, 0, v{DT[0]+r}, vcc')
            e(f'v_cndmask_b32 v{QB[0]+r}, v{DT[0]+r}, 0, vcc')
        e('s_nop 1')
        self.align()
        e('L_kloop:')
        for p in range(16):
            n = 2 * p
            kmfma(n)
            kissue(n + 32)
            kmfma(n + 1)
            kadds((p - 1) % 16, S + 12 + (((p - 1) % 16) >> 2))
            if p == 0:
                shift4()
            kissue(n + 33)
        e('s_add_u32 s29, s29, 1')
        e('s_cmp_lt_u32 s29, 3')
        e('s_cbranch_scc1 L_kloop')
        nv = 16
        st['issued'], st['landed'] = kpos(127), kpos(127) - D
        for p in range(16):
            n = 2 * p
            need_landed(kpos(96 + n + 1))
            kmfma(n)
            kmfma(n + 1)
            e('s_nop 0')
            kadds((p - 1) % 16, S + 12 + (((p - 1) % 16) >> 2))
            if p == 0:
                shift4()
            if p % 3 == 0:
                vissue(nv); nv += 1
            else:
                e('s_nop 1')
        e('s_nop 1')
        kadds(15, S + 15)
        e(f'v_max3_f32 v{M}, v{S}, v{S+1}, v{S+2}')
        e(f'v_max3_f32 v{T}, v{S+3}, v{S+4}, v{S+5}')
        for i in range(6, 14, 4):
            e(f'v_max3_f32 v{M}, v{M}, v{S+i}, v{S+i+1}')
            e(f'v_max3_f32 v{T}, v{T}, v{S+i+2}, v{S+i+3}')
        e(f'v_max3_f32 v{M}, v{M}, v{S+14}, v{S+15}')
        e(f'v_max_f32 v{M}, v{M}, v{T}')

        def allreduce(reg, op):
            for k in (2, 4, 8):
                e('s_nop 1')
                e(f'{op}_dpp v{reg}, v{reg}, v{reg} row_ror:{k} row_mask:0xf bank_mask:0xf')
            for sw in ('v_permlane16_swap_b32', 'v_permlane32_swap_b32'):
                e(f'v_mov_b32 v{T}, v{reg}')
                e('s_nop 1')
                e(f'{sw} v{reg}, v{T}')
                e(f'{op} v{reg}, v{reg}, v{T}')
        allreduce(M, 'v_max_f32')
        e(f'v_mul_f32 v{M}, s30, v{M}')
        vissue(nv); nv += 1
        for i in range(16):
            e(f'v_fma_f32 v{S+i}, v{S+i}, s30, -v{M}')
            e(f'v_exp_f32 v{S+i}, v{S+i}')
            if i == 10:
                vissue(nv); nv += 1
        e(f'v_add_f32 v{L}, v{S}, v{S+1}')
        for i in range(2, 16):
            e(f'v_add_f32 v{L}, v{L}, v{S+i}')
        vissue(nv); nv += 1
        for i in range(16):
            t = T2 if i & 1 else T3
            e(f'v_mov_b32_dpp v{t}, v{S+i} quad_perm:[1,0,3,2] row_mask:0xf bank_mask:0xf')
            e(f'v_cvt_pk_bf16_f32 v{S+i}, v{S+i}, v{t}')
        vissue(nv); nv += 1
        allreduce(L, 'v_add_f32')
        e(f'v_lshlrev_b32 v{T2}, 3, v0')
        e('s_lshl_b32 s31, s3, 4')
        e(f'v_add_u32 v{T2}, s31, v{T2}')
        e('s_mov_b64 exec, 3')
        e(f'ds_write_b64 v{T2}, v[{M}:{L}] offset:{L_ML}')
        e('s_mov_b64 exec, -1')
        self.keep_time(64)
        for pn in range(16):
            vprep(pn, S + (pn >> 3))
            if pn % 3 == 0:
                vissue(nv); nv += 1
            else:
                e('s_nop 1')
            vmfma(pn, first=(pn == 0))
        assert nv <= 32, nv
        while nv < 32:
            vissue(nv); nv += 1
        e('s_mov_b32 s29, 0')
        e('s_mov_b64 vcc, 0')
        self.align()
        e('L_vloop:')
        sw_it, sw_i = divmod(96 - self.dfn, 32)
        for i in range(32):
            p2 = 16 + i
            if self.dfn and i == sw_i:
                e(f's_cmp_ge_u32 s29, {sw_it}')
                e('s_cselect_b32 vcc_lo, 1, 0')
            vprep(p2, S + (p2 >> 3))
            if self.dfn:
                e(f's_cbranch_vccnz L_g{i}')
                e(f's_waitcnt vmcnt({D-1})')
                e(f'L_g{i}:')
                vissue(32 + i, d=self.d2)
            else:
                vissue(32 + i)
            vmfma(p2)
        shift4()
        e('s_add_u32 s29, s29, 1')
        e('s_cmp_lt_u32 s29, 3')
        e('s_cbranch_scc1 L_vloop')
        self.keep_time(66)
        e(f'v_lshlrev_b32 v{T2}, 4, v0')
        e('s_lshl_b32 s31, s3, 10')
        e(f'v_add_u32 v{T2}, s31, v{T2}')
        for i in range(LV):
            p2 = 16 + i
            vprep(p2, S + (p2 >> 3))
            if LV - 1 - i < (self.d2 if self.dfn else D):
                e(f's_waitcnt vmcnt({LV - 1 - i})')
                e('s_nop 0')
            else:
                e('s_nop 1')
            vmfma(p2)
        e('s_nop 7')
        e(f'ds_write_b128 v{T2}, {rng(OA)} offset:{L_O}')
        e('s_waitcnt lgkmcnt(0)')
        self.keep_time(68)
        e('s_barrier')
        if self.stamps:
            e('s_cmp_lg_u32 s3, 0')
            e('s_cbranch_scc1 L_end')
            for k, sr in enumerate((58, 60, 62, 64, 66, 68)):
                self.flush_time(k, sr)
            self.flush_time(16, 70)
            self.flush_time(17, 72)
            self.flush_time(15, 76)
            self.flush_time(19, 78)
        e('s_endpgm')

    def align(self):
        self.e('.p2align 3')

    def make_tag(self):
        self.e('s_add_u32 s34, s34, 0x7f4a7c15')

    def pack4(self, dst, z, vtag):
        e = self.e
        e(f'v_perm_b32 v{dst}, v{z[0]}, v{z[1]}, s90')
        e(f'v_perm_b32 v{dst+1}, v{z[1]}, v{vtag}, s91')
        e(f'v_perm_b32 v{dst+2}, v{z[2]}, v{z[3]}, s90')
        e(f'v_perm_b32 v{dst+3}, v{z[3]}, v{vtag}, s92')

    def pack_consts(self):
        e = self.e
        e('s_mov_b32 s90, 0x07060501')
        e('s_mov_b32 s91, 0x07060100')
        e('s_mov_b32 s92, 0x07060302')
        e('s_mov_b32 s93, 0x05040100')
        e('s_mov_b32 s94, 0x0706000c')

    def check4(self, pieces, tmp):
        e = self.e
        for i, p in enumerate(pieces):
            e(f'v_perm_b32 v{tmp+i}, v{p+3}, v{p+1}, s93')
        for i, p in enumerate(pieces):
            e(f'v_xor_b32 v{tmp+i}, s34, v{tmp+i}')
        e(f'v_or3_b32 v{tmp}, v{tmp}, v{tmp+1}, v{tmp+2}')
        e(f'v_or_b32 v{tmp}, v{tmp}, v{tmp+3}')
        e(f'v_cmp_ne_u32 vcc, 0, v{tmp}')

    def unpack_sum4(self, pieces):
        e = self.e
        for p in pieces:
            e(f'v_perm_b32 v{p+1}, v{p+1}, v{p}, s94')
            e(f'v_perm_b32 v{p+3}, v{p+3}, v{p+2}, s94')
            e(f'v_and_b32 v{p}, 0xffffff00, v{p}')
            e(f'v_and_b32 v{p+2}, 0xffffff00, v{p+2}')
        p0, p1, p2, p3 = pieces
        for t in range(4):
            e(f'v_add_f32 v{p0+t}, v{p0+t}, v{p1+t}')
            e(f'v_add_f32 v{p2+t}, v{p2+t}, v{p3+t}')
        for t in range(4):
            e(f'v_add_f32 v{p0+t}, v{p0+t}, v{p2+t}')

    def wait_mid(self, lab, vzero, scnt):
        e = self.e
        e(f's_mov_b32 s{scnt}, 0')
        e(f'{lab}:')
        e(f's_sleep {self.slp}')
        for w in range(4):
            e(f'ds_read_b128 v[{16 + 4*w}:{19 + 4*w}], v{vzero} offset:{L_ML + 16*w}')
        e(f's_add_u32 s{scnt}, s{scnt}, 1')
        e('s_waitcnt lgkmcnt(0)')
        self.maxu(32, range(16, 32))
        e('v_cmp_eq_u32 vcc, -1, v32')
        e('s_nop 0')
        e(f's_cbranch_vccz {lab}_ok')
        e(f's_cmp_lt_u32 s{scnt}, {SPIN}')
        e(f's_cbranch_scc1 {lab}')
        e(f'{lab}_ok:')

    def maxu(self, dst, regs):
        e = self.e
        regs = list(regs)
        e(f'v_max3_u32 v{dst}, v{regs[0]}, v{regs[1]}, v{regs[2]}')
        regs = regs[3:]
        while len(regs) >= 2:
            e(f'v_max3_u32 v{dst}, v{dst}, v{regs[0]}, v{regs[1]}')
            regs = regs[2:]
        if regs:
            e(f'v_max_u32 v{dst}, v{dst}, v{regs[0]}')

    def helper(self):
        e = self.e
        rng = lambda r: f'v[{r}:{r+3}]'
        XA = 16
        WB = 64
        DQ = 40
        e('s_lshr_b32 s40, s2, 3')
        e('s_and_b32 s41, s2, 1')
        e('s_lshl_b32 s41, s41, 5')
        e('s_add_u32 s40, s40, s41')
        e('s_bfe_u32 s35, s2, 0x20001')
        e('v_lshrrev_b32 v1, 3, v0')
        e('v_lshlrev_b32 v1, 13, v1')
        e('v_and_b32 v2, 7, v0')
        e('v_lshl_add_u32 v1, v2, 4, v1')
        e(f's_mul_i32 s42, s35, {144 * 8192}')
        e('s_lshl_b32 s41, s40, 7')
        e('s_add_u32 s42, s42, s41')
        e('v_and_b32 v2, 3, v0')
        e('v_mul_u32_u24 v2, 1152, v2')
        e('v_lshrrev_b32 v3, 4, v0')
        e('v_lshl_add_u32 v7, v3, 3, v2')
        e('v_lshl_add_u32 v2, v3, 4, v2')
        e('s_mul_i32 s43, s35, 288')
        e('s_waitcnt lgkmcnt(0)')
        e('s_load_dword s34, s[18:19], 0')
        self.srd(24, 4, 4 * 576 * 2)
        for kk in range(4):
            e(f'buffer_load_dwordx4 {rng(XA + 4*kk)}, v2, s[24:27], s43 offen offset:{kk*64}')
        e(f'buffer_load_dwordx2 v[{XA+16}:{XA+17}], v7, s[24:27], s43 offen offset:256')
        self.srd(20, 10, 576 * 4096 * 2)
        for i in range(18):
            e(f's_mov_b32 m0, {L_WQ + 1024 * i}')
            if i:
                e('s_add_u32 s42, s42, 0x10000')
            else:
                e('s_nop 0')
            if self.wqp and i >= self.wqp:
                e(f's_waitcnt vmcnt({self.wqp - 1})')
            if not self.abl & 1:
                e('buffer_load_dwordx4 v1, s[20:23], s42 offen nt lds')
        self.srd(28, 18, WSWIN)
        for r in range(4):
            e(f'v_mov_b32 v{8+r}, -1')
        e('v_lshlrev_b32 v4, 4, v0')
        e('s_lshl_b32 s43, s2, 10')
        e(f's_add_u32 s44, s43, {ROFF}')
        e('s_mov_b64 exec, 15')
        e(f'ds_write_b128 v4, v[8:11] offset:{L_ML}')
        e('s_mov_b64 exec, -1')
        self.pack_consts()
        e('v_bfe_u32 v5, v0, 2, 2')
        e('v_lshlrev_b32 v5, 7, v5')
        e('v_and_b32 v6, 3, v0')
        e('v_lshl_add_u32 v5, v6, 3, v5')
        e('v_lshl_add_u32 v6, v3, 9, v5')
        e('v_lshl_add_u32 v5, v3, 10, v5')
        e('v_and_b32 v7, 15, v0')
        e('v_lshlrev_b32 v7, 4, v7')
        e('v_lshl_add_u32 v7, v3, 14, v7')
        e('s_lshl_b32 s41, s35, 16')
        e('s_lshl_b32 s46, s40, 8')
        e('s_add_u32 s46, s46, s41')
        e(f's_add_u32 s46, s46, {QOFF}')
        e('s_lshr_b32 s41, s2, 2')
        e('s_lshl_b32 s41, s41, 10')
        for k in range(4):
            e(f's_add_u32 s{50+k}, s41, {QOFF + 65536*k}')
        e('v_and_b32 v12, 15, v0')
        e('v_lshlrev_b32 v12, 1, v12')
        e('v_lshl_add_u32 v12, v3, 7, v12')
        e('s_waitcnt lgkmcnt(0)')
        self.make_tag()
        e('v_mov_b32 v13, s34')
        self.keep_time(74)
        e('s_waitcnt vmcnt(0)')
        self.keep_time(60)
        for t in range(4):
            for kk in range(4):
                for hf in range(2):
                    r = WB + 20*t + 4*kk + 2*hf
                    e(f'ds_read_b64_tr_b16 v[{r}:{r+1}], v5 offset:{L_WQ + (32*kk + 4*hf)*128 + 32*t}')
            r = WB + 20*t + 16
            e(f'ds_read_b64_tr_b16 v[{r}:{r+1}], v6 offset:{L_WQ + 128*128 + 32*t}')
        for t in range(4):
            e(f's_waitcnt lgkmcnt({min(15, 9*(3-t))})')
            for kk in range(4):
                c = '0' if kk == 0 else rng(DQ + 4*t)
                e(f'v_mfma_f32_16x16x32_bf16 {rng(DQ + 4*t)}, {rng(XA + 4*kk)}, {rng(WB + 20*t + 4*kk)}, {c}')
        e('s_nop 3')
        for t in range(4):
            r = WB + 20*t + 16
            e(f'v_mfma_f32_16x16x16_bf16 {rng(DQ + 4*t)}, v[{XA+16}:{XA+17}], v[{r}:{r+1}], {rng(DQ + 4*t)}')
        e('s_nop 4')
        for t in range(4):
            for b in range(1, 4):
                e(f'v_mov_b32_dpp v{DQ+4*t}, v{DQ+4*t+b} quad_perm:[0,1,2,3] row_mask:{1 << b:#x} bank_mask:0xf')
        self.pack4(36, [DQ + 4*t for t in range(4)], 13)
        if not self.abl & 2:
            e('buffer_store_dwordx4 v[36:39], v7, s[28:31], s46 offen sc1')
        def clear_rec():
            e('s_mov_b32 exec_hi, 0')
            e('buffer_store_dwordx4 v[8:11], v4, s[28:31], s44 offen sc1')
            e('s_mov_b32 exec_hi, -1')
        if self.clr == 0:
            clear_rec()
        self.keep_time(62)
        e('s_mov_b32 s48, 0')
        if self.qd:
            e(f's_sleep {self.qd}')
        if self.abl & 2:
            e('s_branch L_qok')
        e('L_qpoll:')
        for k in range(4):
            e(f'buffer_load_dwordx4 {rng(16 + 4*k)}, v4, s[28:31], s{50+k} offen sc1')
        e('s_add_u32 s48, s48, 1')
        e('s_waitcnt vmcnt(0)')
        self.check4([16, 20, 24, 28], 32)
        e('s_nop 0')
        e('s_cbranch_vccz L_qok')
        e(f's_sleep {self.qslp}')
        e(f's_cmp_lt_u32 s48, {SPIN}')
        e('s_cbranch_scc1 L_qpoll')
        e('L_qok:')
        self.unpack_sum4([16, 20, 24, 28])
        e('v_cvt_pk_bf16_f32 v20, v16, v17')
        e('v_cvt_pk_bf16_f32 v21, v18, v19')
        e(f'ds_write_b16 v12, v20 offset:{L_Q}')
        e(f'ds_write_b16_d16_hi v12, v20 offset:{L_Q + 32}')
        e(f'ds_write_b16 v12, v21 offset:{L_Q + 64}')
        e(f'ds_write_b16_d16_hi v12, v21 offset:{L_Q + 96}')
        e('s_waitcnt lgkmcnt(0)')
        self.keep_time(64)
        e('s_barrier')
        e('v_mov_b32 v5, 0')
        if self.clr == 1:
            clear_rec()
        self.wait_mid('L_mlwait', 5, 48)
        e('s_waitcnt vmcnt(0)')
        for h in range(2):
            m = [16 + 4*w + 2*h for w in range(4)]
            d = 36 + 4*h
            e(f'v_max3_f32 v{d}, v{m[0]}, v{m[1]}, v{m[2]}')
            e(f'v_max_f32 v{d}, v{d}, v{m[3]}')
            for w in range(4):
                e(f'v_sub_f32 v{44+w}, v{m[w]}, v{d}')
                e(f'v_exp_f32 v{44+w}, v{44+w}')
            e(f'v_mov_b32 v{d+1}, s34')
            e(f'v_mul_f32 v{d+2}, v44, v{m[0]+1}')
            for w in range(1, 4):
                e(f'v_fmac_f32 v{d+2}, v{44+w}, v{m[w]+1}')
            e(f'v_mov_b32 v{d+3}, s34')
        e('s_mov_b64 exec, 1')
        e('buffer_store_dwordx4 v[36:39], v5, s[28:31], s44 offen offset:512 sc1')
        e('buffer_store_dwordx4 v[40:43], v5, s[28:31], s44 offen offset:528 sc1')
        e('s_and_b32 s41, s2, 0xfc')
        e('s_lshl_b32 s41, s41, 10')
        e(f's_add_u32 s41, s41, {ROFF + 512}')
        e('s_mov_b32 s48, 0')
        e('L_gml:')
        e(f's_sleep {self.slp}')
        for s_ in range(4):
            for h in range(2):
                e(f'buffer_load_dwordx4 {rng(64 + 8*s_ + 4*h)}, v5, s[28:31], s41 offen offset:{1024*s_ + 16*h} sc1')
        e('s_add_u32 s48, s48, 1')
        e('s_waitcnt vmcnt(0)')
        e('v_mov_b32 v32, 0')
        for i in range(8):
            e(f'v_xor_b32 v33, s34, v{65 + 4*i}')
            e(f'v_xor_b32 v34, s34, v{67 + 4*i}')
            e('v_or3_b32 v32, v32, v33, v34')
        e('v_cmp_ne_u32 vcc, 0, v32')
        e('s_nop 0')
        e('s_cbranch_vccz L_gmlok')
        e(f's_cmp_lt_u32 s48, {SPIN}')
        e('s_cbranch_scc1 L_gml')
        e('L_gmlok:')
        for h in range(2):
            m = [64 + 8*s_ + 4*h for s_ in range(4)]
            e(f'v_max3_f32 v36, v{m[0]}, v{m[1]}, v{m[2]}')
            e(f'v_max_f32 v36, v36, v{m[3]}')
            for s_ in range(4):
                e(f'v_sub_f32 v{44+s_}, v{m[s_]}, v36')
                e(f'v_exp_f32 v{44+s_}, v{44+s_}')
            e('s_nop 0')
            e(f'v_mul_f32 v37, v44, v{m[0]+2}')
            for s_ in range(1, 4):
                e(f'v_fmac_f32 v37, v{44+s_}, v{m[s_]+2}')
            e('v_rcp_f32 v37, v37')
            for w in range(4):
                e(f'v_sub_f32 v{44+w}, v{16 + 4*w + 2*h}, v36')
                e(f'v_exp_f32 v{44+w}, v{44+w}')
            e('s_nop 0')
            for w in range(4):
                e(f'v_mul_f32 v{44+w}, v{44+w}, v37')
            e('s_nop 0')
            for w in range(4):
                e(f'v_readfirstlane_b32 s{50 + 2*w + h}, v{44+w}')
        e('s_mov_b64 exec, -1')
        e('v_lshlrev_b32 v5, 3, v0')
        e('s_mov_b32 s48, 0x55555555')
        self.keep_time(66)
        e('s_barrier')
        self.keep_time(68)
        for w in range(4):
            e(f'ds_read_b128 {rng(16 + 4*w)}, v4 offset:{L_O + 1024*w}')
        for w in range(4):
            e(f's_waitcnt lgkmcnt({3-w})')
            for r in range(4):
                if w == 0:
                    e(f'v_mul_f32 v{32+r}, s{50 + (r & 1)}, v{16+r}')
                else:
                    e(f'v_fmac_f32 v{32+r}, s{50 + 2*w + (r & 1)}, v{16 + 4*w + r}')
        e('v_cvt_pk_bf16_f32 v36, v32, v34')
        e('v_cvt_pk_bf16_f32 v37, v33, v35')
        e('v_min_u32 v36, 0xfffffffe, v36')
        e('v_min_u32 v37, 0xfffffffe, v37')
        e('s_nop 0')
        e('v_mov_b32_dpp v38, v36 quad_perm:[1,1,3,3] row_mask:0xf bank_mask:0xf')
        e('v_mov_b32_dpp v39, v37 quad_perm:[1,1,3,3] row_mask:0xf bank_mask:0xf')
        e('s_mov_b32 exec_lo, s48')
        e('s_mov_b32 exec_hi, s48')
        e('buffer_store_dwordx4 v[36:39], v5, s[28:31], s44 offen sc1')
        if self.stamps:
            self.keep_time(70)
            e('s_mov_b64 exec, -1')
            for k, sr in enumerate((60, 62, 64, 66, 68, 70)):
                self.flush_time(6 + k, sr)
            self.flush_time(18, 74)
        e('s_endpgm')

    def wave5(self):
        e = self.e
        rng = lambda r: f'v[{r}:{r+3}]'
        if self.pf:
            e('s_getpc_b64 s[50:51]')
            e('L_pc:')
            e(f's_sub_u32 s50, s50, L_pc-{NAME}')
            e('s_subb_u32 s51, s51, 0')
            e('v_lshlrev_b32 v1, 7, v0')
            e('global_load_dword v10, v1, s[50:51]')
            e('v_add_u32 v1, 0x2000, v1')
            e(f'v_cmp_gt_u32 vcc, L_codeend-{NAME}, v1')
            e('s_and_saveexec_b64 s[52:53], vcc')
            e('global_load_dword v11, v1, s[50:51]')
            e('s_mov_b64 exec, s[52:53]')
        if self.kfirst:
            e('s_lshl_b32 s31, s2, 19')
            e('s_waitcnt lgkmcnt(0)')
            e('s_add_u32 s20, s6, s31')
            e('s_addc_u32 s21, s7, 0')
            e('v_mov_b32 v1, 0')
            e('s_mov_b64 exec, 1')
            e('global_load_dword v12, v1, s[20:21] nt')
            e('s_mov_b64 exec, -1')
        e('s_cmp_ge_u32 s2, 180')
        e('s_cbranch_scc1 L_end')
        e('s_waitcnt lgkmcnt(0)')
        e('s_load_dword s34, s[18:19], 0')
        self.srd(28, 18, WSWIN)
        self.pack_consts()
        e('s_cmp_ge_u32 s2, 144')
        e('s_cbranch_scc1 L_reduce')
        BW = 64
        AO = 32
        e('s_mul_i32 s40, s2, 57')
        e('s_lshr_b32 s40, s40, 9')
        e('s_mul_i32 s41, s40, 9')
        e('s_sub_u32 s41, s2, s41')
        self.srd(20, 12, 4096 * 576 * 2)
        e('v_lshrrev_b32 v1, 3, v0')
        e('v_mul_u32_u24 v1, 1152, v1')
        e('v_and_b32 v2, 7, v0')
        e('v_lshl_add_u32 v1, v2, 4, v1')
        e(f's_mul_i32 s42, s40, {256 * 1152}')
        e('s_lshl_b32 s43, s41, 7')
        e('s_add_u32 s42, s42, s43')
        e('v_bfe_u32 v4, v0, 3, 1')
        e('v_bfe_u32 v5, v0, 2, 1')
        e('v_lshl_add_u32 v6, v5, 1, v4')
        e('v_lshrrev_b32 v7, 4, v0')
        e('v_lshlrev_b32 v7, 4, v7')
        e('v_lshl_add_u32 v7, v4, 7, v7')
        e('v_add_u32 v2, v7, v6')
        e('v_xor_b32 v3, 1, v2')
        e('v_and_b32 v4, 3, v0')
        e('v_lshlrev_b32 v4, 3, v4')
        e('v_lshl_add_u32 v2, v2, 7, v4')
        e('v_lshl_add_u32 v3, v3, 7, v4')
        e('v_bfe_u32 v4, v0, 2, 2')
        e('v_lshlrev_b32 v4, 6, v4')
        e('v_and_b32 v5, 3, v0')
        e('v_add_u32 v4, v4, v5')
        e('v_lshlrev_b32 v4, 10, v4')
        e('v_lshrrev_b32 v5, 4, v0')
        e('v_lshl_add_u32 v4, v5, 4, v4')
        e('s_lshl_b32 s44, s40, 12')
        e(f's_add_u32 s44, s44, {ROFF}')
        e('s_lshl_b32 s45, s2, 10')
        e(f's_add_u32 s45, s45, {POFF}')
        e('v_lshlrev_b32 v5, 4, v0')
        e('v_mov_b32 v6, 0')
        e('s_waitcnt lgkmcnt(0)')
        self.make_tag()
        e('v_mov_b32 v9, s34')
        e('s_barrier')
        e(f's_mov_b32 s46, {L_WO}')
        e('L_wo:')
        e('s_mov_b32 m0, s46')
        e('s_add_u32 s46, s46, 1024')
        if not self.abl & 4:
            e('buffer_load_dwordx4 v1, s[20:23], s42 offen nt lds')
        e('s_add_u32 s42, s42, 9216')
        e('s_waitcnt vmcnt(1)')
        e(f's_cmp_lt_u32 s46, {L_WO + 32768}')
        e('s_cbranch_scc1 L_wo')
        e('s_waitcnt vmcnt(0)')
        for t in range(4):
            for kk in range(8):
                gp = kk >> 1
                for hf in range(2):
                    row = 64 * (kk & 1) + 8 * hf + 4 * (gp & 1)
                    r = BW + (t * 8 + kk) * 4 + 2 * hf
                    e(f'ds_read_b64_tr_b16 v[{r}:{r+1}], v{2 + (gp >> 1)} offset:{L_WO + row * 128 + t * 32}')
            e('s_waitcnt lgkmcnt(0)')
        self.wait_mid('L_wmid', 6, 48)
        e('s_mov_b32 s48, 0')
        e('s_mov_b64 exec, 0xffff')
        e('L_wrdy:')
        e(f's_sleep {self.slp}')
        e('buffer_load_dword v8, v4, s[28:31], s44 offen offset:516 sc1')
        e('s_add_u32 s48, s48, 1')
        e('s_waitcnt vmcnt(0)')
        e('v_cmp_ne_u32 vcc, s34, v8')
        e('s_nop 0')
        e('s_cbranch_vccz L_wrdy_ok')
        e(f's_cmp_lt_u32 s48, {SPIN}')
        e('s_cbranch_scc1 L_wrdy')
        e('L_wrdy_ok:')
        e('s_mov_b64 exec, -1')
        e('s_mov_b32 s48, 0')
        e('s_barrier')
        self.keep_time(60)
        e('L_opoll:')
        for kk in range(8):
            e(f'buffer_load_dwordx4 {rng(AO + 4*kk)}, v4, s[28:31], s44 offen offset:{64*kk} sc1')
        e('s_add_u32 s48, s48, 1')
        e('s_waitcnt vmcnt(0)')
        self.maxu(8, range(AO, AO + 32))
        e('v_cmp_eq_u32 vcc, -1, v8')
        e('s_nop 0')
        e('s_cbranch_vccz L_ook')
        e(f's_cmp_lt_u32 s48, {SPIN}')
        e('s_cbranch_scc1 L_opoll')
        e('L_ook:')
        self.keep_time(62)
        for t in range(4):
            for kk in range(8):
                c = '0' if kk == 0 else rng(16 + 4*t)
                e(f'v_mfma_f32_16x16x32_bf16 {rng(16 + 4*t)}, {rng(AO + 4*kk)}, {rng(BW + (t*8 + kk)*4)}, {c}')
        for t in range(4):
            d = 16 + 4 * t
            if t == 3:
                e('s_nop 0')
            e(f'v_add_f32 v{d}, v{d}, v{d+1}')
            e(f'v_add_f32 v{d+2}, v{d+2}, v{d+3}')
            e(f'v_add_f32 v{d}, v{d}, v{d+2}')
        self.pack4(12, [16, 20, 24, 28], 9)
        e('buffer_store_dwordx4 v[12:15], v5, s[28:31], s45 offen sc1')
        if self.stamps:
            self.keep_time(64)
            for k, sr in enumerate((60, 62, 64)):
                self.flush_time(12 + k, sr)
        e('s_endpgm')

        e('L_reduce:')
        e('s_sub_u32 s40, s2, 144')
        e('s_lshr_b32 s41, s40, 2')
        e('s_and_b32 s40, s40, 3')
        self.srd(20, 14, 4 * 576 * 2)
        if self.dbgt:
            self.srd(36, 16, 256)
        e('v_lshrrev_b32 v1, 4, v0')
        e('v_mul_u32_u24 v1, 9216, v1')
        e('v_and_b32 v2, 15, v0')
        e('v_lshl_add_u32 v1, v2, 4, v1')
        e('s_lshl_b32 s42, s41, 10')
        e('s_lshl_b32 s43, s40, 8')
        e('s_add_u32 s42, s42, s43')
        e(f's_add_u32 s42, s42, {POFF}')
        for i in range(1, 4):
            e(f's_add_u32 s{42+i}, s42, {36864*i}')
        e('s_mul_i32 s46, s40, 1152')
        e('s_lshl_b32 s47, s41, 7')
        e('s_add_u32 s46, s46, s47')
        e('v_lshlrev_b32 v2, 1, v0')
        e('s_waitcnt lgkmcnt(0)')
        self.make_tag()
        e('s_mov_b32 s48, 0')
        if self.dbgt:
            e('s_memrealtime s[70:71]')
        e('s_barrier')
        if self.dbgt:
            e('s_memrealtime s[72:73]')
        e('s_barrier')
        if self.dbgt:
            e('s_memrealtime s[74:75]')
        self.keep_time(60)
        e('L_ppoll:')
        for i in range(4):
            e(f'buffer_load_dwordx4 {rng(16 + 4*i)}, v1, s[28:31], s{42+i} offen sc1')
        e('s_add_u32 s48, s48, 1')
        e('s_waitcnt vmcnt(0)')
        self.check4([16, 20, 24, 28], 32)
        e('s_nop 0')
        e('s_cbranch_vccz L_pok')
        e(f's_cmp_lt_u32 s48, {SPIN}')
        e('s_cbranch_scc1 L_ppoll')
        e('L_pok:')
        self.keep_time(62)
        self.unpack_sum4([16, 20, 24, 28])
        e('s_nop 0')
        e('v_permlane32_swap_b32 v16, v18')
        e('v_permlane32_swap_b32 v17, v19')
        e('v_add_f32 v16, v16, v18')
        e('v_add_f32 v17, v17, v19')
        e('s_nop 1')
        e('v_permlane16_swap_b32 v16, v17')
        e('v_add_f32 v16, v16, v17')
        e('v_cvt_pk_bf16_f32 v16, v16, v16')
        e('buffer_store_short v16, v2, s[20:23], s46 offen')
        e('s_cmp_lg_u32 s2, 144')
        e('s_cbranch_scc1 L_rdone')
        e('v_mov_b32 v4, s34')
        e('v_mov_b32 v6, 0')
        e('s_mov_b64 exec, 1')
        e('buffer_store_dword v4, v6, s[28:31], 0 offen')
        if self.dbgt:
            e('s_memrealtime s[76:77]')
            e('s_waitcnt lgkmcnt(0)')
            for i, r in enumerate((70, 72, 74, 76)):
                e(f's_sub_u32 s{r}, s{r}, s68')
                e(f'v_mov_b32 v{8+i}, s{r}')
            e('buffer_store_dwordx4 v[8:11], v6, s[36:39], 0 offen sc1')
            if self.enc >= 0:
                e('s_mov_b32 s78, 8000')
                if self.enc > 0:
                    e(f's_add_u32 s78, s78, s{(70, 72, 74, 76)[self.enc - 1]}')
                e('L_enc:')
                e('s_memrealtime s[76:77]')
                e('s_waitcnt lgkmcnt(0)')
                e('s_sub_u32 s76, s76, s68')
                e('s_cmp_lt_u32 s76, s78')
                e('s_cbranch_scc1 L_enc')
        e('s_mov_b64 exec, -1')
        e('L_rdone:')
        if self.stamps:
            self.keep_time(64)
            for k, sr in enumerate((60, 62, 64)):
                self.flush_time(12 + k, sr)
        e('s_endpgm')

    def build(self):
        e = self.e
        e('.amdgcn_target "amdgcn-amd-amdhsa--gfx950"')
        e('.text')
        e(f'.globl {NAME}')
        e('.p2align 8')
        e(f'.type {NAME},@function')
        e(f'{NAME}:')
        e('s_cmp_ge_u32 s2, 256')
        e('s_cbranch_scc1 L_end')
        self.keep_time(58)
        if self.dbgt:
            e('s_memrealtime s[68:69]')
        e('s_load_dwordx16 s[4:19], s[0:1], 0')
        e('v_lshrrev_b32 v1, 6, v0')
        e('v_and_b32 v0, 63, v0')
        e('v_readfirstlane_b32 s3, v1')
        e('s_cmp_eq_u32 s3, 4')
        e('s_cbranch_scc1 L_helper')
        e('s_cmp_eq_u32 s3, 5')
        e('s_cbranch_scc1 L_wave5')
        self.stream()
        e('L_helper:')
        self.helper()
        e('L_wave5:')
        self.wave5()
        e('L_end:')
        e('s_endpgm')
        e('L_codeend:')
        nv = 256 if self.stamps else 248
        e('.section .rodata,"a"')
        e('.p2align 6')
        e(f'.amdhsa_kernel {NAME}')
        e(f'  .amdhsa_next_free_vgpr {nv}')
        e('  .amdhsa_next_free_sgpr 96')
        e(f'  .amdhsa_accum_offset {nv}')
        e('  .amdhsa_group_segment_fixed_size 0')
        e('  .amdhsa_kernarg_size 64')
        e('  .amdhsa_user_sgpr_count 2')
        e('  .amdhsa_user_sgpr_kernarg_segment_ptr 1')
        e('  .amdhsa_system_sgpr_workgroup_id_x 1')
        e('.end_amdhsa_kernel')
        errs = check([l.lstrip() if l.lstrip().startswith('.') else l for l in self.o])
        for x in errs:
            print('HAZARD', x, file=sys.stderr)
        txt = HEADER + f'; @launch grid=(256,1,1) block=(384,1,1) lds={LDS_BYTES}\n' + '\n'.join(self.o) + '\n'
        return txt, errs


if __name__ == '__main__':
    kw = {}
    out = sys.argv[1]
    for a in sys.argv[2:]:
        k, v = a.split('=')
        kw[k] = int(v)
    txt, errs = G(**kw).build()
    open(out, 'w').write(txt)
    sys.exit(1 if errs else 0)
```

```python
import sys, struct
from hazard import check

NAME = "standalone__gqa_block_cached__decode_kernel"

HEADER = """; Kernarg layout for this problem (64 bytes, ptrs only, base s[0:1]):
"""

PBASE = 0x100000
POFF = 0x80000
WSWIN = 0x10000000
STAMP0 = 0x10000000
STAMP1 = 0x10100000

L_WQ = 0x0000
L_WO = 0x5000
L_A = 0x0000
L_Q = 0xD000
L_ML = 0xD200
L_O = 0xD400
LDS_BYTES = 0xE400

def f2u(x):
    return struct.unpack('<I', struct.pack('<f', x))[0]

SCALE = f2u(128 ** -0.5 * 1.4426950408889634)
SPIN = 1 << 20
T_WO, T_TR, T_A, T_P, T_OL, T_AW = 184, 186, 188, 189, 190, 191


class G:
    def __init__(self, D=5, LV=16, stamps=False, D0=None, dbgt=0, kf=1, vf=1, pf=1, enc=-1, prio=3, slp=64, qslp=8, pre=2, dfn=0, d2=16, qd=64, clr=1, abl=0, kfirst=0, wqp=0, mld=0, wod=1, dper=0, il=0, pslp=0, rslp=0, PS=8192, clk=0, tau=1094, toff=200, dh=7):
        self.o = []
        self.D = D
        self.D0 = D0 or D
        self.LV = LV
        self.stamps = stamps
        self.dbgt = dbgt
        FL = ['', ' nt', ' sc1', ' sc1 nt', ' sc0 sc1', ' sc0 sc1 nt', ' sc0', ' sc0 nt']
        self.kf, self.vf = FL[kf], FL[vf]
        self.pf = pf
        self.enc = enc
        self.prio = prio
        self.slp = slp
        self.qslp = qslp
        self.pre = pre
        self.qd = qd
        self.abl = abl
        self.mld = mld
        self.dper = dper
        self.il = il
        self.PS = PS
        self.clk, self.tau, self.toff, self.dh = clk, tau, toff, dh
        self.pslp = pslp
        self.rslp = rslp
        self.wod = wod
        self.kfirst = kfirst
        self.wqp = wqp
        self.clr = clr
        self.dfn = dfn
        self.d2 = d2

    def e(self, s):
        self.o.append(s if s.endswith(':') or s.startswith('.') or s.startswith(';') else '    ' + s)

    def stamp(self, idx, sbase=80):
        if not self.stamps:
            return
        e = self.e
        e('s_memrealtime s[80:81]')
        e(f's_add_u32 s82, s18, {STAMP1 + idx * 8}')
        e('s_addc_u32 s83, s19, 0')
        e('s_lshl_b32 s84, s2, 8')
        e('s_waitcnt lgkmcnt(0)')
        e('v_mov_b32 v250, s84')
        e('v_mov_b32 v252, s80')
        e('v_mov_b32 v253, s81')
        e('s_mov_b64 s[56:57], exec')
        e('s_mov_b64 exec, 1')
        e('global_store_dwordx2 v250, v[252:253], s[82:83]')
        e('s_mov_b64 exec, s[56:57]')

    def keep_time(self, sreg):
        if self.stamps:
            self.e(f's_memrealtime s[{sreg}:{sreg+1}]')

    def flush_time(self, idx, sreg):
        if not self.stamps:
            return
        e = self.e
        e(f's_add_u32 s82, s18, {STAMP1 + idx * 8}')
        e('s_addc_u32 s83, s19, 0')
        e('s_lshl_b32 s84, s2, 8')
        e('s_waitcnt lgkmcnt(0)')
        e('v_mov_b32 v250, s84')
        e(f'v_mov_b32 v252, s{sreg}')
        e(f'v_mov_b32 v253, s{sreg+1}')
        e('s_mov_b64 s[56:57], exec')
        e('s_mov_b64 exec, 1')
        e('global_store_dwordx2 v250, v[252:253], s[82:83]')
        e('s_mov_b64 exec, s[56:57]')

    def srd(self, d, base, size, add=None):
        e = self.e
        if add is None:
            e(f's_mov_b32 s{d}, s{base}')
            e(f's_mov_b32 s{d+1}, s{base+1}')
        else:
            e(f's_add_u32 s{d}, s{base}, {add}')
            e(f's_addc_u32 s{d+1}, s{base+1}, 0')
        e(f's_mov_b32 s{d+2}, {size:#x}')
        e(f's_mov_b32 s{d+3}, 0x20000')

    def stream(self):
        e, D, LV = self.e, self.D, 16
        vK, vV = 1, 2
        QB = [4, 8]
        DT = [12, 16]
        T, X = 20, 21
        A = 24
        MK = 28
        OA = 32
        M, L, T2, T3 = 36, 37, 38, 39
        S = 40
        RING = 56
        VP = 184
        rng = lambda r: f'v[{r}:{r+3}]'
        kslot = lambda n: RING + 4 * (n % 32)
        vslot = lambda v: VP + 4 * v if v < 16 else RING + 4 * ((v - 16) % 32)
        kpos = lambda n: 16 + n
        vpos = lambda v: v if v < 16 else 128 + v
        st = {'issued': -1, 'landed': -1}

        def need_landed(x):
            if x > st['landed']:
                e(f's_waitcnt vmcnt({st["issued"] - x})')
                st['landed'] = x

        lab = [0]

        def clk_step():
            e('s_waitcnt lgkmcnt(0)')
            e('s_sub_u32 s86, s88, s85')
            e('s_mul_i32 s86, s86, 10')
            e('s_cmp_gt_u32 s86, s87')
            e('s_cselect_b32 vcc_lo, 1, 0')
            e(f's_add_u32 s87, s87, {self.tau}')
            e('s_memrealtime s[88:89]')

        def gate(pos, d):
            if self.clk and st.get('adapt') and d == D:
                lab[0] += 1
                e(f's_cbranch_vccnz L_dg{lab[0]}')
                e(f's_waitcnt vmcnt({D-1})')
                e(f'L_dg{lab[0]}:')
                d = self.dh
            if self.dper and d == D and pos % self.dper == 0:
                d = D + 1
            if pos >= d:
                e(f's_waitcnt vmcnt({d-1})')
                st['landed'] = max(st['landed'], pos - d)
            st['issued'] = pos

        def kissue(n, d=None):
            gate(kpos(n), d or D)
            e(f'buffer_load_dwordx4 {rng(kslot(n))}, v{vK}, s[20:23], s28 offen offset:{(n % 4) * 1024}{self.kf}')
            if n % 4 == 3:
                e('s_add_u32 s28, s28, 0x4000')

        def vissue(v, d=None):
            gate(vpos(v), d or D)
            e(f'buffer_load_dwordx4 {rng(vslot(v))}, v{vV}, s[24:27], s33 offen offset:{(v % 4) * 1024}{self.vf}')
            if v % 4 == 3:
                e('s_add_u32 s33, s33, 0x4000')

        def kadds(pair, sreg):
            d = DT[pair & 1]
            i = pair & 3
            e(f'v_add_f32_dpp v{T}, v{d + (i+1) % 4}, v{d + i} row_ror:12 row_mask:0xf bank_mask:0xf')
            e(f'v_add_f32_dpp v{T}, v{d + (i+2) % 4}, v{T} row_ror:8 row_mask:0xf bank_mask:0xf')
            e(f'v_add_f32_dpp v{sreg}, v{d + (i+3) % 4}, v{T} row_ror:4 row_mask:0xf bank_mask:{1 << i:#x}')

        def kmfma(n):
            d = DT[(n >> 1) & 1]
            c = '0' if n % 2 == 0 else rng(d)
            e(f'v_mfma_f32_16x16x32_bf16 {rng(d)}, {rng(kslot(n))}, {rng(QB[n & 1])}, {c}')

        def shift4():
            for i in range(12):
                e(f'v_mov_b32 v{S+i}, v{S+i+4}')

        def vprep(pn, yreg):
            i = pn & 7
            e(f'v_mov_b32_dpp v{X}, v{yreg} row_newbcast:{2*i} row_mask:0xf bank_mask:0x3')
            e(f'v_mov_b32_dpp v{X}, v{yreg} row_newbcast:{2*i+1} row_mask:0xf bank_mask:0xc')
            for r in range(4):
                e(f'v_and_b32 v{A+r}, v{X}, v{MK+r}')

        def vmfma(v, first=False):
            c = '0' if first else rng(OA)
            e(f'v_mfma_f32_16x16x32_bf16 {rng(OA)}, {rng(A)}, {rng(vslot(v))}, {c}')

        e(f'v_lshlrev_b32 v{vV}, 4, v0')
        e('s_lshl_b32 s31, s2, 19')
        e('s_lshl_b32 s33, s3, 12')
        e('s_lshl_b32 s28, s3, 12')
        if self.prio:
            e(f's_setprio {self.prio}')
        e('s_waitcnt lgkmcnt(0)')
        self.keep_time(70)
        if self.clk:
            e('s_mov_b32 s85, s88')
        self.srd(24, 8, 0x80000, add='s31')
        for v in range(min(self.D0, 16)):
            vissue(v, d=self.D0)
        e('s_load_dword s34, s[18:19], 0')
        self.srd(20, 6, 0x80000, add='s31')
        e('v_lshrrev_b32 v3, 4, v0')
        e('v_bfe_u32 v4, v0, 2, 2')
        e('v_and_b32 v5, 3, v0')
        e('v_lshlrev_b32 v3, 6, v3')
        e('v_lshlrev_b32 v4, 8, v4')
        e('v_lshlrev_b32 v5, 4, v5')
        e(f'v_add3_u32 v{vK}, v3, v4, v5')
        e(f's_mov_b32 s30, {SCALE:#x}')
        e('v_lshrrev_b32 v3, 3, v0')
        e('v_xor_b32 v3, v3, v0')
        e('v_and_b32 v3, 1, v3')
        e('v_lshlrev_b32 v3, 4, v3')
        e('v_mov_b32 v4, 0xffff')
        e('v_lshlrev_b32 v3, v3, v4')
        e('v_bfe_u32 v4, v0, 1, 2')
        for r in range(4):
            e(f'v_cmp_eq_u32 vcc, {r}, v4')
            e('s_nop 1')
            e(f'v_cndmask_b32 v{MK+r}, 0, v3, vcc')
        e('v_and_b32 v3, 1, v0')
        e('v_lshlrev_b32 v3, 8, v3')
        e('v_lshrrev_b32 v4, 2, v0')
        e(f'v_lshl_add_u32 v{T2}, v4, 4, v3')
        e('v_and_b32 v3, 2, v0')
        e('v_cmp_ne_u32 vcc, 0, v3')
        for v in range(min(self.D0, 16), 16):
            vissue(v, d=self.D0)
            if v == self.D0:
                self.keep_time(72)
        self.keep_time(76)
        for n in range(32):
            kissue(n, d=self.D0 + max(0, n - (31 - self.pre)))
            if n == 8:
                self.keep_time(78)
        self.keep_time(60)
        e('s_barrier')
        e(f'ds_read_b128 {rng(DT[0])}, v{T2} offset:{L_Q}')
        e('s_mov_b32 s29, 0')
        e(f's_waitcnt lgkmcnt(0) vmcnt({min(self.D0, 30)})')
        self.keep_time(62)
        self.make_tag()
        for r in range(4):
            e(f'v_cndmask_b32 v{QB[1]+r}, 0, v{DT[0]+r}, vcc')
            e(f'v_cndmask_b32 v{QB[0]+r}, v{DT[0]+r}, 0, vcc')
        e('s_nop 1')
        if self.clk:
            e('s_mov_b64 vcc, 0')
            e('s_memrealtime s[88:89]')
            e(f's_mov_b32 s87, {self.toff * 10 + 6 * self.tau}')
            st['adapt'] = True
        self.align()
        e('L_kloop:')
        for p in range(16):
            n = 2 * p
            if self.clk and p % 4 == 3:
                clk_step()
            kmfma(n)
            kissue(n + 32)
            kmfma(n + 1)
            kadds((p - 1) % 16, S + 12 + (((p - 1) % 16) >> 2))
            if p == 0:
                shift4()
            kissue(n + 33)
        e('s_add_u32 s29, s29, 1')
        e('s_cmp_lt_u32 s29, 3')
        e('s_cbranch_scc1 L_kloop')
        nv = 16
        st['issued'], st['landed'] = kpos(127), kpos(127) - max(D + 1, self.dh if self.clk else 0)
        for p in range(16):
            n = 2 * p
            need_landed(kpos(96 + n + 1))
            kmfma(n)
            kmfma(n + 1)
            e('s_nop 0')
            kadds((p - 1) % 16, S + 12 + (((p - 1) % 16) >> 2))
            if p == 0:
                shift4()
            if p % 3 == 0:
                vissue(nv); nv += 1
            else:
                e('s_nop 1')
        e('s_nop 1')
        kadds(15, S + 15)
        e(f'v_max3_f32 v{M}, v{S}, v{S+1}, v{S+2}')
        e(f'v_max3_f32 v{T}, v{S+3}, v{S+4}, v{S+5}')
        for i in range(6, 14, 4):
            e(f'v_max3_f32 v{M}, v{M}, v{S+i}, v{S+i+1}')
            e(f'v_max3_f32 v{T}, v{T}, v{S+i+2}, v{S+i+3}')
        e(f'v_max3_f32 v{M}, v{M}, v{S+14}, v{S+15}')
        e(f'v_max_f32 v{M}, v{M}, v{T}')

        def allreduce(reg, op):
            for k in (2, 4, 8):
                e('s_nop 1')
                e(f'{op}_dpp v{reg}, v{reg}, v{reg} row_ror:{k} row_mask:0xf bank_mask:0xf')
            for sw in ('v_permlane16_swap_b32', 'v_permlane32_swap_b32'):
                e(f'v_mov_b32 v{T}, v{reg}')
                e('s_nop 1')
                e(f'{sw} v{reg}, v{T}')
                e(f'{op} v{reg}, v{reg}, v{T}')
        allreduce(M, 'v_max_f32')
        e(f'v_mul_f32 v{M}, s30, v{M}')
        vissue(nv); nv += 1
        for i in range(16):
            e(f'v_fma_f32 v{S+i}, v{S+i}, s30, -v{M}')
            e(f'v_exp_f32 v{S+i}, v{S+i}')
            if i == 10:
                vissue(nv); nv += 1
        e(f'v_add_f32 v{L}, v{S}, v{S+1}')
        for i in range(2, 16):
            e(f'v_add_f32 v{L}, v{L}, v{S+i}')
        vissue(nv); nv += 1
        for i in range(16):
            t = T2 if i & 1 else T3
            e(f'v_mov_b32_dpp v{t}, v{S+i} quad_perm:[1,0,3,2] row_mask:0xf bank_mask:0xf')
            e(f'v_cvt_pk_bf16_f32 v{S+i}, v{S+i}, v{t}')
        vissue(nv); nv += 1
        allreduce(L, 'v_add_f32')
        e(f'v_lshlrev_b32 v{T2}, 3, v0')
        e('s_lshl_b32 s31, s3, 4')
        e(f'v_add_u32 v{T2}, s31, v{T2}')
        e('s_mov_b64 exec, 3')
        e(f'ds_write_b64 v{T2}, v[{M}:{L}] offset:{L_ML}')
        e('s_mov_b64 exec, -1')
        self.keep_time(64)
        for pn in range(16):
            vprep(pn, S + (pn >> 3))
            if pn % 3 == 0 and pn < 15:
                vissue(nv); nv += 1
            else:
                e('s_nop 1')
            vmfma(pn, first=(pn == 0))
        assert nv <= 32, nv
        self.tail_setup()
        while nv < 32:
            vissue(nv); nv += 1
        e('s_mov_b32 s29, 0')
        if self.clk:
            e('s_waitcnt lgkmcnt(0)')
            e('s_memrealtime s[88:89]')
            e(f's_mov_b32 s87, {self.toff * 10 + 20 * self.tau}')
        else:
            e('s_mov_b64 vcc, 0')
        self.align()
        e('L_vloop:')
        sw_it, sw_i = divmod(96 - self.dfn, 32)
        for i in range(32):
            p2 = 16 + i
            if self.dfn and i == sw_i:
                e(f's_cmp_ge_u32 s29, {sw_it}')
                e('s_cselect_b32 vcc_lo, 1, 0')
            if self.clk and i % 8 == 7:
                clk_step()
            vprep(p2, S + (p2 >> 3))
            if self.dfn:
                e(f's_cbranch_vccnz L_g{i}')
                e(f's_waitcnt vmcnt({D-1})')
                e(f'L_g{i}:')
                vissue(32 + i, d=self.d2)
            else:
                vissue(32 + i)
            vmfma(p2)
        shift4()
        e('s_add_u32 s29, s29, 1')
        e('s_cmp_lt_u32 s29, 3')
        e('s_cbranch_scc1 L_vloop')
        self.keep_time(66)
        for i in range(8):
            e('s_mov_b32 m0, s46')
            e('s_add_u32 s46, s46, 1024')
            e(f'buffer_load_dwordx4 v{T_WO + ((i >> 1) & 1)}, s[36:39], s45 offen nt lds')
            e('s_add_u32 s45, s45, 9216')
        for i in range(LV):
            p2 = 16 + i
            vprep(p2, S + (p2 >> 3))
            if LV - 1 - i < (self.d2 if self.dfn else max(D + 1, self.dh if self.clk else 0)):
                e(f's_waitcnt vmcnt({LV - 1 - i + 8})')
                e('s_nop 0')
            else:
                e('s_nop 1')
            vmfma(p2)
        e('s_cmp_ge_u32 s2, 144')
        e('s_nop 6')
        e(f'ds_write_b128 v{T_OL}, {rng(OA)} offset:{L_O}')
        e('s_waitcnt lgkmcnt(0)')
        self.keep_time(68)
        e('s_barrier')
        e('s_cbranch_scc1 L_notproj')
        BW, AO, PO = 56, 88, 120
        self.keep_time(50)
        for j in range(2):
            e(f'buffer_load_dwordx4 {rng(PO + 4*j)}, v{vV}, s[40:43], s44 offen offset:{1024*j} sc1')
        e('s_mov_b32 s48, 0')
        e('s_waitcnt vmcnt(2)')
        e('s_barrier')
        for kk in range(8):
            gp = kk >> 1
            for hf in range(2):
                row = 64 * (kk & 1) + 8 * hf + 4 * (gp & 1)
                r = BW + kk * 4 + 2 * hf
                e(f'ds_read_b64_tr_b16 v[{r}:{r+1}], v{T_TR + (gp >> 1)} offset:{L_WO + row * 128}')
        e('s_branch L_ochk')
        self.align()
        e('L_opoll:')
        if self.pslp:
            e(f's_sleep {self.pslp}')
        for j in range(2):
            e(f'buffer_load_dwordx4 {rng(PO + 4*j)}, v{vV}, s[40:43], s44 offen offset:{1024*j} sc1')
        e('L_ochk:')
        e('s_add_u32 s48, s48, 1')
        e(f's_cmp_ge_u32 s48, {SPIN}')
        e('s_cbranch_scc1 L_ook')
        e('s_waitcnt vmcnt(1)')
        e(f'v_max3_u32 v20, v{PO}, v{PO+1}, v{PO+2}')
        e('s_waitcnt vmcnt(0)')
        e(f'v_max3_u32 v21, v{PO+4}, v{PO+5}, v{PO+6}')
        e(f'v_max3_u32 v20, v20, v{PO+3}, v{PO+7}')
        e('v_max_u32 v20, v20, v21')
        e('v_cmp_eq_u32 vcc, -1, v20')
        e('s_and_b64 exec, exec, vcc')
        e('s_cbranch_scc1 L_opoll')
        e('L_ook:')
        e('s_mov_b64 exec, -1')
        e(f'ds_write_b128 v{T_AW}, {rng(PO)} offset:{L_A}')
        e(f'ds_write_b128 v{T_AW}, {rng(PO+4)} offset:{L_A + 2*528}')
        e('s_waitcnt lgkmcnt(0)')
        e('s_barrier')
        self.keep_time(52)
        for kk in range(8):
            e(f'ds_read_b128 {rng(AO + 4*kk)}, v{T_A} offset:{L_A + 64*kk}')
        for kk in range(8):
            c = '0' if kk == 0 else 'v[12:15]'
            e(f's_waitcnt lgkmcnt({7-kk})')
            e(f'v_mfma_f32_16x16x32_bf16 v[12:15], {rng(AO + 4*kk)}, {rng(BW + 4*kk)}, {c}')
        e('v_mov_b32 v17, s34')
        e('s_nop 6')
        e('v_add_f32 v12, v12, v13')
        e('v_add_f32 v14, v14, v15')
        e('v_add_f32 v16, v12, v14')
        e(f'buffer_store_dwordx2 v[16:17], v{T_P}, s[40:43], s47 offen sc1')
        self.keep_time(54)
        if self.stamps:
            e('s_branch L_sflush')
        e('s_endpgm')
        e('L_notproj:')
        e('s_cmp_ge_u32 s2, 180')
        e('s_cbranch_scc1 ' + ('L_sflush' if self.stamps else 'L_end'))
        if self.dbgt:
            e('s_memrealtime s[74:75]')
        self.keep_time(50)
        e('s_mov_b32 s48, 0')
        e(f's_mov_b32 s38, {4 * 576 * 2}')
        e('s_and_b32 s45, s35, 3')
        e('s_mul_i32 s45, s45, 1152')
        e('s_lshr_b32 s31, s35, 2')
        e('s_lshl_b32 s31, s31, 7')
        e('s_add_u32 s45, s45, s31')
        e('s_lshl_b32 s31, s3, 5')
        e('s_add_u32 s45, s45, s31')
        self.align()
        e('L_ppoll:')
        if self.rslp:
            e(f's_sleep {self.rslp}')
        e(f'buffer_load_dwordx4 v[12:15], v{T_A}, s[40:43], s44 offen sc1')
        e(f'buffer_load_dwordx4 v[16:19], v{T_A}, s[40:43], s47 offen sc1')
        e('s_add_u32 s48, s48, 1')
        e(f's_cmp_ge_u32 s48, {SPIN}')
        e('s_cbranch_scc1 L_pok')
        e('s_waitcnt vmcnt(1)')
        e('v_xor_b32 v20, s34, v13')
        e('v_xor_b32 v21, s34, v15')
        e('s_waitcnt vmcnt(0)')
        e('v_xor_b32 v22, s34, v17')
        e('v_xor_b32 v23, s34, v19')
        e('v_or3_b32 v20, v20, v21, v22')
        e('v_or_b32 v20, v20, v23')
        e('v_cmp_ne_u32 vcc, 0, v20')
        e('s_and_b64 exec, exec, vcc')
        e('s_cbranch_scc1 L_ppoll')
        e('L_pok:')
        e('s_mov_b64 exec, -1')
        e('s_waitcnt vmcnt(0)')
        self.keep_time(52)
        e('v_add_f32 v12, v12, v16')
        e('v_add_f32 v14, v14, v18')
        e('s_nop 0')
        e('v_add_f32_dpp v12, v12, v12 row_ror:8 row_mask:0xf bank_mask:0xf')
        e('v_add_f32_dpp v14, v14, v14 row_ror:8 row_mask:0xf bank_mask:0xf')
        e('s_nop 1')
        e('v_permlane16_swap_b32 v12, v14')
        e('v_add_f32 v12, v12, v14')
        e('v_mov_b32 v14, v12')
        e('s_nop 1')
        e('v_permlane32_swap_b32 v12, v14')
        e('v_add_f32 v12, v12, v14')
        e('v_cvt_pk_bf16_f32 v12, v12, v12')
        e('s_mov_b64 exec, 0x00ff00ff')
        e(f'buffer_store_short v12, v{T_P}, s[36:39], s45 offen')
        self.keep_time(54)
        e('s_add_u32 s48, s2, s3')
        e('s_cmp_lg_u32 s48, 144')
        e('s_cbranch_scc1 ' + ('L_sflush' if self.stamps else 'L_end'))
        e('v_mov_b32 v4, s34')
        e('v_mov_b32 v6, 0')
        e('s_mov_b64 exec, 1')
        e('buffer_store_dword v4, v6, s[40:43], 0 offen')
        if self.dbgt:
            self.srd(52, 16, 256)
            e('s_memrealtime s[76:77]')
            e('s_waitcnt lgkmcnt(0)')
            for i, r in enumerate((70, 72, 74, 76)):
                e(f's_sub_u32 s{r}, s{r}, s68')
                e(f'v_mov_b32 v{8+i}, s{r}')
            e('buffer_store_dwordx4 v[8:11], v6, s[52:55], 0 offen sc1')
            if self.enc >= 0:
                e('s_mov_b32 s78, 8000')
                if self.enc > 0:
                    e(f's_add_u32 s78, s78, s{(70, 72, 74, 76)[self.enc - 1]}')
                e('L_enc:')
                e('s_memrealtime s[76:77]')
                e('s_waitcnt lgkmcnt(0)')
                e('s_sub_u32 s76, s76, s68')
                e('s_cmp_lt_u32 s76, s78')
                e('s_cbranch_scc1 L_enc')
        if self.stamps:
            e('L_sflush:')
            e('s_mov_b64 exec, -1')
            e('s_cmp_lg_u32 s3, 0')
            e('s_cbranch_scc1 L_end')
            for k, sr in enumerate((58, 60, 62, 64, 66, 68)):
                self.flush_time(k, sr)
            for k, sr in ((12, 50), (13, 52), (14, 54), (16, 70), (17, 72), (15, 76), (19, 78)):
                self.flush_time(k, sr)
        e('s_endpgm')

    def tail_setup(self):
        e = self.e
        t0, t1, t2, t3 = 200, 201, 202, 203
        self.srd(40, 18, WSWIN)
        e(f'v_lshlrev_b32 v{T_OL}, 4, v0')
        e('s_lshl_b32 s31, s3, 10')
        e(f'v_add_u32 v{T_OL}, s31, v{T_OL}')
        e('s_lshl_b32 s46, s3, 13')
        e(f's_add_u32 s46, s46, {L_WO}')
        e('s_cmp_ge_u32 s2, 144')
        e('s_cbranch_scc1 L_ts_red')
        e('s_mul_i32 s35, s2, 57')
        e('s_lshr_b32 s35, s35, 9')
        e('s_mul_i32 s31, s35, 9')
        e('s_sub_u32 s31, s2, s31')
        self.srd(36, 12, 0 if self.abl & 4 else 4096 * 576 * 2)
        e('s_lshl_b32 s45, s35, 2')
        e('s_add_u32 s45, s45, s3')
        e(f's_mul_i32 s45, s45, {64 * 1152}')
        e('s_lshl_b32 s31, s31, 7')
        e('s_add_u32 s45, s45, s31')
        e(f'v_lshrrev_b32 v{t0}, 3, v0')
        e(f'v_mul_u32_u24 v{t1}, 1152, v{t0}')
        e(f'v_and_b32 v{t0}, 2, v{t0}')
        e(f'v_and_b32 v{t2}, 7, v0')
        e(f'v_xor_b32 v{t2}, v{t2}, v{t0}')
        e(f'v_lshl_add_u32 v{T_WO}, v{t2}, 4, v{t1}')
        e(f'v_xor_b32 v{t2}, 4, v{t2}')
        e(f'v_lshl_add_u32 v{T_WO+1}, v{t2}, 4, v{t1}')
        e(f'v_bfe_u32 v{t0}, v0, 3, 1')
        e(f'v_bfe_u32 v{t1}, v0, 2, 1')
        e(f'v_lshl_add_u32 v{t2}, v{t1}, 1, v{t0}')
        e(f'v_and_b32 v{t3}, 0x30, v0')
        e(f'v_lshl_add_u32 v{t3}, v{t0}, 7, v{t3}')
        e(f'v_add_u32 v{T_TR}, v{t3}, v{t2}')
        e(f'v_xor_b32 v{T_TR+1}, 1, v{T_TR}')
        e(f'v_bfe_u32 v{t0}, v0, 4, 1')
        e(f'v_lshl_add_u32 v{t0}, v{t0}, 1, v{t1}')
        e(f'v_xor_b32 v{t0}, s3, v{t0}')
        e(f'v_lshlrev_b32 v{t0}, 5, v{t0}')
        e(f'v_and_b32 v{t1}, 3, v0')
        e(f'v_lshl_add_u32 v{t0}, v{t1}, 3, v{t0}')
        e(f'v_lshl_add_u32 v{T_TR}, v{T_TR}, 7, v{t0}')
        e(f'v_lshl_add_u32 v{T_TR+1}, v{T_TR+1}, 7, v{t0}')
        e('s_lshl_b32 s44, s3, 4')
        e('s_add_u32 s44, s44, s35')
        e(f's_mul_i32 s44, s44, {self.PS}')
        e(f's_add_u32 s44, s44, {PBASE}')
        e(f'v_lshrrev_b32 v{t0}, 5, v0')
        e(f'v_lshl_add_u32 v{t0}, s3, 2, v{t0}')
        e(f'v_mul_u32_u24 v{t0}, 528, v{t0}')
        e(f'v_and_b32 v{t1}, 31, v0')
        e(f'v_lshl_add_u32 v{T_AW}, v{t1}, 4, v{t0}')
        e(f'v_and_b32 v{t0}, 15, v0')
        e(f'v_mul_u32_u24 v{t0}, 528, v{t0}')
        e(f'v_and_b32 v{t1}, 0x30, v0')
        e(f'v_add_u32 v{T_A}, v{t0}, v{t1}')
        e(f'v_and_b32 v{t0}, 15, v0')
        e(f'v_lshlrev_b32 v{t0}, 3, v{t0}')
        e(f'v_lshl_add_u32 v{T_P}, v{t1}, 5, v{t0}')
        e('s_lshl_b32 s47, s2, 11')
        e('s_lshl_b32 s31, s3, 7')
        e('s_add_u32 s47, s47, s31')
        e(f's_add_u32 s47, s47, {POFF}')
        e('s_branch L_ts_done')
        e('L_ts_red:')
        self.srd(36, 14, 0)
        e('s_mov_b32 s45, 0')
        e(f'v_mov_b32 v{T_WO}, 0')
        e(f'v_mov_b32 v{T_WO+1}, 0')
        e(f'v_mov_b32 v{T_TR}, 0')
        e(f'v_mov_b32 v{T_TR+1}, 0')
        e('s_sub_u32 s35, s2, 144')
        e(f'v_lshrrev_b32 v{t0}, 3, v0')
        e(f'v_mul_u32_u24 v{t0}, 18432, v{t0}')
        e(f'v_and_b32 v{t1}, 7, v0')
        e(f'v_lshl_add_u32 v{T_A}, v{t1}, 4, v{t0}')
        e('s_lshl_b32 s44, s35, 9')
        e('s_lshl_b32 s31, s3, 7')
        e('s_add_u32 s44, s44, s31')
        e(f's_add_u32 s44, s44, {POFF}')
        e(f's_add_u32 s47, s44, {8 * 18432}')
        e(f'v_lshrrev_b32 v{t0}, 4, v0')
        e(f'v_lshl_add_u32 v{t0}, v{t1}, 1, v{t0}')
        e(f'v_lshlrev_b32 v{T_P}, 1, v{t0}')
        e('L_ts_done:')

    def align(self):
        self.e('.p2align 3')

    def make_tag(self):
        self.e('s_add_u32 s34, s34, 0x7f4a7c15')

    def pack4(self, dst, z, vtag):
        e = self.e
        e(f'v_perm_b32 v{dst}, v{z[0]}, v{z[1]}, s90')
        e(f'v_perm_b32 v{dst+1}, v{z[1]}, v{vtag}, s91')
        e(f'v_perm_b32 v{dst+2}, v{z[2]}, v{z[3]}, s90')
        e(f'v_perm_b32 v{dst+3}, v{z[3]}, v{vtag}, s92')

    def pack_consts(self):
        e = self.e
        e('s_mov_b32 s90, 0x07060501')
        e('s_mov_b32 s91, 0x07060100')
        e('s_mov_b32 s92, 0x07060302')
        e('s_mov_b32 s93, 0x05040100')
        e('s_mov_b32 s94, 0x0706000c')

    def check4(self, pieces, tmp):
        e = self.e
        for i, p in enumerate(pieces):
            e(f'v_perm_b32 v{tmp+i}, v{p+3}, v{p+1}, s93')
        for i, p in enumerate(pieces):
            e(f'v_xor_b32 v{tmp+i}, s34, v{tmp+i}')
        e(f'v_or3_b32 v{tmp}, v{tmp}, v{tmp+1}, v{tmp+2}')
        e(f'v_or_b32 v{tmp}, v{tmp}, v{tmp+3}')
        e(f'v_cmp_ne_u32 vcc, 0, v{tmp}')

    def unpack_sum4(self, pieces):
        e = self.e
        for p in pieces:
            e(f'v_perm_b32 v{p+1}, v{p+1}, v{p}, s94')
            e(f'v_perm_b32 v{p+3}, v{p+3}, v{p+2}, s94')
            e(f'v_and_b32 v{p}, 0xffffff00, v{p}')
            e(f'v_and_b32 v{p+2}, 0xffffff00, v{p+2}')
        p0, p1, p2, p3 = pieces
        for t in range(4):
            e(f'v_add_f32 v{p0+t}, v{p0+t}, v{p1+t}')
            e(f'v_add_f32 v{p2+t}, v{p2+t}, v{p3+t}')
        for t in range(4):
            e(f'v_add_f32 v{p0+t}, v{p0+t}, v{p2+t}')

    def wait_mid(self, lab, vzero, scnt):
        e = self.e
        e(f's_mov_b32 s{scnt}, 0')
        e(f'{lab}:')
        e(f's_sleep {self.slp}')
        for w in range(4):
            e(f'ds_read_b128 v[{16 + 4*w}:{19 + 4*w}], v{vzero} offset:{L_ML + 16*w}')
        e(f's_add_u32 s{scnt}, s{scnt}, 1')
        e('s_waitcnt lgkmcnt(0)')
        self.maxu(32, range(16, 32))
        e('v_cmp_eq_u32 vcc, -1, v32')
        e('s_nop 0')
        e(f's_cbranch_vccz {lab}_ok')
        e(f's_cmp_lt_u32 s{scnt}, {SPIN}')
        e(f's_cbranch_scc1 {lab}')
        e(f'{lab}_ok:')

    def maxu(self, dst, regs):
        e = self.e
        regs = list(regs)
        e(f'v_max3_u32 v{dst}, v{regs[0]}, v{regs[1]}, v{regs[2]}')
        regs = regs[3:]
        while len(regs) >= 2:
            e(f'v_max3_u32 v{dst}, v{dst}, v{regs[0]}, v{regs[1]}')
            regs = regs[2:]
        if regs:
            e(f'v_max_u32 v{dst}, v{dst}, v{regs[0]}')

    def helper(self):
        e = self.e
        rng = lambda r: f'v[{r}:{r+3}]'
        XA = 16
        WB = 64
        DQ = 40
        e('s_lshr_b32 s40, s2, 3')
        e('s_and_b32 s41, s2, 1')
        e('s_lshl_b32 s41, s41, 5')
        e('s_add_u32 s40, s40, s41')
        e('s_bfe_u32 s35, s2, 0x20001')
        e('v_lshrrev_b32 v1, 3, v0')
        e('v_lshlrev_b32 v1, 13, v1')
        e('v_and_b32 v2, 7, v0')
        e('v_lshl_add_u32 v1, v2, 4, v1')
        e(f's_mul_i32 s42, s35, {144 * 8192}')
        e('s_lshl_b32 s41, s40, 7')
        e('s_add_u32 s42, s42, s41')
        e('v_and_b32 v2, 3, v0')
        e('v_mul_u32_u24 v2, 1152, v2')
        e('v_lshrrev_b32 v3, 4, v0')
        e('v_lshl_add_u32 v7, v3, 3, v2')
        e('v_lshl_add_u32 v2, v3, 4, v2')
        e('s_mul_i32 s43, s35, 288')
        e('s_waitcnt lgkmcnt(0)')
        e('s_load_dword s34, s[18:19], 0')
        self.srd(24, 4, 4 * 576 * 2)
        for kk in range(4):
            e(f'buffer_load_dwordx4 {rng(XA + 4*kk)}, v2, s[24:27], s43 offen offset:{kk*64}')
        e(f'buffer_load_dwordx2 v[{XA+16}:{XA+17}], v7, s[24:27], s43 offen offset:256')
        self.srd(20, 10, 576 * 4096 * 2)
        for i in range(18):
            e(f's_mov_b32 m0, {L_WQ + 1024 * i}')
            if i:
                e('s_add_u32 s42, s42, 0x10000')
            else:
                e('s_nop 0')
            if self.wqp and i >= self.wqp:
                e(f's_waitcnt vmcnt({self.wqp - 1})')
            if not self.abl & 1:
                e('buffer_load_dwordx4 v1, s[20:23], s42 offen nt lds')
        if self.pf:
            e('s_getpc_b64 s[54:55]')
            e('L_pc:')
            e(f's_sub_u32 s54, s54, L_pc-{NAME}')
            e('s_subb_u32 s55, s55, 0')
            e('v_lshlrev_b32 v14, 7, v0')
            e('global_load_dword v60, v14, s[54:55]')
            e('v_add_u32 v14, 0x2000, v14')
            e(f'v_cmp_gt_u32 vcc, L_codeend-{NAME}, v14')
            e('s_and_saveexec_b64 s[56:57], vcc')
            e('global_load_dword v61, v14, s[54:55]')
            e('s_mov_b64 exec, s[56:57]')
        self.srd(28, 18, WSWIN)
        for r in range(4):
            e(f'v_mov_b32 v{8+r}, -1')
        e('v_lshlrev_b32 v4, 4, v0')
        e('s_lshr_b32 s44, s2, 2')
        e(f's_mul_i32 s44, s44, {self.PS}')
        e(f's_add_u32 s44, s44, {PBASE}')
        e('s_and_b32 s43, s2, 3')
        e('s_lshl_b32 s45, s43, 9')
        e('s_add_u32 s45, s45, s44')
        e('s_lshl_b32 s47, s43, 8')
        e('s_add_u32 s47, s47, s44')
        e('s_mov_b64 exec, 15')
        e(f'ds_write_b128 v4, v[8:11] offset:{L_ML}')
        e('s_mov_b64 exec, -1')
        self.pack_consts()
        e('v_bfe_u32 v5, v0, 2, 2')
        e('v_lshlrev_b32 v5, 7, v5')
        e('v_and_b32 v6, 3, v0')
        e('v_lshl_add_u32 v5, v6, 3, v5')
        e('v_lshl_add_u32 v6, v3, 9, v5')
        e('v_lshl_add_u32 v5, v3, 10, v5')
        e(f's_mov_b32 s41, {16 * self.PS}')
        e('v_mul_lo_u32 v7, s41, v3')
        e('v_and_b32 v12, 15, v0')
        e('v_lshl_add_u32 v7, v12, 4, v7')
        e('s_lshr_b32 s46, s40, 2')
        e(f's_mul_i32 s46, s46, {self.PS}')
        e('s_lshl_b32 s41, s35, 10')
        e('s_add_u32 s46, s46, s41')
        e('s_and_b32 s41, s40, 3')
        e('s_lshl_b32 s41, s41, 8')
        e('s_add_u32 s46, s46, s41')
        e(f's_add_u32 s46, s46, {PBASE + 4096}')
        e('s_add_u32 s50, s44, 4096')
        e('v_and_b32 v12, 15, v0')
        e('v_lshlrev_b32 v12, 1, v12')
        e('v_lshl_add_u32 v12, v3, 7, v12')
        e('s_waitcnt lgkmcnt(0)')
        self.make_tag()
        e('v_mov_b32 v13, s34')
        self.keep_time(74)
        e('s_waitcnt vmcnt(0)')
        self.keep_time(60)
        for t in range(4):
            for kk in range(4):
                for hf in range(2):
                    r = WB + 20*t + 4*kk + 2*hf
                    e(f'ds_read_b64_tr_b16 v[{r}:{r+1}], v5 offset:{L_WQ + (32*kk + 4*hf)*128 + 32*t}')
            r = WB + 20*t + 16
            e(f'ds_read_b64_tr_b16 v[{r}:{r+1}], v6 offset:{L_WQ + 128*128 + 32*t}')
        for t in range(4):
            e(f's_waitcnt lgkmcnt({min(15, 9*(3-t))})')
            for kk in range(4):
                c = '0' if kk == 0 else rng(DQ + 4*t)
                e(f'v_mfma_f32_16x16x32_bf16 {rng(DQ + 4*t)}, {rng(XA + 4*kk)}, {rng(WB + 20*t + 4*kk)}, {c}')
        e('s_nop 3')
        for t in range(4):
            r = WB + 20*t + 16
            e(f'v_mfma_f32_16x16x16_bf16 {rng(DQ + 4*t)}, v[{XA+16}:{XA+17}], v[{r}:{r+1}], {rng(DQ + 4*t)}')
        e('s_nop 4')
        for t in range(4):
            for b in range(1, 4):
                e(f'v_mov_b32_dpp v{DQ+4*t}, v{DQ+4*t+b} quad_perm:[0,1,2,3] row_mask:{1 << b:#x} bank_mask:0xf')
        self.pack4(36, [DQ + 4*t for t in range(4)], 13)
        if not self.abl & 2:
            e('buffer_store_dwordx4 v[36:39], v7, s[28:31], s46 offen sc1')
        def clear_rec():
            e('s_mov_b32 exec_hi, 0')
            e('buffer_store_dwordx4 v[8:11], v4, s[28:31], s45 offen sc1')
            e('s_mov_b32 exec_hi, -1')
        if self.clr == 0:
            clear_rec()
        self.keep_time(62)
        e('s_mov_b32 s48, 0')
        if self.qd:
            e(f's_sleep {self.qd}')
        if self.abl & 10:
            e('s_branch L_qok')
        e('L_qpoll:')
        for k in range(4):
            e(f'buffer_load_dwordx4 {rng(16 + 4*k)}, v4, s[28:31], s50 offen offset:{1024*k} sc1')
        e('s_add_u32 s48, s48, 1')
        e('s_waitcnt vmcnt(0)')
        self.check4([16, 20, 24, 28], 32)
        e('s_nop 0')
        e('s_cbranch_vccz L_qok')
        e(f's_sleep {self.qslp}')
        e(f's_cmp_lt_u32 s48, {SPIN}')
        e('s_cbranch_scc1 L_qpoll')
        e('L_qok:')
        self.unpack_sum4([16, 20, 24, 28])
        e('v_cvt_pk_bf16_f32 v20, v16, v17')
        e('v_cvt_pk_bf16_f32 v21, v18, v19')
        e(f'ds_write_b16 v12, v20 offset:{L_Q}')
        e(f'ds_write_b16_d16_hi v12, v20 offset:{L_Q + 32}')
        e(f'ds_write_b16 v12, v21 offset:{L_Q + 64}')
        e(f'ds_write_b16_d16_hi v12, v21 offset:{L_Q + 96}')
        e('s_waitcnt lgkmcnt(0)')
        self.keep_time(64)
        e('s_barrier')
        e('v_mov_b32 v5, 0')
        if self.clr == 1:
            clear_rec()
        self.wait_mid('L_mlwait', 5, 48)
        e('s_waitcnt vmcnt(0)')
        for h in range(2):
            m = [16 + 4*w + 2*h for w in range(4)]
            d = 36 + 4*h
            e(f'v_max3_f32 v{d}, v{m[0]}, v{m[1]}, v{m[2]}')
            e(f'v_max_f32 v{d}, v{d}, v{m[3]}')
            for w in range(4):
                e(f'v_sub_f32 v{44+w}, v{m[w]}, v{d}')
                e(f'v_exp_f32 v{44+w}, v{44+w}')
            e(f'v_mov_b32 v{d+1}, s34')
            e(f'v_mul_f32 v{d+2}, v44, v{m[0]+1}')
            for w in range(1, 4):
                e(f'v_fmac_f32 v{d+2}, v{44+w}, v{m[w]+1}')
            e(f'v_mov_b32 v{d+3}, s34')
        e('s_mov_b64 exec, 1')
        e('buffer_store_dwordx4 v[36:39], v5, s[28:31], s47 offen offset:2048 sc1')
        e('buffer_store_dwordx4 v[40:43], v5, s[28:31], s47 offen offset:2064 sc1')
        e('s_mov_b32 s48, 0')
        for _ in range(self.mld):
            e('s_sleep 127')
        e('L_gml:')
        e(f's_sleep {self.slp}')
        for s_ in range(4):
            for h in range(2):
                e(f'buffer_load_dwordx4 {rng(64 + 8*s_ + 4*h)}, v5, s[28:31], s44 offen offset:{2048 + 256*s_ + 16*h} sc1')
        e('s_add_u32 s48, s48, 1')
        e('s_waitcnt vmcnt(0)')
        e('v_mov_b32 v32, 0')
        for i in range(8):
            e(f'v_xor_b32 v33, s34, v{65 + 4*i}')
            e(f'v_xor_b32 v34, s34, v{67 + 4*i}')
            e('v_or3_b32 v32, v32, v33, v34')
        e('v_cmp_ne_u32 vcc, 0, v32')
        e('s_nop 0')
        e('s_cbranch_vccz L_gmlok')
        e(f's_cmp_lt_u32 s48, {SPIN}')
        e('s_cbranch_scc1 L_gml')
        e('L_gmlok:')
        for h in range(2):
            m = [64 + 8*s_ + 4*h for s_ in range(4)]
            e(f'v_max3_f32 v36, v{m[0]}, v{m[1]}, v{m[2]}')
            e(f'v_max_f32 v36, v36, v{m[3]}')
            for s_ in range(4):
                e(f'v_sub_f32 v{44+s_}, v{m[s_]}, v36')
                e(f'v_exp_f32 v{44+s_}, v{44+s_}')
            e('s_nop 0')
            e(f'v_mul_f32 v37, v44, v{m[0]+2}')
            for s_ in range(1, 4):
                e(f'v_fmac_f32 v37, v{44+s_}, v{m[s_]+2}')
            e('v_rcp_f32 v37, v37')
            for w in range(4):
                e(f'v_sub_f32 v{44+w}, v{16 + 4*w + 2*h}, v36')
                e(f'v_exp_f32 v{44+w}, v{44+w}')
            e('s_nop 0')
            for w in range(4):
                e(f'v_mul_f32 v{44+w}, v{44+w}, v37')
            e('s_nop 0')
            for w in range(4):
                e(f'v_readfirstlane_b32 s{50 + 2*w + h}, v{44+w}')
        e('s_cmp_ge_u32 s2, 144')
        e('s_cbranch_scc1 L_wrdy_ok')
        e('s_mov_b64 exec, 0xffff')
        e('s_mul_i32 s40, s2, 57')
        e('s_lshr_b32 s40, s40, 9')
        e(f's_mul_i32 s40, s40, {self.PS}')
        e(f's_add_u32 s40, s40, {PBASE + 2052}')
        e(f's_mov_b32 s41, {16 * self.PS}')
        e('v_lshrrev_b32 v6, 2, v0')
        e('v_mul_lo_u32 v6, s41, v6')
        e('v_and_b32 v7, 3, v0')
        e('v_lshl_add_u32 v6, v7, 8, v6')
        e('s_mov_b32 s48, 0')
        e('L_wrdy:')
        e(f's_sleep {self.slp}')
        e('buffer_load_dword v8, v6, s[28:31], s40 offen sc1')
        e('s_add_u32 s48, s48, 1')
        e('s_waitcnt vmcnt(0)')
        e('v_cmp_ne_u32 vcc, s34, v8')
        e('s_nop 0')
        e('s_cbranch_vccz L_wrdy_ok')
        e(f's_cmp_lt_u32 s48, {SPIN}')
        e('s_cbranch_scc1 L_wrdy')
        e('L_wrdy_ok:')
        e('s_mov_b64 exec, -1')
        e('v_lshlrev_b32 v5, 3, v0')
        e('s_mov_b32 s48, 0x55555555')
        e('s_setprio 3')
        self.keep_time(66)
        e('s_barrier')
        self.keep_time(68)
        for w in range(4):
            e(f'ds_read_b128 {rng(16 + 4*w)}, v4 offset:{L_O + 1024*w}')
        for w in range(4):
            e(f's_waitcnt lgkmcnt({3-w})')
            for r in range(4):
                if w == 0:
                    e(f'v_mul_f32 v{32+r}, s{50 + (r & 1)}, v{16+r}')
                else:
                    e(f'v_fmac_f32 v{32+r}, s{50 + 2*w + (r & 1)}, v{16 + 4*w + r}')
        e('v_cvt_pk_bf16_f32 v36, v32, v34')
        e('v_cvt_pk_bf16_f32 v37, v33, v35')
        e('v_min_u32 v36, 0xfffffffe, v36')
        e('v_min_u32 v37, 0xfffffffe, v37')
        e('s_nop 0')
        e('v_mov_b32_dpp v38, v36 quad_perm:[1,1,3,3] row_mask:0xf bank_mask:0xf')
        e('v_mov_b32_dpp v39, v37 quad_perm:[1,1,3,3] row_mask:0xf bank_mask:0xf')
        e('s_mov_b32 exec_lo, s48')
        e('s_mov_b32 exec_hi, s48')
        e('buffer_store_dwordx4 v[36:39], v5, s[28:31], s45 offen sc1')
        self.keep_time(70)
        e('s_cmp_ge_u32 s2, 144')
        e('s_cbranch_scc1 L_hdone')
        e('s_barrier')
        e('s_barrier')
        e('L_hdone:')
        if self.stamps:
            e('s_mov_b64 exec, -1')
            for k, sr in enumerate((60, 62, 64, 66, 68, 70)):
                self.flush_time(6 + k, sr)
            self.flush_time(18, 74)
        e('s_endpgm')

    def build(self):
        e = self.e
        e('.amdgcn_target "amdgcn-amd-amdhsa--gfx950"')
        e('.text')
        e(f'.globl {NAME}')
        e('.p2align 8')
        e(f'.type {NAME},@function')
        e(f'{NAME}:')
        e('s_cmp_ge_u32 s2, 256')
        e('s_cbranch_scc1 L_end')
        self.keep_time(58)
        if self.dbgt:
            e('s_memrealtime s[68:69]')
        if self.clk:
            e('s_memrealtime s[88:89]')
        e('s_load_dwordx16 s[4:19], s[0:1], 0')
        e('v_lshrrev_b32 v1, 6, v0')
        e('v_and_b32 v0, 63, v0')
        e('v_readfirstlane_b32 s3, v1')
        e('s_cmp_eq_u32 s3, 4')
        e('s_cbranch_scc1 L_helper')
        self.stream()
        e('L_helper:')
        self.helper()
        e('L_end:')
        e('s_endpgm')
        e('L_codeend:')
        nv = 256 if self.stamps else 248
        e('.section .rodata,"a"')
        e('.p2align 6')
        e(f'.amdhsa_kernel {NAME}')
        e(f'  .amdhsa_next_free_vgpr {nv}')
        e('  .amdhsa_next_free_sgpr 96')
        e(f'  .amdhsa_accum_offset {nv}')
        e('  .amdhsa_group_segment_fixed_size 0')
        e('  .amdhsa_kernarg_size 64')
        e('  .amdhsa_user_sgpr_count 2')
        e('  .amdhsa_user_sgpr_kernarg_segment_ptr 1')
        e('  .amdhsa_system_sgpr_workgroup_id_x 1')
        e('.end_amdhsa_kernel')
        errs = check([l.lstrip() if l.lstrip().startswith('.') else l for l in self.o])
        for x in errs:
            print('HAZARD', x, file=sys.stderr)
        txt = HEADER + f'; @launch grid=(256,1,1) block=(320,1,1) lds={LDS_BYTES}\n' + '\n'.join(self.o) + '\n'
        return txt, errs


if __name__ == '__main__':
    kw = {}
    out = sys.argv[1]
    for a in sys.argv[2:]:
        k, v = a.split('=')
        kw[k] = int(v)
    txt, errs = G(**kw).build()
    open(out, 'w').write(txt)
    sys.exit(1 if errs else 0)
```

```python
import sys, struct
from hazard import check

NAME = "standalone__gqa_block_cached__decode_kernel"

HEADER = """; Kernarg layout for this problem (64 bytes, ptrs only, base s[0:1]):
"""

PBASE = 0x100000
POFF = 0x80000
WSWIN = 0x10000000
BOFF = 0x10000
XOFF = 0x20000
STAMP0 = 0x10000000
STAMP1 = 0x10100000

L_WQ = 0x0000
L_WO = 0x5000
L_A = 0x0000
L_Q = 0xD000
L_ML = 0xD200
L_O = 0xD400
L_PR = 0xE400
L_LOC = 0xD240
LDS_BYTES = 0xEC00

def f2u(x):
    return struct.unpack('<I', struct.pack('<f', x))[0]

SCALE = f2u(128 ** -0.5 * 1.4426950408889634)
SPIN = 1 << 20
T_WO, T_TR, T_A, T_P, T_OL, T_AW = 184, 186, 188, 189, 190, 191


class G:
    def __init__(self, D=5, LV=16, stamps=False, D0=None, dbgt=0, kf=1, vf=1, pf=1, enc=-1, prio=3, slp=64, qslp=8, pre=2, dfn=0, d2=16, qd=0, clr=0, abl=0, kfirst=0, wqp=0, mld=0, wod=1, dper=0, il=0, pslp=0, rslp=0, PS=8192, clk=0, tau=1094, toff=200, dh=7, bal=1, bias=10, bslp=1, bstep=4, xm=1, p4=1, osc=0, xb=0, lagc=10, lper=2, xmax=12, loc=1, hot=0, ck=24, ck0=64):
        self.o = []
        self.D = D
        self.D0 = D0 or D
        self.LV = LV
        self.stamps = stamps
        self.dbgt = dbgt
        FL = ['', ' nt', ' sc1', ' sc1 nt', ' sc0 sc1', ' sc0 sc1 nt', ' sc0', ' sc0 nt']
        self.kf, self.vf = FL[kf], FL[vf]
        self.pf = pf
        self.enc = enc
        self.prio = prio
        self.slp = slp
        self.qslp = qslp
        self.pre = pre
        self.qd = qd
        self.abl = abl
        self.mld = mld
        self.dper = dper
        self.il = il
        self.PS = PS
        self.ck, self.ck0 = ck, ck0
        self.hot = hot
        self.loc = loc
        self.xb, self.lagc, self.lper, self.xmax = xb, lagc, lper, xmax
        self.osc = osc
        self.xm, self.p4 = xm, p4
        self.bal, self.bias, self.bslp, self.bstep = bal, bias, bslp, bstep
        self.clk, self.tau, self.toff, self.dh = clk, tau, toff, dh
        self.pslp = pslp
        self.rslp = rslp
        self.wod = wod
        self.kfirst = kfirst
        self.wqp = wqp
        self.clr = clr
        self.dfn = dfn
        self.d2 = d2

    def e(self, s):
        self.o.append(s if s.endswith(':') or s.startswith('.') or s.startswith(';') else '    ' + s)

    def stamp(self, idx, sbase=80):
        if not self.stamps:
            return
        e = self.e
        e('s_memrealtime s[80:81]')
        e(f's_add_u32 s82, s18, {STAMP1 + idx * 8}')
        e('s_addc_u32 s83, s19, 0')
        e('s_lshl_b32 s84, s2, 8')
        e('s_waitcnt lgkmcnt(0)')
        e('v_mov_b32 v250, s84')
        e('v_mov_b32 v252, s80')
        e('v_mov_b32 v253, s81')
        e('s_mov_b64 s[56:57], exec')
        e('s_mov_b64 exec, 1')
        e('global_store_dwordx2 v250, v[252:253], s[82:83]')
        e('s_mov_b64 exec, s[56:57]')

    def keep_time(self, sreg):
        if self.stamps:
            self.e(f's_memrealtime s[{sreg}:{sreg+1}]')

    def flush_time(self, idx, sreg):
        if not self.stamps:
            return
        e = self.e
        e(f's_add_u32 s82, s18, {STAMP1 + idx * 8}')
        e('s_addc_u32 s83, s19, 0')
        e('s_lshl_b32 s84, s2, 8')
        e('s_waitcnt lgkmcnt(0)')
        e('v_mov_b32 v250, s84')
        e(f'v_mov_b32 v252, s{sreg}')
        e(f'v_mov_b32 v253, s{sreg+1}')
        e('s_mov_b64 s[56:57], exec')
        e('s_mov_b64 exec, 1')
        e('global_store_dwordx2 v250, v[252:253], s[82:83]')
        e('s_mov_b64 exec, s[56:57]')

    def srd(self, d, base, size, add=None):
        e = self.e
        if add is None:
            e(f's_mov_b32 s{d}, s{base}')
            e(f's_mov_b32 s{d+1}, s{base+1}')
        else:
            e(f's_add_u32 s{d}, s{base}, {add}')
            e(f's_addc_u32 s{d+1}, s{base+1}, 0')
        e(f's_mov_b32 s{d+2}, {size:#x}')
        e(f's_mov_b32 s{d+3}, 0x20000')

    def stream(self):
        e, D, LV = self.e, self.D, 16
        vK, vV = 1, 2
        QB = [4, 8]
        DT = [12, 16]
        T, X = 20, 21
        A = 24
        MK = 28
        OA = 32
        M, L, T2, T3 = 36, 37, 38, 39
        S = 40
        RING = 56
        VP = 184
        rng = lambda r: f'v[{r}:{r+3}]'
        kslot = lambda n: RING + 4 * (n % 32)
        vslot = lambda v: VP + 4 * v if v < 16 else RING + 4 * ((v - 16) % 32)
        kpos = lambda n: 16 + n
        vpos = lambda v: v if v < 16 else 128 + v
        st = {'issued': -1, 'landed': -1}

        def need_landed(x):
            if x > st['landed']:
                e(f's_waitcnt vmcnt({st["issued"] - x})')
                st['landed'] = x

        lab = [0]

        def clk_step():
            e('s_waitcnt lgkmcnt(0)')
            e('s_sub_u32 s86, s88, s85')
            e('s_mul_i32 s86, s86, 10')
            e('s_cmp_gt_u32 s86, s87')
            e('s_cselect_b32 vcc_lo, 1, 0')
            e(f's_add_u32 s87, s87, {self.tau}')
            e('s_memrealtime s[88:89]')

        vPos, vRef, vPA = 22, 23, 3

        def bal_step(i):
            if not self.bal:
                return
            if i % self.bstep == self.bstep - 2:
                e(f'v_add_u32 v{vPos}, {self.bstep}, v{vPos}')
                e(f'ds_write_b32 v{vPA}, v{vPos} offset:{L_PR}')
                e(f'ds_read_b32 v{vRef}, v{vPA} offset:{L_PR + 1024}')
            if i % self.bstep == self.bstep - 1:
                e('s_waitcnt lgkmcnt(0)')
                e(f'v_cmp_gt_u32 vcc, v{vRef}, v{vPos}')

        def gate(pos, d):
            if (self.clk or self.bal) and st.get('adapt') and d == D:
                lab[0] += 1
                e(f's_cbranch_vccnz L_dg{lab[0]}')
                e(f's_waitcnt vmcnt({D-1})')
                e(f'L_dg{lab[0]}:')
                d = self.dh
            if self.dper and d == D and pos % self.dper == 0:
                d = D + 1
            if pos >= d:
                e(f's_waitcnt vmcnt({d-1})')
                st['landed'] = max(st['landed'], pos - d)
            st['issued'] = pos

        def kissue(n, d=None):
            gate(kpos(n), d or D)
            e(f'buffer_load_dwordx4 {rng(kslot(n))}, v{vK}, s[20:23], s28 offen offset:{(n % 4) * 1024}{self.kf}')
            if n % 4 == 3:
                e('s_add_u32 s28, s28, 0x4000')

        def vissue(v, d=None):
            if 16 <= v < 32 and st.get('adapt'):
                bal_step(v)
            gate(vpos(v), d or D)
            e(f'buffer_load_dwordx4 {rng(vslot(v))}, v{vV}, s[24:27], s33 offen offset:{(v % 4) * 1024}{self.vf}')
            if v % 4 == 3:
                e('s_add_u32 s33, s33, 0x4000')

        def kadds(pair, sreg):
            d = DT[pair & 1]
            i = pair & 3
            e(f'v_add_f32_dpp v{T}, v{d + (i+1) % 4}, v{d + i} row_ror:12 row_mask:0xf bank_mask:0xf')
            e(f'v_add_f32_dpp v{T}, v{d + (i+2) % 4}, v{T} row_ror:8 row_mask:0xf bank_mask:0xf')
            e(f'v_add_f32_dpp v{sreg}, v{d + (i+3) % 4}, v{T} row_ror:4 row_mask:0xf bank_mask:{1 << i:#x}')

        def kmfma(n):
            d = DT[(n >> 1) & 1]
            c = '0' if n % 2 == 0 else rng(d)
            e(f'v_mfma_f32_16x16x32_bf16 {rng(d)}, {rng(kslot(n))}, {rng(QB[n & 1])}, {c}')

        def shift4():
            for i in range(12):
                e(f'v_mov_b32 v{S+i}, v{S+i+4}')

        def vprep(pn, yreg):
            i = pn & 7
            e(f'v_mov_b32_dpp v{X}, v{yreg} row_newbcast:{2*i} row_mask:0xf bank_mask:0x3')
            e(f'v_mov_b32_dpp v{X}, v{yreg} row_newbcast:{2*i+1} row_mask:0xf bank_mask:0xc')
            for r in range(4):
                e(f'v_and_b32 v{A+r}, v{X}, v{MK+r}')

        def vmfma(v, first=False):
            c = '0' if first else rng(OA)
            e(f'v_mfma_f32_16x16x32_bf16 {rng(OA)}, {rng(A)}, {rng(vslot(v))}, {c}')

        e(f'v_lshlrev_b32 v{vV}, 4, v0')
        e('s_lshl_b32 s31, s32, 19')
        e('s_lshl_b32 s33, s3, 12')
        e('s_lshl_b32 s28, s3, 12')
        if self.prio:
            e(f's_setprio {self.prio}')
        e('s_waitcnt lgkmcnt(0)')
        self.keep_time(70)
        if self.clk:
            e('s_mov_b32 s85, s88')
        self.srd(24, 8, 0x80000, add='s31')
        for v in range(min(self.D0, 16)):
            vissue(v, d=self.D0)
        e('s_load_dword s34, s[18:19], 0')
        self.srd(20, 6, 0x80000, add='s31')
        e('v_lshrrev_b32 v3, 4, v0')
        e('v_bfe_u32 v4, v0, 2, 2')
        e('v_and_b32 v5, 3, v0')
        e('v_lshlrev_b32 v3, 6, v3')
        e('v_lshlrev_b32 v4, 8, v4')
        e('v_lshlrev_b32 v5, 4, v5')
        e(f'v_add3_u32 v{vK}, v3, v4, v5')
        e(f's_mov_b32 s30, {SCALE:#x}')
        e('v_lshrrev_b32 v3, 3, v0')
        e('v_xor_b32 v3, v3, v0')
        e('v_and_b32 v3, 1, v3')
        e('v_lshlrev_b32 v3, 4, v3')
        e('v_mov_b32 v4, 0xffff')
        e('v_lshlrev_b32 v3, v3, v4')
        e('v_bfe_u32 v4, v0, 1, 2')
        for r in range(4):
            e(f'v_cmp_eq_u32 vcc, {r}, v4')
            e('s_nop 1')
            e(f'v_cndmask_b32 v{MK+r}, 0, v3, vcc')
        e('v_and_b32 v3, 1, v0')
        e('v_lshlrev_b32 v3, 8, v3')
        e('v_lshrrev_b32 v4, 2, v0')
        e(f'v_lshl_add_u32 v{T2}, v4, 4, v3')
        e('v_and_b32 v3, 2, v0')
        e('v_cmp_ne_u32 vcc, 0, v3')
        for v in range(min(self.D0, 16), 16):
            vissue(v, d=self.D0)
            if v == self.D0:
                self.keep_time(72)
        self.keep_time(76)
        for n in range(32):
            kissue(n, d=self.D0 + max(0, n - (31 - self.pre)))
            if n == 8:
                self.keep_time(78)
        self.keep_time(60)
        e('s_barrier')
        e(f'ds_read_b128 {rng(DT[0])}, v{T2} offset:{L_Q}')
        e('s_mov_b32 s29, 0')
        e(f's_waitcnt lgkmcnt(0) vmcnt({min(self.D0, 30)})')
        self.keep_time(62)
        self.make_tag()
        for r in range(4):
            e(f'v_cndmask_b32 v{QB[1]+r}, 0, v{DT[0]+r}, vcc')
            e(f'v_cndmask_b32 v{QB[0]+r}, v{DT[0]+r}, 0, vcc')
        e('s_nop 1')
        if self.clk:
            e('s_mov_b64 vcc, 0')
            e('s_memrealtime s[88:89]')
            e(f's_mov_b32 s87, {self.toff * 10 + 6 * self.tau}')
            st['adapt'] = True
        if self.bal:
            e('s_mov_b64 vcc, 0')
            e(f'v_mov_b32 v{vPos}, 48')
            e(f'v_lshlrev_b32 v{vPA}, 2, v0')
            e('s_lshl_b32 s31, s3, 8')
            e(f'v_add_u32 v{vPA}, s31, v{vPA}')
            st['adapt'] = True
        self.align()
        e('L_kloop:')
        for p in range(16):
            n = 2 * p
            if self.clk and p % 4 == 3:
                clk_step()
            bal_step(n)
            kmfma(n)
            kissue(n + 32)
            bal_step(n + 1)
            kmfma(n + 1)
            kadds((p - 1) % 16, S + 12 + (((p - 1) % 16) >> 2))
            if p == 0:
                shift4()
            kissue(n + 33)
        e('s_add_u32 s29, s29, 1')
        e('s_cmp_lt_u32 s29, 3')
        e('s_cbranch_scc1 L_kloop')
        nv = 16
        st['issued'], st['landed'] = kpos(127), kpos(127) - max(D + 1, self.dh if (self.clk or self.bal) else 0)
        for p in range(16):
            n = 2 * p
            need_landed(kpos(96 + n + 1))
            kmfma(n)
            kmfma(n + 1)
            e('s_nop 0')
            kadds((p - 1) % 16, S + 12 + (((p - 1) % 16) >> 2))
            if p == 0:
                shift4()
            if p % 3 == 0:
                vissue(nv); nv += 1
            else:
                e('s_nop 1')
        e('s_nop 1')
        kadds(15, S + 15)
        e(f'v_max3_f32 v{M}, v{S}, v{S+1}, v{S+2}')
        e(f'v_max3_f32 v{T}, v{S+3}, v{S+4}, v{S+5}')
        for i in range(6, 14, 4):
            e(f'v_max3_f32 v{M}, v{M}, v{S+i}, v{S+i+1}')
            e(f'v_max3_f32 v{T}, v{T}, v{S+i+2}, v{S+i+3}')
        e(f'v_max3_f32 v{M}, v{M}, v{S+14}, v{S+15}')
        e(f'v_max_f32 v{M}, v{M}, v{T}')

        def allreduce(reg, op):
            for k in (2, 4, 8):
                e('s_nop 1')
                e(f'{op}_dpp v{reg}, v{reg}, v{reg} row_ror:{k} row_mask:0xf bank_mask:0xf')
            for sw in ('v_permlane16_swap_b32', 'v_permlane32_swap_b32'):
                e(f'v_mov_b32 v{T}, v{reg}')
                e('s_nop 1')
                e(f'{sw} v{reg}, v{T}')
                e(f'{op} v{reg}, v{reg}, v{T}')
        allreduce(M, 'v_max_f32')
        e(f'v_mul_f32 v{M}, s30, v{M}')
        vissue(nv); nv += 1
        for i in range(16):
            e(f'v_fma_f32 v{S+i}, v{S+i}, s30, -v{M}')
            e(f'v_exp_f32 v{S+i}, v{S+i}')
            if i == 10:
                vissue(nv); nv += 1
        e(f'v_add_f32 v{L}, v{S}, v{S+1}')
        for i in range(2, 16):
            e(f'v_add_f32 v{L}, v{L}, v{S+i}')
        vissue(nv); nv += 1
        for i in range(16):
            t = T2 if i & 1 else T3
            e(f'v_mov_b32_dpp v{t}, v{S+i} quad_perm:[1,0,3,2] row_mask:0xf bank_mask:0xf')
            e(f'v_cvt_pk_bf16_f32 v{S+i}, v{S+i}, v{t}')
        vissue(nv); nv += 1
        allreduce(L, 'v_add_f32')
        e(f'v_lshlrev_b32 v{T2}, 3, v0')
        e('s_lshl_b32 s31, s3, 4')
        e(f'v_add_u32 v{T2}, s31, v{T2}')
        e('s_mov_b64 exec, 3')
        e(f'ds_write_b64 v{T2}, v[{M}:{L}] offset:{L_ML}')
        e('s_mov_b64 exec, -1')
        self.keep_time(64)
        for pn in range(16):
            vprep(pn, S + (pn >> 3))
            if pn % 3 == 0 and pn < 15:
                vissue(nv); nv += 1
            else:
                e('s_nop 1')
            vmfma(pn, first=(pn == 0))
        assert nv <= 32, nv
        self.tail_setup()
        while nv < 32:
            vissue(nv); nv += 1
        e('s_mov_b32 s29, 0')
        if self.clk:
            e('s_waitcnt lgkmcnt(0)')
            e('s_memrealtime s[88:89]')
            e(f's_mov_b32 s87, {self.toff * 10 + 20 * self.tau}')
        elif not self.bal:
            e('s_mov_b64 vcc, 0')
        self.align()
        e('L_vloop:')
        sw_it, sw_i = divmod(96 - self.dfn, 32)
        for i in range(32):
            p2 = 16 + i
            if self.dfn and i == sw_i:
                e(f's_cmp_ge_u32 s29, {sw_it}')
                e('s_cselect_b32 vcc_lo, 1, 0')
            if self.clk and i % 8 == 7:
                clk_step()
            bal_step(i)
            vprep(p2, S + (p2 >> 3))
            if self.dfn:
                e(f's_cbranch_vccnz L_g{i}')
                e(f's_waitcnt vmcnt({D-1})')
                e(f'L_g{i}:')
                vissue(32 + i, d=self.d2)
            else:
                vissue(32 + i)
            vmfma(p2)
        shift4()
        e('s_add_u32 s29, s29, 1')
        e('s_cmp_lt_u32 s29, 3')
        e('s_cbranch_scc1 L_vloop')
        self.keep_time(66)
        for i in range(8):
            e('s_mov_b32 m0, s46')
            e('s_add_u32 s46, s46, 1024')
            e(f'buffer_load_dwordx4 v{T_WO + ((i >> 1) & 1)}, s[36:39], s45 offen nt lds')
            e('s_add_u32 s45, s45, 9216')
        for i in range(LV):
            p2 = 16 + i
            vprep(p2, S + (p2 >> 3))
            if LV - 1 - i < (self.d2 if self.dfn else max(D + 1, self.dh if (self.clk or self.bal) else 0)):
                e(f's_waitcnt vmcnt({LV - 1 - i + 8})')
                e('s_nop 0')
            else:
                e('s_nop 1')
            vmfma(p2)
        e('s_cmp_ge_u32 s2, 144')
        e('s_nop 6')
        e(f'ds_write_b128 v{T_OL}, {rng(OA)} offset:{L_O}')
        e('s_waitcnt lgkmcnt(0)')
        self.keep_time(68)
        e('s_barrier')
        e('s_cbranch_scc1 L_notproj')
        BW, AO, PO = 56, 88, 120
        e('s_barrier')
        for j in range(2):
            e(f'buffer_load_dwordx4 {rng(PO + 4*j)}, v{vV}, s[40:43], s44 offen offset:{1024*j} sc1')
        e('s_mov_b32 s48, 0')
        e('s_waitcnt vmcnt(2)')
        e('s_barrier')
        self.keep_time(50)
        for kk in range(8):
            gp = kk >> 1
            for hf in range(2):
                row = 64 * (kk & 1) + 8 * hf + 4 * (gp & 1)
                r = BW + kk * 4 + 2 * hf
                e(f'ds_read_b64_tr_b16 v[{r}:{r+1}], v{T_TR + (gp >> 1)} offset:{L_WO + row * 128}')
        e('s_branch L_ochk')
        self.align()
        e('L_opoll:')
        if self.pslp:
            e(f's_sleep {self.pslp}')
        for j in range(2):
            e(f'buffer_load_dwordx4 {rng(PO + 4*j)}, v{vV}, s[40:43], s44 offen offset:{1024*j} sc1')
        e('L_ochk:')
        e('s_add_u32 s48, s48, 1')
        e(f's_cmp_ge_u32 s48, {SPIN}')
        e('s_cbranch_scc1 L_ook')
        e('s_waitcnt vmcnt(1)')
        e(f'v_max3_u32 v20, v{PO}, v{PO+1}, v{PO+2}')
        e('s_waitcnt vmcnt(0)')
        e(f'v_max3_u32 v21, v{PO+4}, v{PO+5}, v{PO+6}')
        e(f'v_max3_u32 v20, v20, v{PO+3}, v{PO+7}')
        e('v_max_u32 v20, v20, v21')
        e('v_cmp_eq_u32 vcc, -1, v20')
        e('s_and_b64 exec, exec, vcc')
        e('s_cbranch_scc1 L_opoll')
        e('L_ook:')
        e('s_mov_b64 exec, -1')
        e(f'ds_write_b128 v{T_AW}, {rng(PO)} offset:{L_A}')
        e(f'ds_write_b128 v{T_AW}, {rng(PO+4)} offset:{L_A + 2*528}')
        e('s_waitcnt lgkmcnt(0)')
        e('s_barrier')
        self.keep_time(52)
        for kk in range(8):
            e(f'ds_read_b128 {rng(AO + 4*kk)}, v{T_A} offset:{L_A + 64*kk}')
        for kk in range(8):
            c = '0' if kk == 0 else 'v[12:15]'
            e(f's_waitcnt lgkmcnt({7-kk})')
            e(f'v_mfma_f32_16x16x32_bf16 v[12:15], {rng(AO + 4*kk)}, {rng(BW + 4*kk)}, {c}')
        e('v_mov_b32 v17, s34')
        e('v_mov_b32 v19, s34')
        e('s_mov_b32 s48, 0x55555555')
        e('s_nop 4')
        e('v_add_f32 v12, v12, v13')
        e('v_add_f32 v14, v14, v15')
        e('v_add_f32 v16, v12, v14')
        if self.p4:
            e('s_nop 1')
            e('v_mov_b32_dpp v18, v16 quad_perm:[1,1,3,3] row_mask:0xf bank_mask:0xf')
            e('s_mov_b32 exec_lo, s48')
            e('s_mov_b32 exec_hi, s48')
            e(f'buffer_store_dwordx4 v[16:19], v{T_P}, s[40:43], s47 offen sc1')
        else:
            e(f'buffer_store_dwordx2 v[16:17], v{T_P}, s[40:43], s47 offen sc1')
        self.keep_time(54)
        if self.stamps:
            e('s_branch L_sflush')
        e('s_endpgm')
        e('L_notproj:')
        e('s_cmp_ge_u32 s2, 180')
        e('s_cbranch_scc1 ' + ('L_sflush' if self.stamps else 'L_end'))
        if self.dbgt:
            e('s_memrealtime s[74:75]')
        self.keep_time(50)
        e('s_mov_b32 s48, 0')
        e(f's_mov_b32 s38, {4 * 576 * 2}')
        e('s_and_b32 s45, s35, 3')
        e('s_mul_i32 s45, s45, 1152')
        e('s_lshr_b32 s31, s35, 2')
        e('s_lshl_b32 s31, s31, 7')
        e('s_add_u32 s45, s45, s31')
        e('s_lshl_b32 s31, s3, 5')
        e('s_add_u32 s45, s45, s31')
        self.align()
        e('L_ppoll:')
        if self.rslp:
            e(f's_sleep {self.rslp}')
        e(f'buffer_load_dwordx4 v[12:15], v{T_A}, s[40:43], s44 offen sc1')
        e(f'buffer_load_dwordx4 v[16:19], v{T_A}, s[40:43], s47 offen sc1')
        e('s_add_u32 s48, s48, 1')
        e(f's_cmp_ge_u32 s48, {SPIN}')
        e('s_cbranch_scc1 L_pok')
        e('s_waitcnt vmcnt(1)')
        e('v_xor_b32 v20, s34, v13')
        e('v_xor_b32 v21, s34, v15')
        e('s_waitcnt vmcnt(0)')
        e('v_xor_b32 v22, s34, v17')
        e('v_xor_b32 v23, s34, v19')
        e('v_or3_b32 v20, v20, v21, v22')
        e('v_or_b32 v20, v20, v23')
        e('v_cmp_ne_u32 vcc, 0, v20')
        e('s_and_b64 exec, exec, vcc')
        e('s_cbranch_scc1 L_ppoll')
        e('L_pok:')
        e('s_mov_b64 exec, -1')
        e('s_waitcnt vmcnt(0)')
        self.keep_time(52)
        e('v_add_f32 v12, v12, v16')
        e('v_add_f32 v14, v14, v18')
        e('s_nop 0')
        e('v_add_f32_dpp v12, v12, v12 row_ror:8 row_mask:0xf bank_mask:0xf')
        e('v_add_f32_dpp v14, v14, v14 row_ror:8 row_mask:0xf bank_mask:0xf')
        e('s_nop 1')
        e('v_permlane16_swap_b32 v12, v14')
        e('v_add_f32 v12, v12, v14')
        e('v_mov_b32 v14, v12')
        e('s_nop 1')
        e('v_permlane32_swap_b32 v12, v14')
        e('v_add_f32 v12, v12, v14')
        e('v_cvt_pk_bf16_f32 v12, v12, v12')
        e('s_mov_b64 exec, 0x00ff00ff')
        e(f'buffer_store_short v12, v{T_P}, s[36:39], s45 offen' + ['', ' sc1', ' nt', ' sc0 sc1'][self.osc])
        self.keep_time(54)
        e('s_add_u32 s48, s2, s3')
        e('s_cmp_lg_u32 s48, 144')
        e('s_cbranch_scc1 ' + ('L_sflush' if self.stamps else 'L_end'))
        e('v_mov_b32 v4, s34')
        e('v_mov_b32 v6, 0')
        e('s_mov_b64 exec, 1')
        e('buffer_store_dword v4, v6, s[40:43], 0 offen')
        if self.dbgt:
            self.srd(52, 16, 256)
            e('s_memrealtime s[76:77]')
            e('s_waitcnt lgkmcnt(0)')
            for i, r in enumerate((70, 72, 74, 76)):
                e(f's_sub_u32 s{r}, s{r}, s68')
                e(f'v_mov_b32 v{8+i}, s{r}')
            e('buffer_store_dwordx4 v[8:11], v6, s[52:55], 0 offen sc1')
            if self.enc >= 0:
                e('s_mov_b32 s78, 8000')
                if self.enc > 0:
                    e(f's_add_u32 s78, s78, s{(70, 72, 74, 76)[self.enc - 1]}')
                e('L_enc:')
                e('s_memrealtime s[76:77]')
                e('s_waitcnt lgkmcnt(0)')
                e('s_sub_u32 s76, s76, s68')
                e('s_cmp_lt_u32 s76, s78')
                e('s_cbranch_scc1 L_enc')
        if self.stamps:
            e('L_sflush:')
            e('s_mov_b64 exec, -1')
            e('s_cmp_lg_u32 s3, 0')
            e('s_cbranch_scc1 L_end')
            for k, sr in enumerate((58, 60, 62, 64, 66, 68)):
                self.flush_time(k, sr)
            for k, sr in ((12, 50), (13, 52), (14, 54), (16, 70), (17, 72), (15, 76), (19, 78)):
                self.flush_time(k, sr)
        e('s_endpgm')

    def proj_role(self, shkv, stg):
        e = self.e
        if self.xm:
            e(f's_lshr_b32 s{stg}, s2, 3')
            e(f's_and_b32 s{shkv}, s2, 7')
            e(f's_cmp_ge_u32 s{stg}, 9')
            e(f's_cselect_b32 s95, 8, 0')
            e(f's_add_u32 s{shkv}, s{shkv}, s95')
            e(f's_cmp_ge_u32 s{stg}, 9')
            e(f's_cselect_b32 s95, 9, 0')
            e(f's_sub_u32 s{stg}, s{stg}, s95')
        else:
            e(f's_mul_i32 s{shkv}, s2, 57')
            e(f's_lshr_b32 s{shkv}, s{shkv}, 9')
            e(f's_mul_i32 s{stg}, s{shkv}, 9')
            e(f's_sub_u32 s{stg}, s2, s{stg}')

    def tail_setup(self):
        e = self.e
        t0, t1, t2, t3 = 200, 201, 202, 203
        self.srd(40, 18, WSWIN)
        e(f'v_lshlrev_b32 v{T_OL}, 4, v0')
        e('s_lshl_b32 s31, s3, 10')
        e(f'v_add_u32 v{T_OL}, s31, v{T_OL}')
        e('s_lshl_b32 s46, s3, 13')
        e(f's_add_u32 s46, s46, {L_WO}')
        e('s_cmp_ge_u32 s2, 144')
        e('s_cbranch_scc1 L_ts_red')
        self.proj_role(35, 31)
        e('s_mul_i32 s47, s35, 9')
        e('s_add_u32 s47, s47, s31')
        self.srd(36, 12, 0 if self.abl & 4 else 4096 * 576 * 2)
        e('s_lshl_b32 s45, s35, 2')
        e('s_add_u32 s45, s45, s3')
        e(f's_mul_i32 s45, s45, {64 * 1152}')
        e('s_lshl_b32 s31, s31, 7')
        e('s_add_u32 s45, s45, s31')
        e(f'v_lshrrev_b32 v{t0}, 3, v0')
        e(f'v_mul_u32_u24 v{t1}, 1152, v{t0}')
        e(f'v_and_b32 v{t0}, 2, v{t0}')
        e(f'v_and_b32 v{t2}, 7, v0')
        e(f'v_xor_b32 v{t2}, v{t2}, v{t0}')
        e(f'v_lshl_add_u32 v{T_WO}, v{t2}, 4, v{t1}')
        e(f'v_xor_b32 v{t2}, 4, v{t2}')
        e(f'v_lshl_add_u32 v{T_WO+1}, v{t2}, 4, v{t1}')
        e(f'v_bfe_u32 v{t0}, v0, 3, 1')
        e(f'v_bfe_u32 v{t1}, v0, 2, 1')
        e(f'v_lshl_add_u32 v{t2}, v{t1}, 1, v{t0}')
        e(f'v_and_b32 v{t3}, 0x30, v0')
        e(f'v_lshl_add_u32 v{t3}, v{t0}, 7, v{t3}')
        e(f'v_add_u32 v{T_TR}, v{t3}, v{t2}')
        e(f'v_xor_b32 v{T_TR+1}, 1, v{T_TR}')
        e(f'v_bfe_u32 v{t0}, v0, 4, 1')
        e(f'v_lshl_add_u32 v{t0}, v{t0}, 1, v{t1}')
        e(f'v_xor_b32 v{t0}, s3, v{t0}')
        e(f'v_lshlrev_b32 v{t0}, 5, v{t0}')
        e(f'v_and_b32 v{t1}, 3, v0')
        e(f'v_lshl_add_u32 v{t0}, v{t1}, 3, v{t0}')
        e(f'v_lshl_add_u32 v{T_TR}, v{T_TR}, 7, v{t0}')
        e(f'v_lshl_add_u32 v{T_TR+1}, v{T_TR+1}, 7, v{t0}')
        e('s_lshl_b32 s44, s3, 4')
        e('s_add_u32 s44, s44, s35')
        e(f's_mul_i32 s44, s44, {self.PS}')
        e(f's_add_u32 s44, s44, {PBASE}')
        e(f'v_lshrrev_b32 v{t0}, 5, v0')
        e(f'v_lshl_add_u32 v{t0}, s3, 2, v{t0}')
        e(f'v_mul_u32_u24 v{t0}, 528, v{t0}')
        e(f'v_and_b32 v{t1}, 31, v0')
        e(f'v_lshl_add_u32 v{T_AW}, v{t1}, 4, v{t0}')
        e(f'v_and_b32 v{t0}, 15, v0')
        e(f'v_mul_u32_u24 v{t0}, 528, v{t0}')
        e(f'v_and_b32 v{t1}, 0x30, v0')
        e(f'v_add_u32 v{T_A}, v{t0}, v{t1}')
        e(f'v_and_b32 v{t0}, 15, v0')
        e(f'v_lshlrev_b32 v{t0}, 3, v{t0}')
        e(f'v_lshl_add_u32 v{T_P}, v{t1}, 5, v{t0}')
        e('s_lshl_b32 s47, s47, 11')
        e('s_lshl_b32 s31, s3, 7')
        e('s_add_u32 s47, s47, s31')
        e(f's_add_u32 s47, s47, {POFF}')
        e('s_branch L_ts_done')
        e('L_ts_red:')
        self.srd(36, 14, 0)
        e('s_mov_b32 s45, 0')
        e(f'v_mov_b32 v{T_WO}, 0')
        e(f'v_mov_b32 v{T_WO+1}, 0')
        e(f'v_mov_b32 v{T_TR}, 0')
        e(f'v_mov_b32 v{T_TR+1}, 0')
        e('s_sub_u32 s35, s2, 144')
        e(f'v_lshrrev_b32 v{t0}, 3, v0')
        e(f'v_mul_u32_u24 v{t0}, 18432, v{t0}')
        e(f'v_and_b32 v{t1}, 7, v0')
        e(f'v_lshl_add_u32 v{T_A}, v{t1}, 4, v{t0}')
        e('s_lshl_b32 s44, s35, 9')
        e('s_lshl_b32 s31, s3, 7')
        e('s_add_u32 s44, s44, s31')
        e(f's_add_u32 s44, s44, {POFF}')
        e(f's_add_u32 s47, s44, {8 * 18432}')
        e(f'v_lshrrev_b32 v{t0}, 4, v0')
        e(f'v_lshl_add_u32 v{t0}, v{t1}, 1, v{t0}')
        e(f'v_lshlrev_b32 v{T_P}, 1, v{t0}')
        e('L_ts_done:')

    def align(self):
        self.e('.p2align 3')

    def make_tag(self):
        self.e('s_add_u32 s34, s34, 0x7f4a7c15')

    def pack4(self, dst, z, vtag):
        e = self.e
        e(f'v_perm_b32 v{dst}, v{z[0]}, v{z[1]}, s90')
        e(f'v_perm_b32 v{dst+1}, v{z[1]}, v{vtag}, s91')
        e(f'v_perm_b32 v{dst+2}, v{z[2]}, v{z[3]}, s90')
        e(f'v_perm_b32 v{dst+3}, v{z[3]}, v{vtag}, s92')

    def pack_consts(self):
        e = self.e
        e('s_mov_b32 s90, 0x07060501')
        e('s_mov_b32 s91, 0x07060100')
        e('s_mov_b32 s92, 0x07060302')
        e('s_mov_b32 s93, 0x05040100')
        e('s_mov_b32 s94, 0x0706000c')

    def check4(self, pieces, tmp):
        e = self.e
        for i, p in enumerate(pieces):
            e(f'v_perm_b32 v{tmp+i}, v{p+3}, v{p+1}, s93')
        for i, p in enumerate(pieces):
            e(f'v_xor_b32 v{tmp+i}, s34, v{tmp+i}')
        e(f'v_or3_b32 v{tmp}, v{tmp}, v{tmp+1}, v{tmp+2}')
        e(f'v_or_b32 v{tmp}, v{tmp}, v{tmp+3}')
        e(f'v_cmp_ne_u32 vcc, 0, v{tmp}')

    def unpack_sum4(self, pieces):
        e = self.e
        for p in pieces:
            e(f'v_perm_b32 v{p+1}, v{p+1}, v{p}, s94')
            e(f'v_perm_b32 v{p+3}, v{p+3}, v{p+2}, s94')
            e(f'v_and_b32 v{p}, 0xffffff00, v{p}')
            e(f'v_and_b32 v{p+2}, 0xffffff00, v{p+2}')
        p0, p1, p2, p3 = pieces
        for t in range(4):
            e(f'v_add_f32 v{p0+t}, v{p0+t}, v{p1+t}')
            e(f'v_add_f32 v{p2+t}, v{p2+t}, v{p3+t}')
        for t in range(4):
            e(f'v_add_f32 v{p0+t}, v{p0+t}, v{p2+t}')

    def publish(self, stores):
        e = self.e
        self.npub = getattr(self, 'npub', 0) + 1
        n = self.npub
        if self.loc:
            e('s_cmp_lg_u32 s49, 0')
            e(f's_cbranch_scc1 L_pubL{n}')
        for st in stores:
            e(st + (' sc1' if st.startswith('buffer_store') else ''))
        if self.loc:
            e(f's_branch L_pubE{n}')
            e(f'L_pubL{n}:')
            for st in stores:
                e(st)
            e(f'L_pubE{n}:')

    def read_loc(self, vz, vt):
        e = self.e
        if not self.loc:
            return
        e('s_mov_b32 s48, 0')
        e('L_locw:')
        e(f'ds_read_b32 v{vt}, v{vz} offset:{L_LOC}')
        e('s_add_u32 s48, s48, 1')
        e('s_waitcnt lgkmcnt(0)')
        e(f'v_readfirstlane_b32 s49, v{vt}')
        e('s_sub_u32 s49, s49, s34')
        e('s_cmp_lt_u32 s49, 2')
        e('s_cbranch_scc1 L_locd')
        e('s_sleep 2')
        e(f's_cmp_lt_u32 s48, {SPIN}')
        e('s_cbranch_scc1 L_locw')
        e('L_locd:')
        e('s_cmp_eq_u32 s49, 0')
        e('s_cselect_b32 s49, 1, 0')

    def wait_mid(self, lab, vzero, scnt):
        e = self.e
        e(f's_mov_b32 s{scnt}, 0')
        e(f'{lab}:')
        e(f's_sleep {self.slp}')
        for w in range(4):
            e(f'ds_read_b128 v[{16 + 4*w}:{19 + 4*w}], v{vzero} offset:{L_ML + 16*w}')
        e(f's_add_u32 s{scnt}, s{scnt}, 1')
        e('s_waitcnt lgkmcnt(0)')
        self.maxu(32, range(16, 32))
        e('v_cmp_eq_u32 vcc, -1, v32')
        e('s_nop 0')
        e(f's_cbranch_vccz {lab}_ok')
        e(f's_cmp_lt_u32 s{scnt}, {SPIN}')
        e(f's_cbranch_scc1 {lab}')
        e(f'{lab}_ok:')

    def maxu(self, dst, regs):
        e = self.e
        regs = list(regs)
        e(f'v_max3_u32 v{dst}, v{regs[0]}, v{regs[1]}, v{regs[2]}')
        regs = regs[3:]
        while len(regs) >= 2:
            e(f'v_max3_u32 v{dst}, v{dst}, v{regs[0]}, v{regs[1]}')
            regs = regs[2:]
        if regs:
            e(f'v_max_u32 v{dst}, v{dst}, v{regs[0]}')

    def helper(self):
        e = self.e
        rng = lambda r: f'v[{r}:{r+3}]'
        XA = 16
        WB = 64
        DQ = 40
        e('s_and_b32 s40, s32, 63')
        e('s_lshr_b32 s35, s32, 6')
        e('v_lshrrev_b32 v1, 3, v0')
        e('v_lshlrev_b32 v1, 13, v1')
        e('v_and_b32 v2, 7, v0')
        e('v_lshl_add_u32 v1, v2, 4, v1')
        e(f's_mul_i32 s42, s35, {144 * 8192}')
        e('s_lshl_b32 s41, s40, 7')
        e('s_add_u32 s42, s42, s41')
        e('v_and_b32 v2, 3, v0')
        e('v_mul_u32_u24 v2, 1152, v2')
        e('v_lshrrev_b32 v3, 4, v0')
        e('v_lshl_add_u32 v7, v3, 3, v2')
        e('v_lshl_add_u32 v2, v3, 4, v2')
        e('s_mul_i32 s43, s35, 288')
        e('s_waitcnt lgkmcnt(0)')
        e('s_load_dword s34, s[18:19], 0')
        self.srd(24, 4, 4 * 576 * 2)
        for kk in range(4):
            e(f'buffer_load_dwordx4 {rng(XA + 4*kk)}, v2, s[24:27], s43 offen offset:{kk*64}')
        e(f'buffer_load_dwordx2 v[{XA+16}:{XA+17}], v7, s[24:27], s43 offen offset:256')
        self.srd(20, 10, 576 * 4096 * 2)
        for i in range(18):
            e(f's_mov_b32 m0, {L_WQ + 1024 * i}')
            if i:
                e('s_add_u32 s42, s42, 0x10000')
            else:
                e('s_nop 0')
            if self.wqp and i >= self.wqp:
                e(f's_waitcnt vmcnt({self.wqp - 1})')
            if not self.abl & 1:
                e('buffer_load_dwordx4 v1, s[20:23], s42 offen nt lds')
        if self.pf:
            e('s_getpc_b64 s[54:55]')
            e('L_pc:')
            e(f's_sub_u32 s54, s54, L_pc-{NAME}')
            e('s_subb_u32 s55, s55, 0')
            e('v_lshlrev_b32 v14, 7, v0')
            e('global_load_dword v60, v14, s[54:55]')
            e('v_add_u32 v14, 0x2000, v14')
            e(f'v_cmp_gt_u32 vcc, L_codeend-{NAME}, v14')
            e('s_and_saveexec_b64 s[56:57], vcc')
            e('global_load_dword v61, v14, s[54:55]')
            e('s_mov_b64 exec, s[56:57]')
        self.srd(28, 18, WSWIN)
        for r in range(4):
            e(f'v_mov_b32 v{8+r}, -1')
        e('v_lshlrev_b32 v4, 4, v0')
        e('s_lshr_b32 s44, s32, 2')
        e(f's_mul_i32 s44, s44, {self.PS}')
        e(f's_add_u32 s44, s44, {PBASE}')
        e('s_and_b32 s43, s32, 3')
        e('s_lshl_b32 s45, s43, 9')
        e('s_add_u32 s45, s45, s44')
        e('s_lshl_b32 s47, s43, 8')
        e('s_add_u32 s47, s47, s44')
        e('s_mov_b64 exec, 15')
        e(f'ds_write_b128 v4, v[8:11] offset:{L_ML}')
        e('s_mov_b64 exec, -1')
        self.pack_consts()
        e('v_bfe_u32 v5, v0, 2, 2')
        e('v_lshlrev_b32 v5, 7, v5')
        e('v_and_b32 v6, 3, v0')
        e('v_lshl_add_u32 v5, v6, 3, v5')
        e('v_lshl_add_u32 v6, v3, 9, v5')
        e('v_lshl_add_u32 v5, v3, 10, v5')
        e(f's_mov_b32 s41, {16 * self.PS}')
        e('v_mul_lo_u32 v7, s41, v3')
        e('v_and_b32 v12, 15, v0')
        e('v_lshl_add_u32 v7, v12, 4, v7')
        e('s_lshr_b32 s46, s40, 2')
        e(f's_mul_i32 s46, s46, {self.PS}')
        e('s_lshl_b32 s41, s35, 10')
        e('s_add_u32 s46, s46, s41')
        e('s_and_b32 s41, s40, 3')
        e('s_lshl_b32 s41, s41, 8')
        e('s_add_u32 s46, s46, s41')
        e(f's_add_u32 s46, s46, {PBASE + 4096}')
        e('s_add_u32 s50, s44, 4096')
        e('v_and_b32 v12, 15, v0')
        e('v_lshlrev_b32 v12, 1, v12')
        e('v_lshl_add_u32 v12, v3, 7, v12')
        e('s_waitcnt lgkmcnt(0)')
        self.make_tag()
        e('v_mov_b32 v13, s34')
        self.keep_time(74)
        e('s_waitcnt vmcnt(0)')
        self.keep_time(60)
        for t in range(4):
            for kk in range(4):
                for hf in range(2):
                    r = WB + 20*t + 4*kk + 2*hf
                    e(f'ds_read_b64_tr_b16 v[{r}:{r+1}], v5 offset:{L_WQ + (32*kk + 4*hf)*128 + 32*t}')
            r = WB + 20*t + 16
            e(f'ds_read_b64_tr_b16 v[{r}:{r+1}], v6 offset:{L_WQ + 128*128 + 32*t}')
        for t in range(4):
            e(f's_waitcnt lgkmcnt({min(15, 9*(3-t))})')
            for kk in range(4):
                c = '0' if kk == 0 else rng(DQ + 4*t)
                e(f'v_mfma_f32_16x16x32_bf16 {rng(DQ + 4*t)}, {rng(XA + 4*kk)}, {rng(WB + 20*t + 4*kk)}, {c}')
        e('s_nop 3')
        for t in range(4):
            r = WB + 20*t + 16
            e(f'v_mfma_f32_16x16x16_bf16 {rng(DQ + 4*t)}, v[{XA+16}:{XA+17}], v[{r}:{r+1}], {rng(DQ + 4*t)}')
        e('s_nop 4')
        for t in range(4):
            for b in range(1, 4):
                e(f'v_mov_b32_dpp v{DQ+4*t}, v{DQ+4*t+b} quad_perm:[0,1,2,3] row_mask:{1 << b:#x} bank_mask:0xf')
        self.pack4(36, [DQ + 4*t for t in range(4)], 13)
        e('v_mov_b32 v5, 0')
        self.read_loc(5, 14)
        self.publish(['buffer_store_dwordx4 v[36:39], v7, s[28:31], s46 offen',
                      's_mov_b32 exec_hi, 0',
                      'buffer_store_dwordx4 v[8:11], v4, s[28:31], s45 offen',
                      's_mov_b32 exec_hi, -1'])
        self.keep_time(62)
        e('s_mov_b32 s48, 0')
        if self.qd:
            e(f's_sleep {self.qd}')
        if self.abl & 10:
            e('s_branch L_qok')
        e('L_qpoll:')
        for k in range(4):
            e(f'buffer_load_dwordx4 {rng(16 + 4*k)}, v4, s[28:31], s50 offen offset:{1024*k} sc1')
        e('s_add_u32 s48, s48, 1')
        e('s_waitcnt vmcnt(0)')
        self.check4([16, 20, 24, 28], 32)
        e('s_nop 0')
        e('s_cbranch_vccz L_qok')
        e(f's_sleep {self.qslp}')
        e(f's_cmp_lt_u32 s48, {SPIN}')
        e('s_cbranch_scc1 L_qpoll')
        e('L_qok:')
        self.unpack_sum4([16, 20, 24, 28])
        e('v_cvt_pk_bf16_f32 v20, v16, v17')
        e('v_cvt_pk_bf16_f32 v21, v18, v19')
        e(f'ds_write_b16 v12, v20 offset:{L_Q}')
        e(f'ds_write_b16_d16_hi v12, v20 offset:{L_Q + 32}')
        e(f'ds_write_b16 v12, v21 offset:{L_Q + 64}')
        e(f'ds_write_b16_d16_hi v12, v21 offset:{L_Q + 96}')
        e('s_waitcnt lgkmcnt(0)')
        self.keep_time(64)
        e('s_barrier')
        self.wait_mid('L_mlwait', 5, 48)
        e('s_waitcnt vmcnt(0)')
        for h in range(2):
            m = [16 + 4*w + 2*h for w in range(4)]
            d = 36 + 4*h
            e(f'v_max3_f32 v{d}, v{m[0]}, v{m[1]}, v{m[2]}')
            e(f'v_max_f32 v{d}, v{d}, v{m[3]}')
            for w in range(4):
                e(f'v_sub_f32 v{44+w}, v{m[w]}, v{d}')
                e(f'v_exp_f32 v{44+w}, v{44+w}')
            e(f'v_mov_b32 v{d+1}, s34')
            e(f'v_mul_f32 v{d+2}, v44, v{m[0]+1}')
            for w in range(1, 4):
                e(f'v_fmac_f32 v{d+2}, v{44+w}, v{m[w]+1}')
            e(f'v_mov_b32 v{d+3}, s34')
        e('s_mov_b64 exec, 1')
        if self.abl & 64:
            e('s_branch L_wrdy_ok')
        self.publish(['buffer_store_dwordx4 v[36:39], v5, s[28:31], s47 offen offset:2048',
                      'buffer_store_dwordx4 v[40:43], v5, s[28:31], s47 offen offset:2064'])
        e('s_mov_b32 s48, 0')
        for _ in range(self.mld):
            e('s_sleep 127')
        e('L_gml:')
        e(f's_sleep {self.slp}')
        for s_ in range(4):
            for h in range(2):
                e(f'buffer_load_dwordx4 {rng(64 + 8*s_ + 4*h)}, v5, s[28:31], s44 offen offset:{2048 + 256*s_ + 16*h} sc1')
        e('s_add_u32 s48, s48, 1')
        e('s_waitcnt vmcnt(0)')
        e('v_mov_b32 v32, 0')
        for i in range(8):
            e(f'v_xor_b32 v33, s34, v{65 + 4*i}')
            e(f'v_xor_b32 v34, s34, v{67 + 4*i}')
            e('v_or3_b32 v32, v32, v33, v34')
        e('v_cmp_ne_u32 vcc, 0, v32')
        e('s_nop 0')
        e('s_cbranch_vccz L_gmlok')
        e(f's_cmp_lt_u32 s48, {SPIN}')
        e('s_cbranch_scc1 L_gml')
        e('L_gmlok:')
        for h in range(2):
            m = [64 + 8*s_ + 4*h for s_ in range(4)]
            e(f'v_max3_f32 v36, v{m[0]}, v{m[1]}, v{m[2]}')
            e(f'v_max_f32 v36, v36, v{m[3]}')
            for s_ in range(4):
                e(f'v_sub_f32 v{44+s_}, v{m[s_]}, v36')
                e(f'v_exp_f32 v{44+s_}, v{44+s_}')
            e('s_nop 0')
            e(f'v_mul_f32 v37, v44, v{m[0]+2}')
            for s_ in range(1, 4):
                e(f'v_fmac_f32 v37, v{44+s_}, v{m[s_]+2}')
            e('v_rcp_f32 v37, v37')
            for w in range(4):
                e(f'v_sub_f32 v{44+w}, v{16 + 4*w + 2*h}, v36')
                e(f'v_exp_f32 v{44+w}, v{44+w}')
            e('s_nop 0')
            for w in range(4):
                e(f'v_mul_f32 v{44+w}, v{44+w}, v37')
            e('s_nop 0')
            for w in range(4):
                e(f'v_readfirstlane_b32 s{50 + 2*w + h}, v{44+w}')
        e('s_cmp_ge_u32 s2, 144')
        e('s_cbranch_scc1 L_wrdy_ok')
        e('s_mov_b64 exec, 0xffff')
        self.proj_role(40, 41)
        e(f's_mul_i32 s40, s40, {self.PS}')
        e(f's_add_u32 s40, s40, {PBASE + 2052}')
        e(f's_mov_b32 s41, {16 * self.PS}')
        e('v_lshrrev_b32 v6, 2, v0')
        e('v_mul_lo_u32 v6, s41, v6')
        e('v_and_b32 v7, 3, v0')
        e('v_lshl_add_u32 v6, v7, 8, v6')
        e('s_mov_b32 s48, 0')
        e('L_wrdy:')
        e(f's_sleep {self.slp}')
        e('buffer_load_dword v8, v6, s[28:31], s40 offen sc1')
        e('s_add_u32 s48, s48, 1')
        e('s_waitcnt vmcnt(0)')
        e('v_cmp_ne_u32 vcc, s34, v8')
        e('s_nop 0')
        e('s_cbranch_vccz L_wrdy_ok')
        e(f's_cmp_lt_u32 s48, {SPIN}')
        e('s_cbranch_scc1 L_wrdy')
        e('L_wrdy_ok:')
        e('s_mov_b64 exec, -1')
        e('v_lshlrev_b32 v5, 3, v0')
        e('s_mov_b32 s48, 0x55555555')
        e('s_setprio 3')
        self.keep_time(66)
        e('s_barrier')
        self.keep_time(68)
        for w in range(4):
            e(f'ds_read_b128 {rng(16 + 4*w)}, v4 offset:{L_O + 1024*w}')
        for w in range(4):
            e(f's_waitcnt lgkmcnt({3-w})')
            for r in range(4):
                if w == 0:
                    e(f'v_mul_f32 v{32+r}, s{50 + (r & 1)}, v{16+r}')
                else:
                    e(f'v_fmac_f32 v{32+r}, s{50 + 2*w + (r & 1)}, v{16 + 4*w + r}')
        e('v_cvt_pk_bf16_f32 v36, v32, v34')
        e('v_cvt_pk_bf16_f32 v37, v33, v35')
        e('v_min_u32 v36, 0xfffffffe, v36')
        e('v_min_u32 v37, 0xfffffffe, v37')
        e('s_nop 0')
        e('v_mov_b32_dpp v38, v36 quad_perm:[1,1,3,3] row_mask:0xf bank_mask:0xf')
        e('v_mov_b32_dpp v39, v37 quad_perm:[1,1,3,3] row_mask:0xf bank_mask:0xf')
        e('s_mov_b32 exec_lo, s48')
        e('s_mov_b32 exec_hi, s48')
        self.publish(['buffer_store_dwordx4 v[36:39], v5, s[28:31], s45 offen'])
        self.keep_time(70)
        e('s_cmp_ge_u32 s2, 144')
        e('s_cbranch_scc1 L_hdone')
        e('s_barrier')
        e('s_barrier')
        e('s_barrier')
        e('L_hdone:')
        if self.stamps:
            e('s_mov_b64 exec, -1')
            for k, sr in enumerate((60, 62, 64, 66, 68, 70)):
                self.flush_time(6 + k, sr)
            self.flush_time(18, 74)
        e('s_endpgm')

    def balancer(self):
        e = self.e
        e('s_getreg_b32 s40, hwreg(HW_REG_XCC_ID, 0, 4)')
        e('v_lshlrev_b32 v1, 2, v0')
        e('v_lshlrev_b32 v2, 4, v0')
        for r in range(4):
            e(f'v_mov_b32 v{4+r}, 0')
        e(f'ds_write_b128 v2, v[4:7] offset:{L_PR}')
        e(f'ds_write_b128 v2, v[4:7] offset:{L_PR + 1024}')
        e('s_waitcnt lgkmcnt(0)')
        e('s_load_dword s34, s[18:19], 0')
        self.srd(28, 18, WSWIN)
        e('s_mul_i32 s46, s40, 4352')
        e(f's_add_u32 s46, s46, {XOFF}')
        e('s_lshl_b32 s40, s40, 12')
        e(f's_add_u32 s40, s40, {BOFF}')
        e('s_lshr_b32 s41, s2, 3')
        e('s_lshl_b32 s41, s41, 2')
        e('v_mov_b32 v3, s41')
        e('s_mov_b32 s48, 0')
        e('s_waitcnt lgkmcnt(0)')
        self.make_tag()
        if self.loc:
            e('s_and_b32 s41, s2, 7')
            e('s_add_u32 s41, s41, s34')
            e('v_mov_b32 v8, s41')
            e('s_mov_b64 exec, 1')
            e('buffer_store_dword v8, v3, s[28:31], s40 offen offset:256')
            e('s_mov_b32 exec_lo, -1')
            e('L_rz:')
            e('buffer_load_dword v9, v1, s[28:31], s40 offen offset:256 sc1')
            e('s_add_u32 s48, s48, 1')
            e('s_waitcnt vmcnt(0)')
            e('v_cmp_ne_u32 vcc, s41, v9')
            e('s_nop 0')
            e('s_cbranch_vccz L_rzok')
            e('s_cmp_lt_u32 s48, 6')
            e('s_cbranch_scc1 L_rz')
            e('s_add_u32 s41, s34, 1')
            e('s_branch L_rzdone')
            e('L_rzok:')
            e('s_mov_b32 s41, s34')
            e('L_rzdone:')
            e('v_mov_b32 v8, s41')
            e(f'ds_write_b32 v4, v8 offset:{L_LOC}')
            e('s_mov_b64 exec, -1')
        if self.hot:
            e('s_lshr_b32 s50, s32, 2')
            e(f's_mul_i32 s50, s50, {self.PS}')
            e(f's_add_u32 s50, s50, {PBASE}')
            e('s_and_b32 s51, s32, 3')
            e('s_lshl_b32 s52, s51, 10')
            e('s_add_u32 s52, s52, 4096')
            e('s_lshl_b32 s51, s51, 9')
            e('s_sub_u32 s51, s51, 1024')
            e('v_mov_b32 v20, s52')
            e('v_mov_b32 v21, s51')
            e('v_cmp_gt_u32 vcc, 8, v0')
            e('s_nop 1')
            e('v_cndmask_b32 v20, v21, v20, vcc')
            e('v_lshl_add_u32 v20, v0, 7, v20')
        if self.xb:
            e(f's_mov_b32 s60, {self.ck0}')
            for j in range(8):
                e(f's_mov_b32 s{72+j}, -1')
                e(f's_mov_b32 s{80+j}, 0')
        e('s_lshl_b32 s34, s34, 16')
        e('s_barrier')
        e('L_bal:')
        e(f's_sleep {self.bslp}')
        e(f'ds_read2st64_b32 v[8:9], v4 offset0:{L_PR // 256} offset1:{L_PR // 256 + 1}')
        e(f'ds_read2st64_b32 v[10:11], v4 offset0:{L_PR // 256 + 2} offset1:{L_PR // 256 + 3}')
        e('s_add_u32 s48, s48, 1')
        e('s_waitcnt lgkmcnt(0)')
        e('v_add3_u32 v8, v8, v9, v10')
        e('v_add_u32 v8, v8, v11')
        e('v_or_b32 v9, s34, v8')
        e('v_readfirstlane_b32 s42, v8')
        e('s_mov_b64 exec, 1')
        e('buffer_store_dword v9, v3, s[28:31], s40 offen')
        e('s_mov_b64 exec, -1')
        e(f's_cmp_ge_u32 s42, {4 * 248}')
        e('s_cbranch_scc1 L_end')
        if self.xb:
            e('s_cmp_ge_u32 s2, 8')
            e('s_cbranch_scc1 L_nosl')
            for j in range(8):
                e(f's_load_dword s{64+j}, s[18:19], {XOFF + 4352*j} glc')
            e('L_nosl:')
        e('v_mov_b32 v10, 0')
        e(f's_mov_b32 exec_hi, {1 if self.xb else 0}')
        e('buffer_load_dword v10, v1, s[28:31], s40 offen sc1')
        if self.hot:
            e('s_mov_b64 exec, 0xfff')
            e('buffer_load_dword v21, v20, s[28:31], s50 offen sc1')
            e('s_mov_b32 exec_lo, -1')
        e('s_mov_b32 exec_hi, -1')
        e('s_waitcnt vmcnt(0)')
        e('v_xor_b32 v10, s34, v10')
        e('v_add_u32 v11, -1, v10')
        e('v_cmp_gt_u32 vcc, 0xffff, v11')
        e('s_nop 1')
        e('v_cndmask_b32 v10, 0, v10, vcc')
        e('s_bcnt1_i32_b32 s43, vcc_lo')
        for k in (1, 2, 4, 8):
            e('s_nop 1')
            e(f'v_add_u32_dpp v10, v10, v10 row_ror:{k} row_mask:0xf bank_mask:0xf')
        e('s_lshl_b32 s43, s43, 2')
        e('v_cvt_f32_u32 v12, s43')
        e('v_readlane_b32 s44, v10, 0')
        e('v_readlane_b32 s45, v10, 16')
        e('v_rcp_f32 v12, v12')
        e('s_add_u32 s44, s44, s45')
        e('v_cvt_f32_u32 v13, s44')
        e('v_mul_f32 v13, v13, v12')
        e('v_cvt_u32_f32 v16, v13')
        e(f'v_add_u32 v12, {self.bias}, v16')
        if self.xb:
            e('v_readlane_b32 s45, v10, 32')
            e('s_nop 1')
            e('v_add_u32 v12, s45, v12')
        e('v_mov_b32 v13, v12')
        e('v_mov_b32 v14, v12')
        e('v_mov_b32 v15, v12')
        e(f'ds_write_b128 v2, v[12:15] offset:{L_PR + 1024}')
        if self.xb:
            e('s_cmp_ge_u32 s2, 8')
            e('s_cbranch_scc1 L_balnext')
            e('v_readfirstlane_b32 s47, v16')
            e('v_or_b32 v17, s34, v16')
            e('s_mov_b64 exec, 1')
            e('s_cmp_lt_u32 s47, s60')
            e('s_cbranch_scc1 L_nopub')
            e('buffer_store_dword v17, v4, s[28:31], s46 offen sc1')
            e(f's_add_u32 s60, s60, {self.ck}')
            e('L_nopub:')
            e('s_mov_b32 s43, 0')
            e('s_mov_b32 s44, 0')
            e('s_waitcnt lgkmcnt(0)')
            for j in range(8):
                e(f's_xor_b32 s{64+j}, s{64+j}, s34')
                e(f's_or_b32 s43, s43, s{64+j}')
                e(f's_sub_i32 s45, s{64+j}, s47')
                e(f's_cmp_lg_u32 s{64+j}, s{72+j}')
                e(f's_cselect_b32 s{80+j}, s45, s{80+j}')
                e(f's_mov_b32 s{72+j}, s{64+j}')
                e(f's_add_i32 s44, s44, s{80+j}')
            e('s_ashr_i32 s44, s44, 3')
            e(f's_add_i32 s44, s44, {self.lagc}')
            e('s_max_i32 s44, s44, 0')
            e(f's_min_i32 s44, s44, {self.xmax}')
            e('s_cmp_lt_u32 s43, 0x10000')
            e('s_cselect_b32 s44, s44, 0')
            e('s_or_b32 s44, s44, s34')
            e('v_mov_b32 v17, s44')
            e('buffer_store_dword v17, v4, s[28:31], s40 offen offset:128')
            e('s_mov_b64 exec, -1')
            e('L_balnext:')
        e(f's_cmp_lt_u32 s48, {SPIN}')
        e('s_cbranch_scc1 L_bal')
        e('s_endpgm')

    def build(self):
        e = self.e
        e('.amdgcn_target "amdgcn-amd-amdhsa--gfx950"')
        e('.text')
        e(f'.globl {NAME}')
        e('.p2align 8')
        e(f'.type {NAME},@function')
        e(f'{NAME}:')
        e('s_cmp_ge_u32 s2, 256')
        e('s_cbranch_scc1 L_end')
        self.keep_time(58)
        if self.dbgt:
            e('s_memrealtime s[68:69]')
        if self.clk:
            e('s_memrealtime s[88:89]')
        e('s_load_dwordx16 s[4:19], s[0:1], 0')
        e('v_lshrrev_b32 v1, 6, v0')
        e('v_and_b32 v0, 63, v0')
        e('v_readfirstlane_b32 s3, v1')
        e('s_and_b32 s32, s2, 15')
        e('s_lshl_b32 s32, s32, 2')
        e('s_bfe_u32 s31, s2, 0x20004')
        e('s_or_b32 s32, s32, s31')
        e('s_and_b32 s31, s2, 0xc0')
        e('s_or_b32 s32, s32, s31')
        e('s_cmp_eq_u32 s3, 4')
        e('s_cbranch_scc1 L_helper')
        if self.bal:
            e('s_cmp_eq_u32 s3, 5')
            e('s_cbranch_scc1 L_balancer')
        self.stream()
        e('L_helper:')
        self.helper()
        if self.bal:
            e('L_balancer:')
            self.balancer()
        e('L_end:')
        e('s_endpgm')
        e('L_codeend:')
        nv = 256 if self.stamps else 248
        e('.section .rodata,"a"')
        e('.p2align 6')
        e(f'.amdhsa_kernel {NAME}')
        e(f'  .amdhsa_next_free_vgpr {nv}')
        e('  .amdhsa_next_free_sgpr 96')
        e(f'  .amdhsa_accum_offset {nv}')
        e('  .amdhsa_group_segment_fixed_size 0')
        e('  .amdhsa_kernarg_size 64')
        e('  .amdhsa_user_sgpr_count 2')
        e('  .amdhsa_user_sgpr_kernarg_segment_ptr 1')
        e('  .amdhsa_system_sgpr_workgroup_id_x 1')
        e('.end_amdhsa_kernel')
        errs = check([l.lstrip() if l.lstrip().startswith('.') else l for l in self.o])
        for x in errs:
            print('HAZARD', x, file=sys.stderr)
        txt = HEADER + f'; @launch grid=(256,1,1) block=({384 if self.bal else 320},1,1) lds={LDS_BYTES}\n' + '\n'.join(self.o) + '\n'
        return txt, errs


if __name__ == '__main__':
    kw = {}
    out = sys.argv[1]
    for a in sys.argv[2:]:
        k, v = a.split('=')
        kw[k] = int(v)
    txt, errs = G(**kw).build()
    open(out, 'w').write(txt)
    sys.exit(1 if errs else 0)
```

```python
import sys, struct
from hazard import check

NAME = "standalone__gqa_block_cached__decode_kernel"

HEADER = """; Kernarg layout for this problem (64 bytes, ptrs only, base s[0:1]):
"""

PBASE = 0x100000
POFF = 0x80000
WSWIN = 0x10000000
BOFF = 0x10000
XOFF = 0x20000
STAMP0 = 0x10000000
STAMP1 = 0x10100000

L_WQ = 0x0000
L_WO = 0x5000
L_A = 0x0000
L_Q = 0xD000
L_ML = 0xD200
L_O = 0xD400
L_PR = 0xE400
L_LOC = 0xD240
LDS_BYTES = 0xEC00

def f2u(x):
    return struct.unpack('<I', struct.pack('<f', x))[0]

SCALE = f2u(128 ** -0.5 * 1.4426950408889634)
SPIN = 1 << 20
T_WO, T_TR, T_A, T_P, T_OL, T_AW = 184, 186, 188, 189, 190, 191


class G:
    def __init__(self, D=5, LV=16, stamps=False, D0=None, dbgt=0, kf=1, vf=1, pf=1, enc=-1, prio=3, slp=64, qslp=8, pre=2, dfn=0, d2=16, qd=0, clr=0, abl=0, kfirst=0, wqp=0, mld=0, wod=1, dper=0, il=0, pslp=0, rslp=0, PS=8192, clk=0, tau=1094, toff=200, dh=7, bal=1, bias=10, bslp=1, bstep=4, xm=1, p4=1, osc=0, xb=0, lagc=10, lper=2, xmax=12, loc=1, hot=0, ck=24, ck0=64, him=0, xmin=0, dl=4, encm=1):
        self.o = []
        self.D = D
        self.D0 = D0 or D
        self.LV = LV
        self.stamps = stamps
        self.dbgt = dbgt
        FL = ['', ' nt', ' sc1', ' sc1 nt', ' sc0 sc1', ' sc0 sc1 nt', ' sc0', ' sc0 nt']
        self.kf, self.vf = FL[kf], FL[vf]
        self.pf = pf
        self.enc = enc
        self.prio = prio
        self.slp = slp
        self.qslp = qslp
        self.pre = pre
        self.qd = qd
        self.abl = abl
        self.mld = mld
        self.dper = dper
        self.il = il
        self.PS = PS
        self.encm = encm
        self.him, self.xmin, self.dl = him, xmin, dl
        self.ck, self.ck0 = ck, ck0
        self.hot = hot
        self.loc = loc
        self.xb, self.lagc, self.lper, self.xmax = xb, lagc, lper, xmax
        self.osc = osc
        self.xm, self.p4 = xm, p4
        self.bal, self.bias, self.bslp, self.bstep = bal, bias, bslp, bstep
        self.clk, self.tau, self.toff, self.dh = clk, tau, toff, dh
        self.pslp = pslp
        self.rslp = rslp
        self.wod = wod
        self.kfirst = kfirst
        self.wqp = wqp
        self.clr = clr
        self.dfn = dfn
        self.d2 = d2

    def e(self, s):
        self.o.append(s if s.endswith(':') or s.startswith('.') or s.startswith(';') else '    ' + s)

    def stamp(self, idx, sbase=80):
        if not self.stamps:
            return
        e = self.e
        e('s_memrealtime s[80:81]')
        e(f's_add_u32 s82, s18, {STAMP1 + idx * 8}')
        e('s_addc_u32 s83, s19, 0')
        e('s_lshl_b32 s84, s2, 8')
        e('s_waitcnt lgkmcnt(0)')
        e('v_mov_b32 v250, s84')
        e('v_mov_b32 v252, s80')
        e('v_mov_b32 v253, s81')
        e('s_mov_b64 s[56:57], exec')
        e('s_mov_b64 exec, 1')
        e('global_store_dwordx2 v250, v[252:253], s[82:83]')
        e('s_mov_b64 exec, s[56:57]')

    def keep_time(self, sreg):
        if self.stamps or self.dbgt:
            self.e(f's_memrealtime s[{sreg}:{sreg+1}]')

    def flush_time(self, idx, sreg):
        if not self.stamps:
            return
        e = self.e
        e(f's_add_u32 s82, s18, {STAMP1 + idx * 8}')
        e('s_addc_u32 s83, s19, 0')
        e('s_lshl_b32 s84, s2, 8')
        e('s_waitcnt lgkmcnt(0)')
        e('v_mov_b32 v250, s84')
        e(f'v_mov_b32 v252, s{sreg}')
        e(f'v_mov_b32 v253, s{sreg+1}')
        e('s_mov_b64 s[56:57], exec')
        e('s_mov_b64 exec, 1')
        e('global_store_dwordx2 v250, v[252:253], s[82:83]')
        e('s_mov_b64 exec, s[56:57]')

    def srd(self, d, base, size, add=None):
        e = self.e
        if add is None:
            e(f's_mov_b32 s{d}, s{base}')
            e(f's_mov_b32 s{d+1}, s{base+1}')
        else:
            e(f's_add_u32 s{d}, s{base}, {add}')
            e(f's_addc_u32 s{d+1}, s{base+1}, 0')
        e(f's_mov_b32 s{d+2}, {size:#x}')
        e(f's_mov_b32 s{d+3}, 0x20000')

    def stream(self):
        e, D, LV = self.e, self.D, 16
        vK, vV = 1, 2
        QB = [4, 8]
        DT = [12, 16]
        T, X = 20, 21
        A = 24
        MK = 28
        OA = 32
        M, L, T2, T3 = 36, 37, 38, 39
        S = 40
        RING = 56
        VP = 184
        rng = lambda r: f'v[{r}:{r+3}]'
        kslot = lambda n: RING + 4 * (n % 32)
        vslot = lambda v: VP + 4 * v if v < 16 else RING + 4 * ((v - 16) % 32)
        kpos = lambda n: 16 + n
        vpos = lambda v: v if v < 16 else 128 + v
        st = {'issued': -1, 'landed': -1}

        def need_landed(x):
            if x > st['landed']:
                e(f's_waitcnt vmcnt({st["issued"] - x})')
                st['landed'] = x

        lab = [0]

        def clk_step():
            e('s_waitcnt lgkmcnt(0)')
            e('s_sub_u32 s86, s88, s85')
            e('s_mul_i32 s86, s86, 10')
            e('s_cmp_gt_u32 s86, s87')
            e('s_cselect_b32 vcc_lo, 1, 0')
            e(f's_add_u32 s87, s87, {self.tau}')
            e('s_memrealtime s[88:89]')

        vPos, vRef, vPA = 22, 23, 3

        def bal_step(i):
            if not self.bal:
                return
            if i % self.bstep == self.bstep - 2:
                e(f'v_add_u32 v{vPos}, {self.bstep}, v{vPos}')
                e(f'ds_write_b32 v{vPA}, v{vPos} offset:{L_PR}')
                e(f'ds_read_b32 v{vRef}, v{vPA} offset:{L_PR + 1024}')
            if i % self.bstep == self.bstep - 1:
                e('s_waitcnt lgkmcnt(0)')
                e(f'v_cmp_gt_u32 vcc, v{vRef}, v{vPos}')
                if self.him:
                    e(f'v_sub_u32 v{vRef}, v{vPos}, v{vRef}')
                    e(f'v_add_u32 v{vRef}, {-self.him - 1}, v{vRef}')
                    e(f'v_cmp_gt_u32 s[92:93], 32, v{vRef}')

        def gate(pos, d):
            if (self.clk or self.bal) and st.get('adapt') and d == D:
                lab[0] += 1
                e(f's_cbranch_vccnz L_dg{lab[0]}')
                e(f's_waitcnt vmcnt({D-1})')
                if self.him:
                    e('s_cmp_eq_u32 s92, 0')
                    e(f's_cbranch_scc1 L_dg{lab[0]}')
                    e(f's_waitcnt vmcnt({self.dl-1})')
                e(f'L_dg{lab[0]}:')
                d = self.dh
            if self.dper and d == D and pos % self.dper == 0:
                d = D + 1
            if pos >= d:
                e(f's_waitcnt vmcnt({d-1})')
                st['landed'] = max(st['landed'], pos - d)
            st['issued'] = pos

        def kissue(n, d=None):
            gate(kpos(n), d or D)
            e(f'buffer_load_dwordx4 {rng(kslot(n))}, v{vK}, s[20:23], s28 offen offset:{(n % 4) * 1024}{self.kf}')
            if n % 4 == 3:
                e('s_add_u32 s28, s28, 0x4000')

        def vissue(v, d=None):
            if 16 <= v < 32 and st.get('adapt'):
                bal_step(v)
            gate(vpos(v), d or D)
            e(f'buffer_load_dwordx4 {rng(vslot(v))}, v{vV}, s[24:27], s33 offen offset:{(v % 4) * 1024}{self.vf}')
            if v % 4 == 3:
                e('s_add_u32 s33, s33, 0x4000')

        def kadds(pair, sreg):
            d = DT[pair & 1]
            i = pair & 3
            e(f'v_add_f32_dpp v{T}, v{d + (i+1) % 4}, v{d + i} row_ror:12 row_mask:0xf bank_mask:0xf')
            e(f'v_add_f32_dpp v{T}, v{d + (i+2) % 4}, v{T} row_ror:8 row_mask:0xf bank_mask:0xf')
            e(f'v_add_f32_dpp v{sreg}, v{d + (i+3) % 4}, v{T} row_ror:4 row_mask:0xf bank_mask:{1 << i:#x}')

        def kmfma(n):
            d = DT[(n >> 1) & 1]
            c = '0' if n % 2 == 0 else rng(d)
            e(f'v_mfma_f32_16x16x32_bf16 {rng(d)}, {rng(kslot(n))}, {rng(QB[n & 1])}, {c}')

        def shift4():
            for i in range(12):
                e(f'v_mov_b32 v{S+i}, v{S+i+4}')

        def vprep(pn, yreg):
            i = pn & 7
            e(f'v_mov_b32_dpp v{X}, v{yreg} row_newbcast:{2*i} row_mask:0xf bank_mask:0x3')
            e(f'v_mov_b32_dpp v{X}, v{yreg} row_newbcast:{2*i+1} row_mask:0xf bank_mask:0xc')
            for r in range(4):
                e(f'v_and_b32 v{A+r}, v{X}, v{MK+r}')

        def vmfma(v, first=False):
            c = '0' if first else rng(OA)
            e(f'v_mfma_f32_16x16x32_bf16 {rng(OA)}, {rng(A)}, {rng(vslot(v))}, {c}')

        e(f'v_lshlrev_b32 v{vV}, 4, v0')
        e('s_lshl_b32 s31, s32, 19')
        e('s_lshl_b32 s33, s3, 12')
        e('s_lshl_b32 s28, s3, 12')
        if self.prio:
            e(f's_setprio {self.prio}')
        e('s_waitcnt lgkmcnt(0)')
        self.keep_time(70)
        if self.clk:
            e('s_mov_b32 s85, s88')
        self.srd(24, 8, 0x80000, add='s31')
        for v in range(min(self.D0, 16)):
            vissue(v, d=self.D0)
        e('s_load_dword s34, s[18:19], 0')
        self.srd(20, 6, 0x80000, add='s31')
        e('v_lshrrev_b32 v3, 4, v0')
        e('v_bfe_u32 v4, v0, 2, 2')
        e('v_and_b32 v5, 3, v0')
        e('v_lshlrev_b32 v3, 6, v3')
        e('v_lshlrev_b32 v4, 8, v4')
        e('v_lshlrev_b32 v5, 4, v5')
        e(f'v_add3_u32 v{vK}, v3, v4, v5')
        e(f's_mov_b32 s30, {SCALE:#x}')
        e('v_lshrrev_b32 v3, 3, v0')
        e('v_xor_b32 v3, v3, v0')
        e('v_and_b32 v3, 1, v3')
        e('v_lshlrev_b32 v3, 4, v3')
        e('v_mov_b32 v4, 0xffff')
        e('v_lshlrev_b32 v3, v3, v4')
        e('v_bfe_u32 v4, v0, 1, 2')
        for r in range(4):
            e(f'v_cmp_eq_u32 vcc, {r}, v4')
            e('s_nop 1')
            e(f'v_cndmask_b32 v{MK+r}, 0, v3, vcc')
        e('v_and_b32 v3, 1, v0')
        e('v_lshlrev_b32 v3, 8, v3')
        e('v_lshrrev_b32 v4, 2, v0')
        e(f'v_lshl_add_u32 v{T2}, v4, 4, v3')
        e('v_and_b32 v3, 2, v0')
        e('v_cmp_ne_u32 vcc, 0, v3')
        for v in range(min(self.D0, 16), 16):
            vissue(v, d=self.D0)
            if v == self.D0:
                self.keep_time(72)
        self.keep_time(76)
        for n in range(32):
            kissue(n, d=self.D0 + max(0, n - (31 - self.pre)))
            if n == 8:
                self.keep_time(78)
        self.keep_time(60)
        e('s_barrier')
        e(f'ds_read_b128 {rng(DT[0])}, v{T2} offset:{L_Q}')
        e('s_mov_b32 s29, 0')
        e(f's_waitcnt lgkmcnt(0) vmcnt({min(self.D0, 30)})')
        self.keep_time(62)
        self.make_tag()
        for r in range(4):
            e(f'v_cndmask_b32 v{QB[1]+r}, 0, v{DT[0]+r}, vcc')
            e(f'v_cndmask_b32 v{QB[0]+r}, v{DT[0]+r}, 0, vcc')
        e('s_nop 1')
        if self.clk:
            e('s_mov_b64 vcc, 0')
            e('s_memrealtime s[88:89]')
            e(f's_mov_b32 s87, {self.toff * 10 + 6 * self.tau}')
            st['adapt'] = True
        if self.bal:
            e('s_mov_b64 vcc, 0')
            e('s_mov_b64 s[92:93], 0')
            e(f'v_mov_b32 v{vPos}, 48')
            e(f'v_lshlrev_b32 v{vPA}, 2, v0')
            e('s_lshl_b32 s31, s3, 8')
            e(f'v_add_u32 v{vPA}, s31, v{vPA}')
            st['adapt'] = True
        self.align()
        e('L_kloop:')
        for p in range(16):
            n = 2 * p
            if self.clk and p % 4 == 3:
                clk_step()
            bal_step(n)
            kmfma(n)
            kissue(n + 32)
            bal_step(n + 1)
            kmfma(n + 1)
            kadds((p - 1) % 16, S + 12 + (((p - 1) % 16) >> 2))
            if p == 0:
                shift4()
            kissue(n + 33)
        e('s_add_u32 s29, s29, 1')
        e('s_cmp_lt_u32 s29, 3')
        e('s_cbranch_scc1 L_kloop')
        nv = 16
        st['issued'], st['landed'] = kpos(127), kpos(127) - max(D + 1, self.dh if (self.clk or self.bal) else 0)
        for p in range(16):
            n = 2 * p
            need_landed(kpos(96 + n + 1))
            kmfma(n)
            kmfma(n + 1)
            e('s_nop 0')
            kadds((p - 1) % 16, S + 12 + (((p - 1) % 16) >> 2))
            if p == 0:
                shift4()
            if p % 3 == 0:
                vissue(nv); nv += 1
            else:
                e('s_nop 1')
        e('s_nop 1')
        kadds(15, S + 15)
        e(f'v_max3_f32 v{M}, v{S}, v{S+1}, v{S+2}')
        e(f'v_max3_f32 v{T}, v{S+3}, v{S+4}, v{S+5}')
        for i in range(6, 14, 4):
            e(f'v_max3_f32 v{M}, v{M}, v{S+i}, v{S+i+1}')
            e(f'v_max3_f32 v{T}, v{T}, v{S+i+2}, v{S+i+3}')
        e(f'v_max3_f32 v{M}, v{M}, v{S+14}, v{S+15}')
        e(f'v_max_f32 v{M}, v{M}, v{T}')

        def allreduce(reg, op):
            for k in (2, 4, 8):
                e('s_nop 1')
                e(f'{op}_dpp v{reg}, v{reg}, v{reg} row_ror:{k} row_mask:0xf bank_mask:0xf')
            for sw in ('v_permlane16_swap_b32', 'v_permlane32_swap_b32'):
                e(f'v_mov_b32 v{T}, v{reg}')
                e('s_nop 1')
                e(f'{sw} v{reg}, v{T}')
                e(f'{op} v{reg}, v{reg}, v{T}')
        allreduce(M, 'v_max_f32')
        e(f'v_mul_f32 v{M}, s30, v{M}')
        vissue(nv); nv += 1
        for i in range(16):
            e(f'v_fma_f32 v{S+i}, v{S+i}, s30, -v{M}')
            e(f'v_exp_f32 v{S+i}, v{S+i}')
            if i == 10:
                vissue(nv); nv += 1
        e(f'v_add_f32 v{L}, v{S}, v{S+1}')
        for i in range(2, 16):
            e(f'v_add_f32 v{L}, v{L}, v{S+i}')
        vissue(nv); nv += 1
        for i in range(16):
            t = T2 if i & 1 else T3
            e(f'v_mov_b32_dpp v{t}, v{S+i} quad_perm:[1,0,3,2] row_mask:0xf bank_mask:0xf')
            e(f'v_cvt_pk_bf16_f32 v{S+i}, v{S+i}, v{t}')
        vissue(nv); nv += 1
        allreduce(L, 'v_add_f32')
        e(f'v_lshlrev_b32 v{T2}, 3, v0')
        e('s_lshl_b32 s31, s3, 4')
        e(f'v_add_u32 v{T2}, s31, v{T2}')
        e('s_mov_b64 exec, 3')
        e(f'ds_write_b64 v{T2}, v[{M}:{L}] offset:{L_ML}')
        e('s_mov_b64 exec, -1')
        self.keep_time(64)
        for pn in range(16):
            vprep(pn, S + (pn >> 3))
            if pn % 3 == 0 and pn < 15:
                vissue(nv); nv += 1
            else:
                e('s_nop 1')
            vmfma(pn, first=(pn == 0))
        assert nv <= 32, nv
        self.tail_setup()
        while nv < 32:
            vissue(nv); nv += 1
        e('s_mov_b32 s29, 0')
        if self.clk:
            e('s_waitcnt lgkmcnt(0)')
            e('s_memrealtime s[88:89]')
            e(f's_mov_b32 s87, {self.toff * 10 + 20 * self.tau}')
        elif not self.bal:
            e('s_mov_b64 vcc, 0')
        self.align()
        e('L_vloop:')
        sw_it, sw_i = divmod(96 - self.dfn, 32)
        for i in range(32):
            p2 = 16 + i
            if self.dfn and i == sw_i:
                e(f's_cmp_ge_u32 s29, {sw_it}')
                e('s_cselect_b32 vcc_lo, 1, 0')
            if self.clk and i % 8 == 7:
                clk_step()
            bal_step(i)
            vprep(p2, S + (p2 >> 3))
            if self.dfn:
                e(f's_cbranch_vccnz L_g{i}')
                e(f's_waitcnt vmcnt({D-1})')
                e(f'L_g{i}:')
                vissue(32 + i, d=self.d2)
            else:
                vissue(32 + i)
            vmfma(p2)
        shift4()
        e('s_add_u32 s29, s29, 1')
        e('s_cmp_lt_u32 s29, 3')
        e('s_cbranch_scc1 L_vloop')
        self.keep_time(66)
        for i in range(8):
            e('s_mov_b32 m0, s46')
            e('s_add_u32 s46, s46, 1024')
            e(f'buffer_load_dwordx4 v{T_WO + ((i >> 1) & 1)}, s[36:39], s45 offen nt lds')
            e('s_add_u32 s45, s45, 9216')
        for i in range(LV):
            p2 = 16 + i
            vprep(p2, S + (p2 >> 3))
            if LV - 1 - i < (self.d2 if self.dfn else max(D + 1, self.dh if (self.clk or self.bal) else 0)):
                e(f's_waitcnt vmcnt({LV - 1 - i + 8})')
                e('s_nop 0')
            else:
                e('s_nop 1')
            vmfma(p2)
        e('s_cmp_ge_u32 s2, 144')
        e('s_nop 6')
        e(f'ds_write_b128 v{T_OL}, {rng(OA)} offset:{L_O}')
        e('s_waitcnt lgkmcnt(0)')
        self.keep_time(68)
        e('s_barrier')
        e('s_cbranch_scc1 L_notproj')
        BW, AO, PO = 56, 88, 120
        e('s_barrier')
        for j in range(2):
            e(f'buffer_load_dwordx4 {rng(PO + 4*j)}, v{vV}, s[40:43], s44 offen offset:{1024*j} sc1')
        e('s_mov_b32 s48, 0')
        e('s_waitcnt vmcnt(2)')
        e('s_barrier')
        self.keep_time(50)
        for kk in range(8):
            gp = kk >> 1
            for hf in range(2):
                row = 64 * (kk & 1) + 8 * hf + 4 * (gp & 1)
                r = BW + kk * 4 + 2 * hf
                e(f'ds_read_b64_tr_b16 v[{r}:{r+1}], v{T_TR + (gp >> 1)} offset:{L_WO + row * 128}')
        e('s_branch L_ochk')
        self.align()
        e('L_opoll:')
        if self.pslp:
            e(f's_sleep {self.pslp}')
        for j in range(2):
            e(f'buffer_load_dwordx4 {rng(PO + 4*j)}, v{vV}, s[40:43], s44 offen offset:{1024*j} sc1')
        e('L_ochk:')
        e('s_add_u32 s48, s48, 1')
        e(f's_cmp_ge_u32 s48, {SPIN}')
        e('s_cbranch_scc1 L_ook')
        e('s_waitcnt vmcnt(1)')
        e(f'v_max3_u32 v20, v{PO}, v{PO+1}, v{PO+2}')
        e('s_waitcnt vmcnt(0)')
        e(f'v_max3_u32 v21, v{PO+4}, v{PO+5}, v{PO+6}')
        e(f'v_max3_u32 v20, v20, v{PO+3}, v{PO+7}')
        e('v_max_u32 v20, v20, v21')
        e('v_cmp_eq_u32 vcc, -1, v20')
        e('s_and_b64 exec, exec, vcc')
        e('s_cbranch_scc1 L_opoll')
        e('L_ook:')
        e('s_mov_b64 exec, -1')
        e(f'ds_write_b128 v{T_AW}, {rng(PO)} offset:{L_A}')
        e(f'ds_write_b128 v{T_AW}, {rng(PO+4)} offset:{L_A + 2*528}')
        e('s_waitcnt lgkmcnt(0)')
        e('s_barrier')
        self.keep_time(52)
        for kk in range(8):
            e(f'ds_read_b128 {rng(AO + 4*kk)}, v{T_A} offset:{L_A + 64*kk}')
        for kk in range(8):
            c = '0' if kk == 0 else 'v[12:15]'
            e(f's_waitcnt lgkmcnt({7-kk})')
            e(f'v_mfma_f32_16x16x32_bf16 v[12:15], {rng(AO + 4*kk)}, {rng(BW + 4*kk)}, {c}')
        e('v_mov_b32 v17, s34')
        e('v_mov_b32 v19, s34')
        e('s_mov_b32 s48, 0x55555555')
        e('s_nop 4')
        e('v_add_f32 v12, v12, v13')
        e('v_add_f32 v14, v14, v15')
        e('v_add_f32 v16, v12, v14')
        if self.p4:
            e('s_nop 1')
            e('v_mov_b32_dpp v18, v16 quad_perm:[1,1,3,3] row_mask:0xf bank_mask:0xf')
            e('s_mov_b32 exec_lo, s48')
            e('s_mov_b32 exec_hi, s48')
            e(f'buffer_store_dwordx4 v[16:19], v{T_P}, s[40:43], s47 offen sc1')
        else:
            e(f'buffer_store_dwordx2 v[16:17], v{T_P}, s[40:43], s47 offen sc1')
        self.keep_time(54)
        if self.stamps:
            e('s_branch L_sflush')
        e('s_endpgm')
        e('L_notproj:')
        e('s_cmp_ge_u32 s2, 180')
        e('s_cbranch_scc1 ' + ('L_sflush' if self.stamps else 'L_end'))
        self.keep_time(50)
        e('s_mov_b32 s48, 0')
        e(f's_mov_b32 s38, {4 * 576 * 2}')
        e('s_and_b32 s45, s35, 3')
        e('s_mul_i32 s45, s45, 1152')
        e('s_lshr_b32 s31, s35, 2')
        e('s_lshl_b32 s31, s31, 7')
        e('s_add_u32 s45, s45, s31')
        e('s_lshl_b32 s31, s3, 5')
        e('s_add_u32 s45, s45, s31')
        self.align()
        e('L_ppoll:')
        if self.rslp:
            e(f's_sleep {self.rslp}')
        e(f'buffer_load_dwordx4 v[12:15], v{T_A}, s[40:43], s44 offen sc1')
        e(f'buffer_load_dwordx4 v[16:19], v{T_A}, s[40:43], s47 offen sc1')
        e('s_add_u32 s48, s48, 1')
        e(f's_cmp_ge_u32 s48, {SPIN}')
        e('s_cbranch_scc1 L_pok')
        e('s_waitcnt vmcnt(1)')
        e('v_xor_b32 v20, s34, v13')
        e('v_xor_b32 v21, s34, v15')
        e('s_waitcnt vmcnt(0)')
        e('v_xor_b32 v22, s34, v17')
        e('v_xor_b32 v23, s34, v19')
        e('v_or3_b32 v20, v20, v21, v22')
        e('v_or_b32 v20, v20, v23')
        e('v_cmp_ne_u32 vcc, 0, v20')
        e('s_and_b64 exec, exec, vcc')
        e('s_cbranch_scc1 L_ppoll')
        e('L_pok:')
        e('s_mov_b64 exec, -1')
        e('s_waitcnt vmcnt(0)')
        self.keep_time(52)
        e('v_add_f32 v12, v12, v16')
        e('v_add_f32 v14, v14, v18')
        e('s_nop 0')
        e('v_add_f32_dpp v12, v12, v12 row_ror:8 row_mask:0xf bank_mask:0xf')
        e('v_add_f32_dpp v14, v14, v14 row_ror:8 row_mask:0xf bank_mask:0xf')
        e('s_nop 1')
        e('v_permlane16_swap_b32 v12, v14')
        e('v_add_f32 v12, v12, v14')
        e('v_mov_b32 v14, v12')
        e('s_nop 1')
        e('v_permlane32_swap_b32 v12, v14')
        e('v_add_f32 v12, v12, v14')
        e('v_cvt_pk_bf16_f32 v12, v12, v12')
        e('s_mov_b64 exec, 0x00ff00ff')
        e(f'buffer_store_short v12, v{T_P}, s[36:39], s45 offen' + ['', ' sc1', ' nt', ' sc0 sc1'][self.osc])
        self.keep_time(54)
        e('s_add_u32 s48, s2, s3')
        e('s_cmp_lg_u32 s48, 144')
        e('s_cbranch_scc1 ' + ('L_sflush' if self.stamps else 'L_end'))
        e('v_mov_b32 v4, s34')
        e('v_mov_b32 v6, 0')
        e('s_mov_b64 exec, 1')
        e('buffer_store_dword v4, v6, s[40:43], 0 offen')
        if self.dbgt:
            e('s_waitcnt lgkmcnt(0)')
            e('s_mov_b32 s80, 8000')
            if self.enc > 0:
                e(f's_sub_u32 s81, s{self.enc}, s58')
                e(f's_mul_i32 s81, s81, {self.encm}')
                e('s_add_u32 s80, s80, s81')
            e('L_enc:')
            e('s_memrealtime s[82:83]')
            e('s_waitcnt lgkmcnt(0)')
            e('s_sub_u32 s82, s82, s58')
            e('s_cmp_lt_u32 s82, s80')
            e('s_cbranch_scc1 L_enc')
        if self.stamps:
            e('L_sflush:')
            e('s_mov_b64 exec, -1')
            e('s_cmp_lg_u32 s3, 0')
            e('s_cbranch_scc1 L_end')
            for k, sr in enumerate((58, 60, 62, 64, 66, 68)):
                self.flush_time(k, sr)
            for k, sr in ((12, 50), (13, 52), (14, 54), (16, 70), (17, 72), (15, 76), (19, 78)):
                self.flush_time(k, sr)
        e('s_endpgm')

    def proj_role(self, shkv, stg):
        e = self.e
        if self.xm:
            e(f's_lshr_b32 s{stg}, s2, 3')
            e(f's_and_b32 s{shkv}, s2, 7')
            e(f's_cmp_ge_u32 s{stg}, 9')
            e(f's_cselect_b32 s95, 8, 0')
            e(f's_add_u32 s{shkv}, s{shkv}, s95')
            e(f's_cmp_ge_u32 s{stg}, 9')
            e(f's_cselect_b32 s95, 9, 0')
            e(f's_sub_u32 s{stg}, s{stg}, s95')
        else:
            e(f's_mul_i32 s{shkv}, s2, 57')
            e(f's_lshr_b32 s{shkv}, s{shkv}, 9')
            e(f's_mul_i32 s{stg}, s{shkv}, 9')
            e(f's_sub_u32 s{stg}, s2, s{stg}')

    def tail_setup(self):
        e = self.e
        t0, t1, t2, t3 = 200, 201, 202, 203
        self.srd(40, 18, WSWIN)
        e(f'v_lshlrev_b32 v{T_OL}, 4, v0')
        e('s_lshl_b32 s31, s3, 10')
        e(f'v_add_u32 v{T_OL}, s31, v{T_OL}')
        e('s_lshl_b32 s46, s3, 13')
        e(f's_add_u32 s46, s46, {L_WO}')
        e('s_cmp_ge_u32 s2, 144')
        e('s_cbranch_scc1 L_ts_red')
        self.proj_role(35, 31)
        e('s_mul_i32 s47, s35, 9')
        e('s_add_u32 s47, s47, s31')
        self.srd(36, 12, 0 if self.abl & 4 else 4096 * 576 * 2)
        e('s_lshl_b32 s45, s35, 2')
        e('s_add_u32 s45, s45, s3')
        e(f's_mul_i32 s45, s45, {64 * 1152}')
        e('s_lshl_b32 s31, s31, 7')
        e('s_add_u32 s45, s45, s31')
        e(f'v_lshrrev_b32 v{t0}, 3, v0')
        e(f'v_mul_u32_u24 v{t1}, 1152, v{t0}')
        e(f'v_and_b32 v{t0}, 2, v{t0}')
        e(f'v_and_b32 v{t2}, 7, v0')
        e(f'v_xor_b32 v{t2}, v{t2}, v{t0}')
        e(f'v_lshl_add_u32 v{T_WO}, v{t2}, 4, v{t1}')
        e(f'v_xor_b32 v{t2}, 4, v{t2}')
        e(f'v_lshl_add_u32 v{T_WO+1}, v{t2}, 4, v{t1}')
        e(f'v_bfe_u32 v{t0}, v0, 3, 1')
        e(f'v_bfe_u32 v{t1}, v0, 2, 1')
        e(f'v_lshl_add_u32 v{t2}, v{t1}, 1, v{t0}')
        e(f'v_and_b32 v{t3}, 0x30, v0')
        e(f'v_lshl_add_u32 v{t3}, v{t0}, 7, v{t3}')
        e(f'v_add_u32 v{T_TR}, v{t3}, v{t2}')
        e(f'v_xor_b32 v{T_TR+1}, 1, v{T_TR}')
        e(f'v_bfe_u32 v{t0}, v0, 4, 1')
        e(f'v_lshl_add_u32 v{t0}, v{t0}, 1, v{t1}')
        e(f'v_xor_b32 v{t0}, s3, v{t0}')
        e(f'v_lshlrev_b32 v{t0}, 5, v{t0}')
        e(f'v_and_b32 v{t1}, 3, v0')
        e(f'v_lshl_add_u32 v{t0}, v{t1}, 3, v{t0}')
        e(f'v_lshl_add_u32 v{T_TR}, v{T_TR}, 7, v{t0}')
        e(f'v_lshl_add_u32 v{T_TR+1}, v{T_TR+1}, 7, v{t0}')
        e('s_lshl_b32 s44, s3, 4')
        e('s_add_u32 s44, s44, s35')
        e(f's_mul_i32 s44, s44, {self.PS}')
        e(f's_add_u32 s44, s44, {PBASE}')
        e(f'v_lshrrev_b32 v{t0}, 5, v0')
        e(f'v_lshl_add_u32 v{t0}, s3, 2, v{t0}')
        e(f'v_mul_u32_u24 v{t0}, 528, v{t0}')
        e(f'v_and_b32 v{t1}, 31, v0')
        e(f'v_lshl_add_u32 v{T_AW}, v{t1}, 4, v{t0}')
        e(f'v_and_b32 v{t0}, 15, v0')
        e(f'v_mul_u32_u24 v{t0}, 528, v{t0}')
        e(f'v_and_b32 v{t1}, 0x30, v0')
        e(f'v_add_u32 v{T_A}, v{t0}, v{t1}')
        e(f'v_and_b32 v{t0}, 15, v0')
        e(f'v_lshlrev_b32 v{t0}, 3, v{t0}')
        e(f'v_lshl_add_u32 v{T_P}, v{t1}, 5, v{t0}')
        e('s_lshl_b32 s47, s47, 11')
        e('s_lshl_b32 s31, s3, 7')
        e('s_add_u32 s47, s47, s31')
        e(f's_add_u32 s47, s47, {POFF}')
        e('s_branch L_ts_done')
        e('L_ts_red:')
        self.srd(36, 14, 0)
        e('s_mov_b32 s45, 0')
        e(f'v_mov_b32 v{T_WO}, 0')
        e(f'v_mov_b32 v{T_WO+1}, 0')
        e(f'v_mov_b32 v{T_TR}, 0')
        e(f'v_mov_b32 v{T_TR+1}, 0')
        e('s_sub_u32 s35, s2, 144')
        e(f'v_lshrrev_b32 v{t0}, 3, v0')
        e(f'v_mul_u32_u24 v{t0}, 18432, v{t0}')
        e(f'v_and_b32 v{t1}, 7, v0')
        e(f'v_lshl_add_u32 v{T_A}, v{t1}, 4, v{t0}')
        e('s_lshl_b32 s44, s35, 9')
        e('s_lshl_b32 s31, s3, 7')
        e('s_add_u32 s44, s44, s31')
        e(f's_add_u32 s44, s44, {POFF}')
        e(f's_add_u32 s47, s44, {8 * 18432}')
        e(f'v_lshrrev_b32 v{t0}, 4, v0')
        e(f'v_lshl_add_u32 v{t0}, v{t1}, 1, v{t0}')
        e(f'v_lshlrev_b32 v{T_P}, 1, v{t0}')
        e('L_ts_done:')

    def align(self):
        self.e('.p2align 3')

    def make_tag(self):
        self.e('s_add_u32 s34, s34, 0x7f4a7c15')

    def pack4(self, dst, z, vtag):
        e = self.e
        e(f'v_perm_b32 v{dst}, v{z[0]}, v{z[1]}, s90')
        e(f'v_perm_b32 v{dst+1}, v{z[1]}, v{vtag}, s91')
        e(f'v_perm_b32 v{dst+2}, v{z[2]}, v{z[3]}, s90')
        e(f'v_perm_b32 v{dst+3}, v{z[3]}, v{vtag}, s92')

    def pack_consts(self):
        e = self.e
        e('s_mov_b32 s90, 0x07060501')
        e('s_mov_b32 s91, 0x07060100')
        e('s_mov_b32 s92, 0x07060302')
        e('s_mov_b32 s93, 0x05040100')
        e('s_mov_b32 s94, 0x0706000c')

    def check4(self, pieces, tmp):
        e = self.e
        for i, p in enumerate(pieces):
            e(f'v_perm_b32 v{tmp+i}, v{p+3}, v{p+1}, s93')
        for i, p in enumerate(pieces):
            e(f'v_xor_b32 v{tmp+i}, s34, v{tmp+i}')
        e(f'v_or3_b32 v{tmp}, v{tmp}, v{tmp+1}, v{tmp+2}')
        e(f'v_or_b32 v{tmp}, v{tmp}, v{tmp+3}')
        e(f'v_cmp_ne_u32 vcc, 0, v{tmp}')

    def unpack_sum4(self, pieces):
        e = self.e
        for p in pieces:
            e(f'v_perm_b32 v{p+1}, v{p+1}, v{p}, s94')
            e(f'v_perm_b32 v{p+3}, v{p+3}, v{p+2}, s94')
            e(f'v_and_b32 v{p}, 0xffffff00, v{p}')
            e(f'v_and_b32 v{p+2}, 0xffffff00, v{p+2}')
        p0, p1, p2, p3 = pieces
        for t in range(4):
            e(f'v_add_f32 v{p0+t}, v{p0+t}, v{p1+t}')
            e(f'v_add_f32 v{p2+t}, v{p2+t}, v{p3+t}')
        for t in range(4):
            e(f'v_add_f32 v{p0+t}, v{p0+t}, v{p2+t}')

    def publish(self, stores):
        e = self.e
        self.npub = getattr(self, 'npub', 0) + 1
        n = self.npub
        if self.loc:
            e('s_cmp_lg_u32 s49, 0')
            e(f's_cbranch_scc1 L_pubL{n}')
        for st in stores:
            e(st + (' sc1' if st.startswith('buffer_store') else ''))
        if self.loc:
            e(f's_branch L_pubE{n}')
            e(f'L_pubL{n}:')
            for st in stores:
                e(st)
            e(f'L_pubE{n}:')

    def read_loc(self, vz, vt):
        e = self.e
        if not self.loc:
            return
        e('s_mov_b32 s48, 0')
        e('L_locw:')
        e(f'ds_read_b32 v{vt}, v{vz} offset:{L_LOC}')
        e('s_add_u32 s48, s48, 1')
        e('s_waitcnt lgkmcnt(0)')
        e(f'v_readfirstlane_b32 s49, v{vt}')
        e('s_sub_u32 s49, s49, s34')
        e('s_cmp_lt_u32 s49, 2')
        e('s_cbranch_scc1 L_locd')
        e('s_sleep 2')
        e(f's_cmp_lt_u32 s48, {SPIN}')
        e('s_cbranch_scc1 L_locw')
        e('L_locd:')
        e('s_cmp_eq_u32 s49, 0')
        e('s_cselect_b32 s49, 1, 0')

    def wait_mid(self, lab, vzero, scnt):
        e = self.e
        e(f's_mov_b32 s{scnt}, 0')
        e(f'{lab}:')
        e(f's_sleep {self.slp}')
        for w in range(4):
            e(f'ds_read_b128 v[{16 + 4*w}:{19 + 4*w}], v{vzero} offset:{L_ML + 16*w}')
        e(f's_add_u32 s{scnt}, s{scnt}, 1')
        e('s_waitcnt lgkmcnt(0)')
        self.maxu(32, range(16, 32))
        e('v_cmp_eq_u32 vcc, -1, v32')
        e('s_nop 0')
        e(f's_cbranch_vccz {lab}_ok')
        e(f's_cmp_lt_u32 s{scnt}, {SPIN}')
        e(f's_cbranch_scc1 {lab}')
        e(f'{lab}_ok:')

    def maxu(self, dst, regs):
        e = self.e
        regs = list(regs)
        e(f'v_max3_u32 v{dst}, v{regs[0]}, v{regs[1]}, v{regs[2]}')
        regs = regs[3:]
        while len(regs) >= 2:
            e(f'v_max3_u32 v{dst}, v{dst}, v{regs[0]}, v{regs[1]}')
            regs = regs[2:]
        if regs:
            e(f'v_max_u32 v{dst}, v{dst}, v{regs[0]}')

    def helper(self):
        e = self.e
        rng = lambda r: f'v[{r}:{r+3}]'
        XA = 16
        WB = 64
        DQ = 40
        e('s_and_b32 s40, s32, 63')
        e('s_lshr_b32 s35, s32, 6')
        e('v_lshrrev_b32 v1, 3, v0')
        e('v_lshlrev_b32 v1, 13, v1')
        e('v_and_b32 v2, 7, v0')
        e('v_lshl_add_u32 v1, v2, 4, v1')
        e(f's_mul_i32 s42, s35, {144 * 8192}')
        e('s_lshl_b32 s41, s40, 7')
        e('s_add_u32 s42, s42, s41')
        e('v_and_b32 v2, 3, v0')
        e('v_mul_u32_u24 v2, 1152, v2')
        e('v_lshrrev_b32 v3, 4, v0')
        e('v_lshl_add_u32 v7, v3, 3, v2')
        e('v_lshl_add_u32 v2, v3, 4, v2')
        e('s_mul_i32 s43, s35, 288')
        e('s_waitcnt lgkmcnt(0)')
        e('s_load_dword s34, s[18:19], 0')
        self.srd(24, 4, 4 * 576 * 2)
        for kk in range(4):
            e(f'buffer_load_dwordx4 {rng(XA + 4*kk)}, v2, s[24:27], s43 offen offset:{kk*64}')
        e(f'buffer_load_dwordx2 v[{XA+16}:{XA+17}], v7, s[24:27], s43 offen offset:256')
        self.srd(20, 10, 576 * 4096 * 2)
        for i in range(18):
            e(f's_mov_b32 m0, {L_WQ + 1024 * i}')
            if i:
                e('s_add_u32 s42, s42, 0x10000')
            else:
                e('s_nop 0')
            if self.wqp and i >= self.wqp:
                e(f's_waitcnt vmcnt({self.wqp - 1})')
            if not self.abl & 1:
                e('buffer_load_dwordx4 v1, s[20:23], s42 offen nt lds')
        if self.pf:
            e('s_getpc_b64 s[54:55]')
            e('L_pc:')
            e(f's_sub_u32 s54, s54, L_pc-{NAME}')
            e('s_subb_u32 s55, s55, 0')
            e('v_lshlrev_b32 v14, 7, v0')
            e('global_load_dword v60, v14, s[54:55]')
            e('v_add_u32 v14, 0x2000, v14')
            e(f'v_cmp_gt_u32 vcc, L_codeend-{NAME}, v14')
            e('s_and_saveexec_b64 s[56:57], vcc')
            e('global_load_dword v61, v14, s[54:55]')
            e('s_mov_b64 exec, s[56:57]')
        self.srd(28, 18, WSWIN)
        for r in range(4):
            e(f'v_mov_b32 v{8+r}, -1')
        e('v_lshlrev_b32 v4, 4, v0')
        e('s_lshr_b32 s44, s32, 2')
        e(f's_mul_i32 s44, s44, {self.PS}')
        e(f's_add_u32 s44, s44, {PBASE}')
        e('s_and_b32 s43, s32, 3')
        e('s_lshl_b32 s45, s43, 9')
        e('s_add_u32 s45, s45, s44')
        e('s_lshl_b32 s47, s43, 8')
        e('s_add_u32 s47, s47, s44')
        e('s_mov_b64 exec, 15')
        e(f'ds_write_b128 v4, v[8:11] offset:{L_ML}')
        e('s_mov_b64 exec, -1')
        self.pack_consts()
        e('v_bfe_u32 v5, v0, 2, 2')
        e('v_lshlrev_b32 v5, 7, v5')
        e('v_and_b32 v6, 3, v0')
        e('v_lshl_add_u32 v5, v6, 3, v5')
        e('v_lshl_add_u32 v6, v3, 9, v5')
        e('v_lshl_add_u32 v5, v3, 10, v5')
        e(f's_mov_b32 s41, {16 * self.PS}')
        e('v_mul_lo_u32 v7, s41, v3')
        e('v_and_b32 v12, 15, v0')
        e('v_lshl_add_u32 v7, v12, 4, v7')
        e('s_lshr_b32 s46, s40, 2')
        e(f's_mul_i32 s46, s46, {self.PS}')
        e('s_lshl_b32 s41, s35, 10')
        e('s_add_u32 s46, s46, s41')
        e('s_and_b32 s41, s40, 3')
        e('s_lshl_b32 s41, s41, 8')
        e('s_add_u32 s46, s46, s41')
        e(f's_add_u32 s46, s46, {PBASE + 4096}')
        e('s_add_u32 s50, s44, 4096')
        e('v_and_b32 v12, 15, v0')
        e('v_lshlrev_b32 v12, 1, v12')
        e('v_lshl_add_u32 v12, v3, 7, v12')
        e('s_waitcnt lgkmcnt(0)')
        self.make_tag()
        e('v_mov_b32 v13, s34')
        self.keep_time(74)
        e('s_waitcnt vmcnt(0)')
        self.keep_time(60)
        for t in range(4):
            for kk in range(4):
                for hf in range(2):
                    r = WB + 20*t + 4*kk + 2*hf
                    e(f'ds_read_b64_tr_b16 v[{r}:{r+1}], v5 offset:{L_WQ + (32*kk + 4*hf)*128 + 32*t}')
            r = WB + 20*t + 16
            e(f'ds_read_b64_tr_b16 v[{r}:{r+1}], v6 offset:{L_WQ + 128*128 + 32*t}')
        for t in range(4):
            e(f's_waitcnt lgkmcnt({min(15, 9*(3-t))})')
            for kk in range(4):
                c = '0' if kk == 0 else rng(DQ + 4*t)
                e(f'v_mfma_f32_16x16x32_bf16 {rng(DQ + 4*t)}, {rng(XA + 4*kk)}, {rng(WB + 20*t + 4*kk)}, {c}')
        e('s_nop 3')
        for t in range(4):
            r = WB + 20*t + 16
            e(f'v_mfma_f32_16x16x16_bf16 {rng(DQ + 4*t)}, v[{XA+16}:{XA+17}], v[{r}:{r+1}], {rng(DQ + 4*t)}')
        e('s_nop 4')
        for t in range(4):
            for b in range(1, 4):
                e(f'v_mov_b32_dpp v{DQ+4*t}, v{DQ+4*t+b} quad_perm:[0,1,2,3] row_mask:{1 << b:#x} bank_mask:0xf')
        self.pack4(36, [DQ + 4*t for t in range(4)], 13)
        e('v_mov_b32 v5, 0')
        self.read_loc(5, 14)
        self.publish(['buffer_store_dwordx4 v[36:39], v7, s[28:31], s46 offen',
                      's_mov_b32 exec_hi, 0',
                      'buffer_store_dwordx4 v[8:11], v4, s[28:31], s45 offen',
                      's_mov_b32 exec_hi, -1'])
        self.keep_time(62)
        e('s_mov_b32 s48, 0')
        if self.qd:
            e(f's_sleep {self.qd}')
        if self.abl & 10:
            e('s_branch L_qok')
        e('L_qpoll:')
        for k in range(4):
            e(f'buffer_load_dwordx4 {rng(16 + 4*k)}, v4, s[28:31], s50 offen offset:{1024*k} sc1')
        e('s_add_u32 s48, s48, 1')
        e('s_waitcnt vmcnt(0)')
        self.check4([16, 20, 24, 28], 32)
        e('s_nop 0')
        e('s_cbranch_vccz L_qok')
        e(f's_sleep {self.qslp}')
        e(f's_cmp_lt_u32 s48, {SPIN}')
        e('s_cbranch_scc1 L_qpoll')
        e('L_qok:')
        self.unpack_sum4([16, 20, 24, 28])
        e('v_cvt_pk_bf16_f32 v20, v16, v17')
        e('v_cvt_pk_bf16_f32 v21, v18, v19')
        e(f'ds_write_b16 v12, v20 offset:{L_Q}')
        e(f'ds_write_b16_d16_hi v12, v20 offset:{L_Q + 32}')
        e(f'ds_write_b16 v12, v21 offset:{L_Q + 64}')
        e(f'ds_write_b16_d16_hi v12, v21 offset:{L_Q + 96}')
        e('s_waitcnt lgkmcnt(0)')
        self.keep_time(64)
        e('s_barrier')
        self.wait_mid('L_mlwait', 5, 48)
        e('s_waitcnt vmcnt(0)')
        for h in range(2):
            m = [16 + 4*w + 2*h for w in range(4)]
            d = 36 + 4*h
            e(f'v_max3_f32 v{d}, v{m[0]}, v{m[1]}, v{m[2]}')
            e(f'v_max_f32 v{d}, v{d}, v{m[3]}')
            for w in range(4):
                e(f'v_sub_f32 v{44+w}, v{m[w]}, v{d}')
                e(f'v_exp_f32 v{44+w}, v{44+w}')
            e(f'v_mov_b32 v{d+1}, s34')
            e(f'v_mul_f32 v{d+2}, v44, v{m[0]+1}')
            for w in range(1, 4):
                e(f'v_fmac_f32 v{d+2}, v{44+w}, v{m[w]+1}')
            e(f'v_mov_b32 v{d+3}, s34')
        e('s_mov_b64 exec, 1')
        if self.abl & 64:
            e('s_branch L_wrdy_ok')
        self.publish(['buffer_store_dwordx4 v[36:39], v5, s[28:31], s47 offen offset:2048',
                      'buffer_store_dwordx4 v[40:43], v5, s[28:31], s47 offen offset:2064'])
        e('s_mov_b32 s48, 0')
        for _ in range(self.mld):
            e('s_sleep 127')
        e('L_gml:')
        e(f's_sleep {self.slp}')
        for s_ in range(4):
            for h in range(2):
                e(f'buffer_load_dwordx4 {rng(64 + 8*s_ + 4*h)}, v5, s[28:31], s44 offen offset:{2048 + 256*s_ + 16*h} sc1')
        e('s_add_u32 s48, s48, 1')
        e('s_waitcnt vmcnt(0)')
        e('v_mov_b32 v32, 0')
        for i in range(8):
            e(f'v_xor_b32 v33, s34, v{65 + 4*i}')
            e(f'v_xor_b32 v34, s34, v{67 + 4*i}')
            e('v_or3_b32 v32, v32, v33, v34')
        e('v_cmp_ne_u32 vcc, 0, v32')
        e('s_nop 0')
        e('s_cbranch_vccz L_gmlok')
        e(f's_cmp_lt_u32 s48, {SPIN}')
        e('s_cbranch_scc1 L_gml')
        e('L_gmlok:')
        for h in range(2):
            m = [64 + 8*s_ + 4*h for s_ in range(4)]
            e(f'v_max3_f32 v36, v{m[0]}, v{m[1]}, v{m[2]}')
            e(f'v_max_f32 v36, v36, v{m[3]}')
            for s_ in range(4):
                e(f'v_sub_f32 v{44+s_}, v{m[s_]}, v36')
                e(f'v_exp_f32 v{44+s_}, v{44+s_}')
            e('s_nop 0')
            e(f'v_mul_f32 v37, v44, v{m[0]+2}')
            for s_ in range(1, 4):
                e(f'v_fmac_f32 v37, v{44+s_}, v{m[s_]+2}')
            e('v_rcp_f32 v37, v37')
            for w in range(4):
                e(f'v_sub_f32 v{44+w}, v{16 + 4*w + 2*h}, v36')
                e(f'v_exp_f32 v{44+w}, v{44+w}')
            e('s_nop 0')
            for w in range(4):
                e(f'v_mul_f32 v{44+w}, v{44+w}, v37')
            e('s_nop 0')
            for w in range(4):
                e(f'v_readfirstlane_b32 s{50 + 2*w + h}, v{44+w}')
        e('s_cmp_ge_u32 s2, 144')
        e('s_cbranch_scc1 L_wrdy_ok')
        e('s_mov_b64 exec, 0xffff')
        self.proj_role(40, 41)
        e(f's_mul_i32 s40, s40, {self.PS}')
        e(f's_add_u32 s40, s40, {PBASE + 2052}')
        e(f's_mov_b32 s41, {16 * self.PS}')
        e('v_lshrrev_b32 v6, 2, v0')
        e('v_mul_lo_u32 v6, s41, v6')
        e('v_and_b32 v7, 3, v0')
        e('v_lshl_add_u32 v6, v7, 8, v6')
        e('s_mov_b32 s48, 0')
        e('L_wrdy:')
        e(f's_sleep {self.slp}')
        e('buffer_load_dword v8, v6, s[28:31], s40 offen sc1')
        e('s_add_u32 s48, s48, 1')
        e('s_waitcnt vmcnt(0)')
        e('v_cmp_ne_u32 vcc, s34, v8')
        e('s_nop 0')
        e('s_cbranch_vccz L_wrdy_ok')
        e(f's_cmp_lt_u32 s48, {SPIN}')
        e('s_cbranch_scc1 L_wrdy')
        e('L_wrdy_ok:')
        e('s_mov_b64 exec, -1')
        e('v_lshlrev_b32 v5, 3, v0')
        e('s_mov_b32 s48, 0x55555555')
        e('s_setprio 3')
        self.keep_time(66)
        e('s_barrier')
        self.keep_time(68)
        for w in range(4):
            e(f'ds_read_b128 {rng(16 + 4*w)}, v4 offset:{L_O + 1024*w}')
        for w in range(4):
            e(f's_waitcnt lgkmcnt({3-w})')
            for r in range(4):
                if w == 0:
                    e(f'v_mul_f32 v{32+r}, s{50 + (r & 1)}, v{16+r}')
                else:
                    e(f'v_fmac_f32 v{32+r}, s{50 + 2*w + (r & 1)}, v{16 + 4*w + r}')
        e('v_cvt_pk_bf16_f32 v36, v32, v34')
        e('v_cvt_pk_bf16_f32 v37, v33, v35')
        e('v_min_u32 v36, 0xfffffffe, v36')
        e('v_min_u32 v37, 0xfffffffe, v37')
        e('s_nop 0')
        e('v_mov_b32_dpp v38, v36 quad_perm:[1,1,3,3] row_mask:0xf bank_mask:0xf')
        e('v_mov_b32_dpp v39, v37 quad_perm:[1,1,3,3] row_mask:0xf bank_mask:0xf')
        e('s_mov_b32 exec_lo, s48')
        e('s_mov_b32 exec_hi, s48')
        self.publish(['buffer_store_dwordx4 v[36:39], v5, s[28:31], s45 offen'])
        self.keep_time(70)
        e('s_cmp_ge_u32 s2, 144')
        e('s_cbranch_scc1 L_hdone')
        e('s_barrier')
        e('s_barrier')
        e('s_barrier')
        e('L_hdone:')
        if self.stamps:
            e('s_mov_b64 exec, -1')
            for k, sr in enumerate((60, 62, 64, 66, 68, 70)):
                self.flush_time(6 + k, sr)
            self.flush_time(18, 74)
        e('s_endpgm')

    def balancer(self):
        e = self.e
        e('s_getreg_b32 s40, hwreg(HW_REG_XCC_ID, 0, 4)')
        e('v_lshlrev_b32 v1, 2, v0')
        e('v_lshlrev_b32 v2, 4, v0')
        for r in range(4):
            e(f'v_mov_b32 v{4+r}, 0')
        e(f'ds_write_b128 v2, v[4:7] offset:{L_PR}')
        e(f'ds_write_b128 v2, v[4:7] offset:{L_PR + 1024}')
        e('s_waitcnt lgkmcnt(0)')
        e('s_load_dword s34, s[18:19], 0')
        self.srd(28, 18, WSWIN)
        e('s_mul_i32 s46, s40, 4352')
        e(f's_add_u32 s46, s46, {XOFF}')
        e('s_lshl_b32 s40, s40, 12')
        e(f's_add_u32 s40, s40, {BOFF}')
        e('s_lshr_b32 s41, s2, 3')
        e('s_lshl_b32 s41, s41, 2')
        e('v_mov_b32 v3, s41')
        e('s_mov_b32 s48, 0')
        e('s_waitcnt lgkmcnt(0)')
        self.make_tag()
        if self.loc:
            e('s_and_b32 s41, s2, 7')
            e('s_add_u32 s41, s41, s34')
            e('v_mov_b32 v8, s41')
            e('s_mov_b64 exec, 1')
            e('buffer_store_dword v8, v3, s[28:31], s40 offen offset:256')
            e('s_mov_b32 exec_lo, -1')
            e('L_rz:')
            e('buffer_load_dword v9, v1, s[28:31], s40 offen offset:256 sc1')
            e('s_add_u32 s48, s48, 1')
            e('s_waitcnt vmcnt(0)')
            e('v_cmp_ne_u32 vcc, s41, v9')
            e('s_nop 0')
            e('s_cbranch_vccz L_rzok')
            e('s_cmp_lt_u32 s48, 6')
            e('s_cbranch_scc1 L_rz')
            e('s_add_u32 s41, s34, 1')
            e('s_branch L_rzdone')
            e('L_rzok:')
            e('s_mov_b32 s41, s34')
            e('L_rzdone:')
            e('v_mov_b32 v8, s41')
            e(f'ds_write_b32 v4, v8 offset:{L_LOC}')
            e('s_mov_b64 exec, -1')
        if self.hot:
            e('s_lshr_b32 s50, s32, 2')
            e(f's_mul_i32 s50, s50, {self.PS}')
            e(f's_add_u32 s50, s50, {PBASE}')
            e('s_and_b32 s51, s32, 3')
            e('s_lshl_b32 s52, s51, 10')
            e('s_add_u32 s52, s52, 4096')
            e('s_lshl_b32 s51, s51, 9')
            e('s_sub_u32 s51, s51, 1024')
            e('v_mov_b32 v20, s52')
            e('v_mov_b32 v21, s51')
            e('v_cmp_gt_u32 vcc, 8, v0')
            e('s_nop 1')
            e('v_cndmask_b32 v20, v21, v20, vcc')
            e('v_lshl_add_u32 v20, v0, 7, v20')
        if self.xb:
            e(f's_mov_b32 s60, {self.ck0}')
            for j in range(8):
                e(f's_mov_b32 s{72+j}, -1')
                e(f's_mov_b32 s{80+j}, 0')
        e('s_lshl_b32 s34, s34, 16')
        e('s_barrier')
        e('L_bal:')
        e(f's_sleep {self.bslp}')
        e(f'ds_read2st64_b32 v[8:9], v4 offset0:{L_PR // 256} offset1:{L_PR // 256 + 1}')
        e(f'ds_read2st64_b32 v[10:11], v4 offset0:{L_PR // 256 + 2} offset1:{L_PR // 256 + 3}')
        e('s_add_u32 s48, s48, 1')
        e('s_waitcnt lgkmcnt(0)')
        e('v_add3_u32 v8, v8, v9, v10')
        e('v_add_u32 v8, v8, v11')
        e('v_or_b32 v9, s34, v8')
        e('v_readfirstlane_b32 s42, v8')
        e('s_mov_b64 exec, 1')
        e('buffer_store_dword v9, v3, s[28:31], s40 offen')
        e('s_mov_b64 exec, -1')
        e(f's_cmp_ge_u32 s42, {4 * 248}')
        e('s_cbranch_scc1 L_end')
        if self.xb:
            e('s_cmp_ge_u32 s2, 8')
            e('s_cbranch_scc1 L_nosl')
            for j in range(8):
                e(f's_load_dword s{64+j}, s[18:19], {XOFF + 4352*j} glc')
            e('L_nosl:')
        e('v_mov_b32 v10, 0')
        e(f's_mov_b32 exec_hi, {1 if self.xb else 0}')
        e('buffer_load_dword v10, v1, s[28:31], s40 offen sc1')
        if self.hot:
            e('s_mov_b64 exec, 0xfff')
            e('buffer_load_dword v21, v20, s[28:31], s50 offen sc1')
            e('s_mov_b32 exec_lo, -1')
        e('s_mov_b32 exec_hi, -1')
        e('s_waitcnt vmcnt(0)')
        e('v_xor_b32 v10, s34, v10')
        e('v_add_u32 v11, -1, v10')
        e('v_cmp_gt_u32 vcc, 0xffff, v11')
        e('s_nop 1')
        e('v_cndmask_b32 v10, 0, v10, vcc')
        e('s_bcnt1_i32_b32 s43, vcc_lo')
        for k in (1, 2, 4, 8):
            e('s_nop 1')
            e(f'v_add_u32_dpp v10, v10, v10 row_ror:{k} row_mask:0xf bank_mask:0xf')
        e('s_lshl_b32 s43, s43, 2')
        e('v_cvt_f32_u32 v12, s43')
        e('v_readlane_b32 s44, v10, 0')
        e('v_readlane_b32 s45, v10, 16')
        e('v_rcp_f32 v12, v12')
        e('s_add_u32 s44, s44, s45')
        e('v_cvt_f32_u32 v13, s44')
        e('v_mul_f32 v13, v13, v12')
        e('v_cvt_u32_f32 v16, v13')
        e(f'v_add_u32 v12, {self.bias}, v16')
        if self.xb:
            e('v_readlane_b32 s45, v10, 32')
            e('s_cmp_eq_u32 s45, 0')
            e('s_cselect_b32 s45, 32, s45')
            e('s_sub_u32 s45, s45, 32')
            e('v_add_u32 v12, s45, v12')
        e('v_mov_b32 v13, v12')
        e('v_mov_b32 v14, v12')
        e('v_mov_b32 v15, v12')
        e(f'ds_write_b128 v2, v[12:15] offset:{L_PR + 1024}')
        if self.xb:
            e('s_cmp_ge_u32 s2, 8')
            e('s_cbranch_scc1 L_balnext')
            e('v_readfirstlane_b32 s47, v16')
            e('v_or_b32 v17, s34, v16')
            e('s_mov_b64 exec, 1')
            e('s_cmp_lt_u32 s47, s60')
            e('s_cbranch_scc1 L_nopub')
            e('buffer_store_dword v17, v4, s[28:31], s46 offen sc1')
            e(f's_add_u32 s60, s60, {self.ck}')
            e('L_nopub:')
            e('s_mov_b32 s43, 0')
            e('s_mov_b32 s44, 0')
            e('s_waitcnt lgkmcnt(0)')
            for j in range(8):
                e(f's_xor_b32 s{64+j}, s{64+j}, s34')
                e(f's_or_b32 s43, s43, s{64+j}')
                e(f's_sub_i32 s45, s{64+j}, s47')
                e(f's_cmp_lg_u32 s{64+j}, s{72+j}')
                e(f's_cselect_b32 s{80+j}, s45, s{80+j}')
                e(f's_mov_b32 s{72+j}, s{64+j}')
                e(f's_add_i32 s44, s44, s{80+j}')
            e('s_ashr_i32 s44, s44, 3')
            e(f's_add_i32 s44, s44, {self.lagc}')
            e(f's_max_i32 s44, s44, {-self.xmin}')
            e(f's_min_i32 s44, s44, {self.xmax}')
            e('s_add_i32 s44, s44, 32')
            e('s_cmp_lt_u32 s43, 0x10000')
            e('s_cselect_b32 s44, s44, 0')
            e('s_or_b32 s44, s44, s34')
            e('v_mov_b32 v17, s44')
            e('buffer_store_dword v17, v4, s[28:31], s40 offen offset:128')
            e('s_mov_b64 exec, -1')
            e('L_balnext:')
        e(f's_cmp_lt_u32 s48, {SPIN}')
        e('s_cbranch_scc1 L_bal')
        e('s_endpgm')

    def build(self):
        e = self.e
        e('.amdgcn_target "amdgcn-amd-amdhsa--gfx950"')
        e('.text')
        e(f'.globl {NAME}')
        e('.p2align 8')
        e(f'.type {NAME},@function')
        e(f'{NAME}:')
        e('s_cmp_ge_u32 s2, 256')
        e('s_cbranch_scc1 L_end')
        self.keep_time(58)
        if self.clk:
            e('s_memrealtime s[88:89]')
        e('s_load_dwordx16 s[4:19], s[0:1], 0')
        e('v_lshrrev_b32 v1, 6, v0')
        e('v_and_b32 v0, 63, v0')
        e('v_readfirstlane_b32 s3, v1')
        e('s_and_b32 s32, s2, 15')
        e('s_lshl_b32 s32, s32, 2')
        e('s_bfe_u32 s31, s2, 0x20004')
        e('s_or_b32 s32, s32, s31')
        e('s_and_b32 s31, s2, 0xc0')
        e('s_or_b32 s32, s32, s31')
        e('s_cmp_eq_u32 s3, 4')
        e('s_cbranch_scc1 L_helper')
        if self.bal:
            e('s_cmp_eq_u32 s3, 5')
            e('s_cbranch_scc1 L_balancer')
        self.stream()
        e('L_helper:')
        self.helper()
        if self.bal:
            e('L_balancer:')
            self.balancer()
        e('L_end:')
        e('s_endpgm')
        e('L_codeend:')
        nv = 256 if self.stamps else 248
        e('.section .rodata,"a"')
        e('.p2align 6')
        e(f'.amdhsa_kernel {NAME}')
        e(f'  .amdhsa_next_free_vgpr {nv}')
        e('  .amdhsa_next_free_sgpr 96')
        e(f'  .amdhsa_accum_offset {nv}')
        e('  .amdhsa_group_segment_fixed_size 0')
        e('  .amdhsa_kernarg_size 64')
        e('  .amdhsa_user_sgpr_count 2')
        e('  .amdhsa_user_sgpr_kernarg_segment_ptr 1')
        e('  .amdhsa_system_sgpr_workgroup_id_x 1')
        e('.end_amdhsa_kernel')
        errs = check([l.lstrip() if l.lstrip().startswith('.') else l for l in self.o])
        for x in errs:
            print('HAZARD', x, file=sys.stderr)
        txt = HEADER + f'; @launch grid=(256,1,1) block=({384 if self.bal else 320},1,1) lds={LDS_BYTES}\n' + '\n'.join(self.o) + '\n'
        return txt, errs


if __name__ == '__main__':
    kw = {}
    out = sys.argv[1]
    for a in sys.argv[2:]:
        k, v = a.split('=')
        kw[k] = int(v)
    txt, errs = G(**kw).build()
    open(out, 'w').write(txt)
    sys.exit(1 if errs else 0)
```

```python
import sys, struct
from hazard import check

NAME = "standalone__gqa_block_cached__decode_kernel"

HEADER = """; Kernarg layout for this problem (64 bytes, ptrs only, base s[0:1]):
"""

PBASE = 0x100000
POFF = 0x80000
WSWIN = 0x10000000
BOFF = 0x10000
XOFF = 0x20000
STAMP0 = 0x10000000
STAMP1 = 0x10100000

L_WQ = 0x0000
L_WO = 0x5000
L_A = 0x0000
L_Q = 0xD000
L_ML = 0xD200
L_O = 0xD400
L_PR = 0xE400
L_LOC = 0xD240
LDS_BYTES = 0xEC00

def f2u(x):
    return struct.unpack('<I', struct.pack('<f', x))[0]

SCALE = f2u(128 ** -0.5 * 1.4426950408889634)
SPIN = 1 << 20
T_WO, T_TR, T_A, T_P, T_OL, T_AW = 184, 186, 188, 189, 190, 191


class G:
    def __init__(self, D=5, LV=16, stamps=False, D0=None, dbgt=0, kf=1, vf=1, pf=1, enc=-1, prio=3, slp=64, qslp=8, pre=2, dfn=0, d2=16, qd=0, clr=0, abl=0, kfirst=0, wqp=0, mld=0, wod=1, dper=0, il=0, pslp=0, rslp=0, PS=8192, clk=0, tau=1094, toff=200, dh=7, bal=1, bias=10, bslp=1, bstep=4, xm=1, p4=1, osc=0, xb=0, lagc=10, lper=2, xmax=12, loc=1, hot=0, ck=24, ck0=64, him=0, xmin=0, dl=4, encm=1, piece=65536):
        self.o = []
        self.D = D
        self.D0 = D0 or D
        self.LV = LV
        self.stamps = stamps
        self.dbgt = dbgt
        FL = ['', ' nt', ' sc1', ' sc1 nt', ' sc0 sc1', ' sc0 sc1 nt', ' sc0', ' sc0 nt']
        self.kf, self.vf = FL[kf], FL[vf]
        self.pf = pf
        self.enc = enc
        self.prio = prio
        self.slp = slp
        self.qslp = qslp
        self.pre = pre
        self.qd = qd
        self.abl = abl
        self.mld = mld
        self.dper = dper
        self.il = il
        self.PS = PS
        self.piece = piece
        self.encm = encm
        self.him, self.xmin, self.dl = him, xmin, dl
        self.ck, self.ck0 = ck, ck0
        self.hot = hot
        self.loc = loc
        self.xb, self.lagc, self.lper, self.xmax = xb, lagc, lper, xmax
        self.osc = osc
        self.xm, self.p4 = xm, p4
        self.bal, self.bias, self.bslp, self.bstep = bal, bias, bslp, bstep
        self.clk, self.tau, self.toff, self.dh = clk, tau, toff, dh
        self.pslp = pslp
        self.rslp = rslp
        self.wod = wod
        self.kfirst = kfirst
        self.wqp = wqp
        self.clr = clr
        self.dfn = dfn
        self.d2 = d2

    def e(self, s):
        self.o.append(s if s.endswith(':') or s.startswith('.') or s.startswith(';') else '    ' + s)

    def stamp(self, idx, sbase=80):
        if not self.stamps:
            return
        e = self.e
        e('s_memrealtime s[80:81]')
        e(f's_add_u32 s82, s18, {STAMP1 + idx * 8}')
        e('s_addc_u32 s83, s19, 0')
        e('s_lshl_b32 s84, s2, 8')
        e('s_waitcnt lgkmcnt(0)')
        e('v_mov_b32 v250, s84')
        e('v_mov_b32 v252, s80')
        e('v_mov_b32 v253, s81')
        e('s_mov_b64 s[56:57], exec')
        e('s_mov_b64 exec, 1')
        e('global_store_dwordx2 v250, v[252:253], s[82:83]')
        e('s_mov_b64 exec, s[56:57]')

    def keep_time(self, sreg):
        if self.stamps or self.dbgt:
            self.e(f's_memrealtime s[{sreg}:{sreg+1}]')

    def flush_time(self, idx, sreg):
        if not self.stamps:
            return
        e = self.e
        e(f's_add_u32 s82, s18, {STAMP1 + idx * 8}')
        e('s_addc_u32 s83, s19, 0')
        e('s_lshl_b32 s84, s2, 8')
        e('s_waitcnt lgkmcnt(0)')
        e('v_mov_b32 v250, s84')
        e(f'v_mov_b32 v252, s{sreg}')
        e(f'v_mov_b32 v253, s{sreg+1}')
        e('s_mov_b64 s[56:57], exec')
        e('s_mov_b64 exec, 1')
        e('global_store_dwordx2 v250, v[252:253], s[82:83]')
        e('s_mov_b64 exec, s[56:57]')

    def srd(self, d, base, size, add=None):
        e = self.e
        if add is None:
            e(f's_mov_b32 s{d}, s{base}')
            e(f's_mov_b32 s{d+1}, s{base+1}')
        else:
            e(f's_add_u32 s{d}, s{base}, {add}')
            e(f's_addc_u32 s{d+1}, s{base+1}, 0')
        e(f's_mov_b32 s{d+2}, {size:#x}')
        e(f's_mov_b32 s{d+3}, 0x20000')

    def stream(self):
        e, D, LV = self.e, self.D, 16
        vK, vV = 1, 2
        QB = [4, 8]
        DT = [12, 16]
        T, X = 20, 21
        A = 24
        MK = 28
        OA = 32
        M, L, T2, T3 = 36, 37, 38, 39
        S = 40
        RING = 56
        VP = 184
        rng = lambda r: f'v[{r}:{r+3}]'
        kslot = lambda n: RING + 4 * (n % 32)
        vslot = lambda v: VP + 4 * v if v < 16 else RING + 4 * ((v - 16) % 32)
        kpos = lambda n: 16 + n
        vpos = lambda v: v if v < 16 else 128 + v
        st = {'issued': -1, 'landed': -1}
        rpp = self.piece // 16384
        step = lambda n: 0x4000 + (3 * self.piece if self.piece < 0x80000 and (n // 4) % rpp == rpp - 1 else 0)

        def need_landed(x):
            if x > st['landed']:
                e(f's_waitcnt vmcnt({st["issued"] - x})')
                st['landed'] = x

        lab = [0]

        def clk_step():
            e('s_waitcnt lgkmcnt(0)')
            e('s_sub_u32 s86, s88, s85')
            e('s_mul_i32 s86, s86, 10')
            e('s_cmp_gt_u32 s86, s87')
            e('s_cselect_b32 vcc_lo, 1, 0')
            e(f's_add_u32 s87, s87, {self.tau}')
            e('s_memrealtime s[88:89]')

        vPos, vRef, vPA = 22, 23, 3

        def bal_step(i):
            if not self.bal:
                return
            if i % self.bstep == self.bstep - 2:
                e(f'v_add_u32 v{vPos}, {self.bstep}, v{vPos}')
                e(f'ds_write_b32 v{vPA}, v{vPos} offset:{L_PR}')
                e(f'ds_read_b32 v{vRef}, v{vPA} offset:{L_PR + 1024}')
            if i % self.bstep == self.bstep - 1:
                e('s_waitcnt lgkmcnt(0)')
                e(f'v_cmp_gt_u32 vcc, v{vRef}, v{vPos}')
                if self.him:
                    e(f'v_sub_u32 v{vRef}, v{vPos}, v{vRef}')
                    e(f'v_add_u32 v{vRef}, {-self.him - 1}, v{vRef}')
                    e(f'v_cmp_gt_u32 s[92:93], 32, v{vRef}')

        def gate(pos, d):
            if (self.clk or self.bal) and st.get('adapt') and d == D:
                lab[0] += 1
                e(f's_cbranch_vccnz L_dg{lab[0]}')
                e(f's_waitcnt vmcnt({D-1})')
                if self.him:
                    e('s_cmp_eq_u32 s92, 0')
                    e(f's_cbranch_scc1 L_dg{lab[0]}')
                    e(f's_waitcnt vmcnt({self.dl-1})')
                e(f'L_dg{lab[0]}:')
                d = self.dh
            if self.dper and d == D and pos % self.dper == 0:
                d = D + 1
            if pos >= d:
                e(f's_waitcnt vmcnt({d-1})')
                st['landed'] = max(st['landed'], pos - d)
            st['issued'] = pos

        def kissue(n, d=None):
            gate(kpos(n), d or D)
            e(f'buffer_load_dwordx4 {rng(kslot(n))}, v{vK}, s[20:23], s28 offen offset:{(n % 4) * 1024}{self.kf}')
            if n % 4 == 3:
                e(f's_add_u32 s28, s28, {step(n):#x}')

        def vissue(v, d=None):
            if 16 <= v < 32 and st.get('adapt'):
                bal_step(v)
            gate(vpos(v), d or D)
            e(f'buffer_load_dwordx4 {rng(vslot(v))}, v{vV}, s[24:27], s33 offen offset:{(v % 4) * 1024}{self.vf}')
            if v % 4 == 3:
                e(f's_add_u32 s33, s33, {step(v):#x}')

        def kadds(pair, sreg):
            d = DT[pair & 1]
            i = pair & 3
            e(f'v_add_f32_dpp v{T}, v{d + (i+1) % 4}, v{d + i} row_ror:12 row_mask:0xf bank_mask:0xf')
            e(f'v_add_f32_dpp v{T}, v{d + (i+2) % 4}, v{T} row_ror:8 row_mask:0xf bank_mask:0xf')
            e(f'v_add_f32_dpp v{sreg}, v{d + (i+3) % 4}, v{T} row_ror:4 row_mask:0xf bank_mask:{1 << i:#x}')

        def kmfma(n):
            d = DT[(n >> 1) & 1]
            c = '0' if n % 2 == 0 else rng(d)
            e(f'v_mfma_f32_16x16x32_bf16 {rng(d)}, {rng(kslot(n))}, {rng(QB[n & 1])}, {c}')

        def shift4():
            for i in range(12):
                e(f'v_mov_b32 v{S+i}, v{S+i+4}')

        def vprep(pn, yreg):
            i = pn & 7
            e(f'v_mov_b32_dpp v{X}, v{yreg} row_newbcast:{2*i} row_mask:0xf bank_mask:0x3')
            e(f'v_mov_b32_dpp v{X}, v{yreg} row_newbcast:{2*i+1} row_mask:0xf bank_mask:0xc')
            for r in range(4):
                e(f'v_and_b32 v{A+r}, v{X}, v{MK+r}')

        def vmfma(v, first=False):
            c = '0' if first else rng(OA)
            e(f'v_mfma_f32_16x16x32_bf16 {rng(OA)}, {rng(A)}, {rng(vslot(v))}, {c}')

        e(f'v_lshlrev_b32 v{vV}, 4, v0')
        e('s_and_b32 s31, s32, 3')
        e(f's_mul_i32 s31, s31, {self.piece}')
        e('s_lshl_b32 s33, s3, 12')
        e('s_add_u32 s33, s33, s31')
        e('s_mov_b32 s28, s33')
        e('s_lshr_b32 s31, s32, 2')
        e('s_lshl_b32 s31, s31, 21')
        if self.prio:
            e(f's_setprio {self.prio}')
        e('s_waitcnt lgkmcnt(0)')
        self.keep_time(70)
        if self.clk:
            e('s_mov_b32 s85, s88')
        self.srd(24, 8, 0x200000, add='s31')
        for v in range(min(self.D0, 16)):
            vissue(v, d=self.D0)
        e('s_load_dword s34, s[18:19], 0')
        self.srd(20, 6, 0x200000, add='s31')
        e('v_lshrrev_b32 v3, 4, v0')
        e('v_bfe_u32 v4, v0, 2, 2')
        e('v_and_b32 v5, 3, v0')
        e('v_lshlrev_b32 v3, 6, v3')
        e('v_lshlrev_b32 v4, 8, v4')
        e('v_lshlrev_b32 v5, 4, v5')
        e(f'v_add3_u32 v{vK}, v3, v4, v5')
        e(f's_mov_b32 s30, {SCALE:#x}')
        e('v_lshrrev_b32 v3, 3, v0')
        e('v_xor_b32 v3, v3, v0')
        e('v_and_b32 v3, 1, v3')
        e('v_lshlrev_b32 v3, 4, v3')
        e('v_mov_b32 v4, 0xffff')
        e('v_lshlrev_b32 v3, v3, v4')
        e('v_bfe_u32 v4, v0, 1, 2')
        for r in range(4):
            e(f'v_cmp_eq_u32 vcc, {r}, v4')
            e('s_nop 1')
            e(f'v_cndmask_b32 v{MK+r}, 0, v3, vcc')
        e('v_and_b32 v3, 1, v0')
        e('v_lshlrev_b32 v3, 8, v3')
        e('v_lshrrev_b32 v4, 2, v0')
        e(f'v_lshl_add_u32 v{T2}, v4, 4, v3')
        e('v_and_b32 v3, 2, v0')
        e('v_cmp_ne_u32 vcc, 0, v3')
        for v in range(min(self.D0, 16), 16):
            vissue(v, d=self.D0)
            if v == self.D0:
                self.keep_time(72)
        self.keep_time(76)
        for n in range(32):
            kissue(n, d=self.D0 + max(0, n - (31 - self.pre)))
            if n == 8:
                self.keep_time(78)
        self.keep_time(60)
        e('s_barrier')
        e(f'ds_read_b128 {rng(DT[0])}, v{T2} offset:{L_Q}')
        e('s_mov_b32 s29, 0')
        e(f's_waitcnt lgkmcnt(0) vmcnt({min(self.D0, 30)})')
        self.keep_time(62)
        self.make_tag()
        for r in range(4):
            e(f'v_cndmask_b32 v{QB[1]+r}, 0, v{DT[0]+r}, vcc')
            e(f'v_cndmask_b32 v{QB[0]+r}, v{DT[0]+r}, 0, vcc')
        e('s_nop 1')
        if self.clk:
            e('s_mov_b64 vcc, 0')
            e('s_memrealtime s[88:89]')
            e(f's_mov_b32 s87, {self.toff * 10 + 6 * self.tau}')
            st['adapt'] = True
        if self.bal:
            e('s_mov_b64 vcc, 0')
            e('s_mov_b64 s[92:93], 0')
            e(f'v_mov_b32 v{vPos}, 48')
            e(f'v_lshlrev_b32 v{vPA}, 2, v0')
            e('s_lshl_b32 s31, s3, 8')
            e(f'v_add_u32 v{vPA}, s31, v{vPA}')
            st['adapt'] = True
        self.align()
        e('L_kloop:')
        for p in range(16):
            n = 2 * p
            if self.clk and p % 4 == 3:
                clk_step()
            bal_step(n)
            kmfma(n)
            kissue(n + 32)
            bal_step(n + 1)
            kmfma(n + 1)
            kadds((p - 1) % 16, S + 12 + (((p - 1) % 16) >> 2))
            if p == 0:
                shift4()
            kissue(n + 33)
        e('s_add_u32 s29, s29, 1')
        e('s_cmp_lt_u32 s29, 3')
        e('s_cbranch_scc1 L_kloop')
        nv = 16
        st['issued'], st['landed'] = kpos(127), kpos(127) - max(D + 1, self.dh if (self.clk or self.bal) else 0)
        for p in range(16):
            n = 2 * p
            need_landed(kpos(96 + n + 1))
            kmfma(n)
            kmfma(n + 1)
            e('s_nop 0')
            kadds((p - 1) % 16, S + 12 + (((p - 1) % 16) >> 2))
            if p == 0:
                shift4()
            if p % 3 == 0:
                vissue(nv); nv += 1
            else:
                e('s_nop 1')
        e('s_nop 1')
        kadds(15, S + 15)
        e(f'v_max3_f32 v{M}, v{S}, v{S+1}, v{S+2}')
        e(f'v_max3_f32 v{T}, v{S+3}, v{S+4}, v{S+5}')
        for i in range(6, 14, 4):
            e(f'v_max3_f32 v{M}, v{M}, v{S+i}, v{S+i+1}')
            e(f'v_max3_f32 v{T}, v{T}, v{S+i+2}, v{S+i+3}')
        e(f'v_max3_f32 v{M}, v{M}, v{S+14}, v{S+15}')
        e(f'v_max_f32 v{M}, v{M}, v{T}')

        def allreduce(reg, op):
            for k in (2, 4, 8):
                e('s_nop 1')
                e(f'{op}_dpp v{reg}, v{reg}, v{reg} row_ror:{k} row_mask:0xf bank_mask:0xf')
            for sw in ('v_permlane16_swap_b32', 'v_permlane32_swap_b32'):
                e(f'v_mov_b32 v{T}, v{reg}')
                e('s_nop 1')
                e(f'{sw} v{reg}, v{T}')
                e(f'{op} v{reg}, v{reg}, v{T}')
        allreduce(M, 'v_max_f32')
        e(f'v_mul_f32 v{M}, s30, v{M}')
        vissue(nv); nv += 1
        for i in range(16):
            e(f'v_fma_f32 v{S+i}, v{S+i}, s30, -v{M}')
            e(f'v_exp_f32 v{S+i}, v{S+i}')
            if i == 10:
                vissue(nv); nv += 1
        e(f'v_add_f32 v{L}, v{S}, v{S+1}')
        for i in range(2, 16):
            e(f'v_add_f32 v{L}, v{L}, v{S+i}')
        vissue(nv); nv += 1
        for i in range(16):
            t = T2 if i & 1 else T3
            e(f'v_mov_b32_dpp v{t}, v{S+i} quad_perm:[1,0,3,2] row_mask:0xf bank_mask:0xf')
            e(f'v_cvt_pk_bf16_f32 v{S+i}, v{S+i}, v{t}')
        vissue(nv); nv += 1
        allreduce(L, 'v_add_f32')
        e(f'v_lshlrev_b32 v{T2}, 3, v0')
        e('s_lshl_b32 s31, s3, 4')
        e(f'v_add_u32 v{T2}, s31, v{T2}')
        e('s_mov_b64 exec, 3')
        e(f'ds_write_b64 v{T2}, v[{M}:{L}] offset:{L_ML}')
        e('s_mov_b64 exec, -1')
        self.keep_time(64)
        for pn in range(16):
            vprep(pn, S + (pn >> 3))
            if pn % 3 == 0 and pn < 15:
                vissue(nv); nv += 1
            else:
                e('s_nop 1')
            vmfma(pn, first=(pn == 0))
        assert nv <= 32, nv
        self.tail_setup()
        while nv < 32:
            vissue(nv); nv += 1
        e('s_mov_b32 s29, 0')
        if self.clk:
            e('s_waitcnt lgkmcnt(0)')
            e('s_memrealtime s[88:89]')
            e(f's_mov_b32 s87, {self.toff * 10 + 20 * self.tau}')
        elif not self.bal:
            e('s_mov_b64 vcc, 0')
        self.align()
        e('L_vloop:')
        sw_it, sw_i = divmod(96 - self.dfn, 32)
        for i in range(32):
            p2 = 16 + i
            if self.dfn and i == sw_i:
                e(f's_cmp_ge_u32 s29, {sw_it}')
                e('s_cselect_b32 vcc_lo, 1, 0')
            if self.clk and i % 8 == 7:
                clk_step()
            bal_step(i)
            vprep(p2, S + (p2 >> 3))
            if self.dfn:
                e(f's_cbranch_vccnz L_g{i}')
                e(f's_waitcnt vmcnt({D-1})')
                e(f'L_g{i}:')
                vissue(32 + i, d=self.d2)
            else:
                vissue(32 + i)
            vmfma(p2)
        shift4()
        e('s_add_u32 s29, s29, 1')
        e('s_cmp_lt_u32 s29, 3')
        e('s_cbranch_scc1 L_vloop')
        self.keep_time(66)
        for i in range(8):
            e('s_mov_b32 m0, s46')
            e('s_add_u32 s46, s46, 1024')
            e(f'buffer_load_dwordx4 v{T_WO + ((i >> 1) & 1)}, s[36:39], s45 offen nt lds')
            e('s_add_u32 s45, s45, 9216')
        for i in range(LV):
            p2 = 16 + i
            vprep(p2, S + (p2 >> 3))
            if LV - 1 - i < (self.d2 if self.dfn else max(D + 1, self.dh if (self.clk or self.bal) else 0)):
                e(f's_waitcnt vmcnt({LV - 1 - i + 8})')
                e('s_nop 0')
            else:
                e('s_nop 1')
            vmfma(p2)
        e('s_cmp_ge_u32 s2, 144')
        e('s_nop 6')
        e(f'ds_write_b128 v{T_OL}, {rng(OA)} offset:{L_O}')
        e('s_waitcnt lgkmcnt(0)')
        self.keep_time(68)
        e('s_barrier')
        e('s_cbranch_scc1 L_notproj')
        BW, AO, PO = 56, 88, 120
        e('s_barrier')
        for j in range(2):
            e(f'buffer_load_dwordx4 {rng(PO + 4*j)}, v{vV}, s[40:43], s44 offen offset:{1024*j} sc1')
        e('s_mov_b32 s48, 0')
        e('s_waitcnt vmcnt(2)')
        e('s_barrier')
        self.keep_time(50)
        for kk in range(8):
            gp = kk >> 1
            for hf in range(2):
                row = 64 * (kk & 1) + 8 * hf + 4 * (gp & 1)
                r = BW + kk * 4 + 2 * hf
                e(f'ds_read_b64_tr_b16 v[{r}:{r+1}], v{T_TR + (gp >> 1)} offset:{L_WO + row * 128}')
        e('s_branch L_ochk')
        self.align()
        e('L_opoll:')
        if self.pslp:
            e(f's_sleep {self.pslp}')
        for j in range(2):
            e(f'buffer_load_dwordx4 {rng(PO + 4*j)}, v{vV}, s[40:43], s44 offen offset:{1024*j} sc1')
        e('L_ochk:')
        e('s_add_u32 s48, s48, 1')
        e(f's_cmp_ge_u32 s48, {SPIN}')
        e('s_cbranch_scc1 L_ook')
        e('s_waitcnt vmcnt(1)')
        e(f'v_max3_u32 v20, v{PO}, v{PO+1}, v{PO+2}')
        e('s_waitcnt vmcnt(0)')
        e(f'v_max3_u32 v21, v{PO+4}, v{PO+5}, v{PO+6}')
        e(f'v_max3_u32 v20, v20, v{PO+3}, v{PO+7}')
        e('v_max_u32 v20, v20, v21')
        e('v_cmp_eq_u32 vcc, -1, v20')
        e('s_and_b64 exec, exec, vcc')
        e('s_cbranch_scc1 L_opoll')
        e('L_ook:')
        e('s_mov_b64 exec, -1')
        e(f'ds_write_b128 v{T_AW}, {rng(PO)} offset:{L_A}')
        e(f'ds_write_b128 v{T_AW}, {rng(PO+4)} offset:{L_A + 2*528}')
        e('s_waitcnt lgkmcnt(0)')
        e('s_barrier')
        self.keep_time(52)
        for kk in range(8):
            e(f'ds_read_b128 {rng(AO + 4*kk)}, v{T_A} offset:{L_A + 64*kk}')
        for kk in range(8):
            c = '0' if kk == 0 else 'v[12:15]'
            e(f's_waitcnt lgkmcnt({7-kk})')
            e(f'v_mfma_f32_16x16x32_bf16 v[12:15], {rng(AO + 4*kk)}, {rng(BW + 4*kk)}, {c}')
        e('v_mov_b32 v17, s34')
        e('v_mov_b32 v19, s34')
        e('s_mov_b32 s48, 0x55555555')
        e('s_nop 4')
        e('v_add_f32 v12, v12, v13')
        e('v_add_f32 v14, v14, v15')
        e('v_add_f32 v16, v12, v14')
        if self.p4:
            e('s_nop 1')
            e('v_mov_b32_dpp v18, v16 quad_perm:[1,1,3,3] row_mask:0xf bank_mask:0xf')
            e('s_mov_b32 exec_lo, s48')
            e('s_mov_b32 exec_hi, s48')
            e(f'buffer_store_dwordx4 v[16:19], v{T_P}, s[40:43], s47 offen sc1')
        else:
            e(f'buffer_store_dwordx2 v[16:17], v{T_P}, s[40:43], s47 offen sc1')
        self.keep_time(54)
        if self.stamps:
            e('s_branch L_sflush')
        e('s_endpgm')
        e('L_notproj:')
        e('s_cmp_ge_u32 s2, 180')
        e('s_cbranch_scc1 ' + ('L_sflush' if self.stamps else 'L_end'))
        self.keep_time(50)
        e('s_mov_b32 s48, 0')
        e(f's_mov_b32 s38, {4 * 576 * 2}')
        e('s_and_b32 s45, s35, 3')
        e('s_mul_i32 s45, s45, 1152')
        e('s_lshr_b32 s31, s35, 2')
        e('s_lshl_b32 s31, s31, 7')
        e('s_add_u32 s45, s45, s31')
        e('s_lshl_b32 s31, s3, 5')
        e('s_add_u32 s45, s45, s31')
        self.align()
        e('L_ppoll:')
        if self.rslp:
            e(f's_sleep {self.rslp}')
        e(f'buffer_load_dwordx4 v[12:15], v{T_A}, s[40:43], s44 offen sc1')
        e(f'buffer_load_dwordx4 v[16:19], v{T_A}, s[40:43], s47 offen sc1')
        e('s_add_u32 s48, s48, 1')
        e(f's_cmp_ge_u32 s48, {SPIN}')
        e('s_cbranch_scc1 L_pok')
        e('s_waitcnt vmcnt(1)')
        e('v_xor_b32 v20, s34, v13')
        e('v_xor_b32 v21, s34, v15')
        e('s_waitcnt vmcnt(0)')
        e('v_xor_b32 v22, s34, v17')
        e('v_xor_b32 v23, s34, v19')
        e('v_or3_b32 v20, v20, v21, v22')
        e('v_or_b32 v20, v20, v23')
        e('v_cmp_ne_u32 vcc, 0, v20')
        e('s_and_b64 exec, exec, vcc')
        e('s_cbranch_scc1 L_ppoll')
        e('L_pok:')
        e('s_mov_b64 exec, -1')
        e('s_waitcnt vmcnt(0)')
        self.keep_time(52)
        e('v_add_f32 v12, v12, v16')
        e('v_add_f32 v14, v14, v18')
        e('s_nop 0')
        e('v_add_f32_dpp v12, v12, v12 row_ror:8 row_mask:0xf bank_mask:0xf')
        e('v_add_f32_dpp v14, v14, v14 row_ror:8 row_mask:0xf bank_mask:0xf')
        e('s_nop 1')
        e('v_permlane16_swap_b32 v12, v14')
        e('v_add_f32 v12, v12, v14')
        e('v_mov_b32 v14, v12')
        e('s_nop 1')
        e('v_permlane32_swap_b32 v12, v14')
        e('v_add_f32 v12, v12, v14')
        e('v_cvt_pk_bf16_f32 v12, v12, v12')
        e('s_mov_b64 exec, 0x00ff00ff')
        e(f'buffer_store_short v12, v{T_P}, s[36:39], s45 offen' + ['', ' sc1', ' nt', ' sc0 sc1'][self.osc])
        self.keep_time(54)
        e('s_add_u32 s48, s2, s3')
        e('s_cmp_lg_u32 s48, 144')
        e('s_cbranch_scc1 ' + ('L_sflush' if self.stamps else 'L_end'))
        e('v_mov_b32 v4, s34')
        e('v_mov_b32 v6, 0')
        e('s_mov_b64 exec, 1')
        e('buffer_store_dword v4, v6, s[40:43], 0 offen')
        if self.dbgt:
            e('s_waitcnt lgkmcnt(0)')
            e('s_mov_b32 s80, 8000')
            if self.enc > 0:
                e(f's_sub_u32 s81, s{self.enc}, s58')
                e(f's_mul_i32 s81, s81, {self.encm}')
                e('s_add_u32 s80, s80, s81')
            e('L_enc:')
            e('s_memrealtime s[82:83]')
            e('s_waitcnt lgkmcnt(0)')
            e('s_sub_u32 s82, s82, s58')
            e('s_cmp_lt_u32 s82, s80')
            e('s_cbranch_scc1 L_enc')
        if self.stamps:
            e('L_sflush:')
            e('s_mov_b64 exec, -1')
            e('s_cmp_lg_u32 s3, 0')
            e('s_cbranch_scc1 L_end')
            for k, sr in enumerate((58, 60, 62, 64, 66, 68)):
                self.flush_time(k, sr)
            for k, sr in ((12, 50), (13, 52), (14, 54), (16, 70), (17, 72), (15, 76), (19, 78)):
                self.flush_time(k, sr)
        e('s_endpgm')

    def proj_role(self, shkv, stg):
        e = self.e
        if self.xm:
            e(f's_lshr_b32 s{stg}, s2, 3')
            e(f's_and_b32 s{shkv}, s2, 7')
            e(f's_cmp_ge_u32 s{stg}, 9')
            e(f's_cselect_b32 s95, 8, 0')
            e(f's_add_u32 s{shkv}, s{shkv}, s95')
            e(f's_cmp_ge_u32 s{stg}, 9')
            e(f's_cselect_b32 s95, 9, 0')
            e(f's_sub_u32 s{stg}, s{stg}, s95')
        else:
            e(f's_mul_i32 s{shkv}, s2, 57')
            e(f's_lshr_b32 s{shkv}, s{shkv}, 9')
            e(f's_mul_i32 s{stg}, s{shkv}, 9')
            e(f's_sub_u32 s{stg}, s2, s{stg}')

    def tail_setup(self):
        e = self.e
        t0, t1, t2, t3 = 200, 201, 202, 203
        self.srd(40, 18, WSWIN)
        e(f'v_lshlrev_b32 v{T_OL}, 4, v0')
        e('s_lshl_b32 s31, s3, 10')
        e(f'v_add_u32 v{T_OL}, s31, v{T_OL}')
        e('s_lshl_b32 s46, s3, 13')
        e(f's_add_u32 s46, s46, {L_WO}')
        e('s_cmp_ge_u32 s2, 144')
        e('s_cbranch_scc1 L_ts_red')
        self.proj_role(35, 31)
        e('s_mul_i32 s47, s35, 9')
        e('s_add_u32 s47, s47, s31')
        self.srd(36, 12, 0 if self.abl & 4 else 4096 * 576 * 2)
        e('s_lshl_b32 s45, s35, 2')
        e('s_add_u32 s45, s45, s3')
        e(f's_mul_i32 s45, s45, {64 * 1152}')
        e('s_lshl_b32 s31, s31, 7')
        e('s_add_u32 s45, s45, s31')
        e(f'v_lshrrev_b32 v{t0}, 3, v0')
        e(f'v_mul_u32_u24 v{t1}, 1152, v{t0}')
        e(f'v_and_b32 v{t0}, 2, v{t0}')
        e(f'v_and_b32 v{t2}, 7, v0')
        e(f'v_xor_b32 v{t2}, v{t2}, v{t0}')
        e(f'v_lshl_add_u32 v{T_WO}, v{t2}, 4, v{t1}')
        e(f'v_xor_b32 v{t2}, 4, v{t2}')
        e(f'v_lshl_add_u32 v{T_WO+1}, v{t2}, 4, v{t1}')
        e(f'v_bfe_u32 v{t0}, v0, 3, 1')
        e(f'v_bfe_u32 v{t1}, v0, 2, 1')
        e(f'v_lshl_add_u32 v{t2}, v{t1}, 1, v{t0}')
        e(f'v_and_b32 v{t3}, 0x30, v0')
        e(f'v_lshl_add_u32 v{t3}, v{t0}, 7, v{t3}')
        e(f'v_add_u32 v{T_TR}, v{t3}, v{t2}')
        e(f'v_xor_b32 v{T_TR+1}, 1, v{T_TR}')
        e(f'v_bfe_u32 v{t0}, v0, 4, 1')
        e(f'v_lshl_add_u32 v{t0}, v{t0}, 1, v{t1}')
        e(f'v_xor_b32 v{t0}, s3, v{t0}')
        e(f'v_lshlrev_b32 v{t0}, 5, v{t0}')
        e(f'v_and_b32 v{t1}, 3, v0')
        e(f'v_lshl_add_u32 v{t0}, v{t1}, 3, v{t0}')
        e(f'v_lshl_add_u32 v{T_TR}, v{T_TR}, 7, v{t0}')
        e(f'v_lshl_add_u32 v{T_TR+1}, v{T_TR+1}, 7, v{t0}')
        e('s_lshl_b32 s44, s3, 4')
        e('s_add_u32 s44, s44, s35')
        e(f's_mul_i32 s44, s44, {self.PS}')
        e(f's_add_u32 s44, s44, {PBASE}')
        e(f'v_lshrrev_b32 v{t0}, 5, v0')
        e(f'v_lshl_add_u32 v{t0}, s3, 2, v{t0}')
        e(f'v_mul_u32_u24 v{t0}, 528, v{t0}')
        e(f'v_and_b32 v{t1}, 31, v0')
        e(f'v_lshl_add_u32 v{T_AW}, v{t1}, 4, v{t0}')
        e(f'v_and_b32 v{t0}, 15, v0')
        e(f'v_mul_u32_u24 v{t0}, 528, v{t0}')
        e(f'v_and_b32 v{t1}, 0x30, v0')
        e(f'v_add_u32 v{T_A}, v{t0}, v{t1}')
        e(f'v_and_b32 v{t0}, 15, v0')
        e(f'v_lshlrev_b32 v{t0}, 3, v{t0}')
        e(f'v_lshl_add_u32 v{T_P}, v{t1}, 5, v{t0}')
        e('s_lshl_b32 s47, s47, 11')
        e('s_lshl_b32 s31, s3, 7')
        e('s_add_u32 s47, s47, s31')
        e(f's_add_u32 s47, s47, {POFF}')
        e('s_branch L_ts_done')
        e('L_ts_red:')
        self.srd(36, 14, 0)
        e('s_mov_b32 s45, 0')
        e(f'v_mov_b32 v{T_WO}, 0')
        e(f'v_mov_b32 v{T_WO+1}, 0')
        e(f'v_mov_b32 v{T_TR}, 0')
        e(f'v_mov_b32 v{T_TR+1}, 0')
        e('s_sub_u32 s35, s2, 144')
        e(f'v_lshrrev_b32 v{t0}, 3, v0')
        e(f'v_mul_u32_u24 v{t0}, 18432, v{t0}')
        e(f'v_and_b32 v{t1}, 7, v0')
        e(f'v_lshl_add_u32 v{T_A}, v{t1}, 4, v{t0}')
        e('s_lshl_b32 s44, s35, 9')
        e('s_lshl_b32 s31, s3, 7')
        e('s_add_u32 s44, s44, s31')
        e(f's_add_u32 s44, s44, {POFF}')
        e(f's_add_u32 s47, s44, {8 * 18432}')
        e(f'v_lshrrev_b32 v{t0}, 4, v0')
        e(f'v_lshl_add_u32 v{t0}, v{t1}, 1, v{t0}')
        e(f'v_lshlrev_b32 v{T_P}, 1, v{t0}')
        e('L_ts_done:')

    def align(self):
        self.e('.p2align 3')

    def make_tag(self):
        self.e('s_add_u32 s34, s34, 0x7f4a7c15')

    def pack4(self, dst, z, vtag):
        e = self.e
        e(f'v_perm_b32 v{dst}, v{z[0]}, v{z[1]}, s90')
        e(f'v_perm_b32 v{dst+1}, v{z[1]}, v{vtag}, s91')
        e(f'v_perm_b32 v{dst+2}, v{z[2]}, v{z[3]}, s90')
        e(f'v_perm_b32 v{dst+3}, v{z[3]}, v{vtag}, s92')

    def pack_consts(self):
        e = self.e
        e('s_mov_b32 s90, 0x07060501')
        e('s_mov_b32 s91, 0x07060100')
        e('s_mov_b32 s92, 0x07060302')
        e('s_mov_b32 s93, 0x05040100')
        e('s_mov_b32 s94, 0x0706000c')

    def check4(self, pieces, tmp):
        e = self.e
        for i, p in enumerate(pieces):
            e(f'v_perm_b32 v{tmp+i}, v{p+3}, v{p+1}, s93')
        for i, p in enumerate(pieces):
            e(f'v_xor_b32 v{tmp+i}, s34, v{tmp+i}')
        e(f'v_or3_b32 v{tmp}, v{tmp}, v{tmp+1}, v{tmp+2}')
        e(f'v_or_b32 v{tmp}, v{tmp}, v{tmp+3}')
        e(f'v_cmp_ne_u32 vcc, 0, v{tmp}')

    def unpack_sum4(self, pieces):
        e = self.e
        for p in pieces:
            e(f'v_perm_b32 v{p+1}, v{p+1}, v{p}, s94')
            e(f'v_perm_b32 v{p+3}, v{p+3}, v{p+2}, s94')
            e(f'v_and_b32 v{p}, 0xffffff00, v{p}')
            e(f'v_and_b32 v{p+2}, 0xffffff00, v{p+2}')
        p0, p1, p2, p3 = pieces
        for t in range(4):
            e(f'v_add_f32 v{p0+t}, v{p0+t}, v{p1+t}')
            e(f'v_add_f32 v{p2+t}, v{p2+t}, v{p3+t}')
        for t in range(4):
            e(f'v_add_f32 v{p0+t}, v{p0+t}, v{p2+t}')

    def publish(self, stores):
        e = self.e
        self.npub = getattr(self, 'npub', 0) + 1
        n = self.npub
        if self.loc:
            e('s_cmp_lg_u32 s49, 0')
            e(f's_cbranch_scc1 L_pubL{n}')
        for st in stores:
            e(st + (' sc1' if st.startswith('buffer_store') else ''))
        if self.loc:
            e(f's_branch L_pubE{n}')
            e(f'L_pubL{n}:')
            for st in stores:
                e(st)
            e(f'L_pubE{n}:')

    def read_loc(self, vz, vt):
        e = self.e
        if not self.loc:
            return
        e('s_mov_b32 s48, 0')
        e('L_locw:')
        e(f'ds_read_b32 v{vt}, v{vz} offset:{L_LOC}')
        e('s_add_u32 s48, s48, 1')
        e('s_waitcnt lgkmcnt(0)')
        e(f'v_readfirstlane_b32 s49, v{vt}')
        e('s_sub_u32 s49, s49, s34')
        e('s_cmp_lt_u32 s49, 2')
        e('s_cbranch_scc1 L_locd')
        e('s_sleep 2')
        e(f's_cmp_lt_u32 s48, {SPIN}')
        e('s_cbranch_scc1 L_locw')
        e('L_locd:')
        e('s_cmp_eq_u32 s49, 0')
        e('s_cselect_b32 s49, 1, 0')

    def wait_mid(self, lab, vzero, scnt):
        e = self.e
        e(f's_mov_b32 s{scnt}, 0')
        e(f'{lab}:')
        e(f's_sleep {self.slp}')
        for w in range(4):
            e(f'ds_read_b128 v[{16 + 4*w}:{19 + 4*w}], v{vzero} offset:{L_ML + 16*w}')
        e(f's_add_u32 s{scnt}, s{scnt}, 1')
        e('s_waitcnt lgkmcnt(0)')
        self.maxu(32, range(16, 32))
        e('v_cmp_eq_u32 vcc, -1, v32')
        e('s_nop 0')
        e(f's_cbranch_vccz {lab}_ok')
        e(f's_cmp_lt_u32 s{scnt}, {SPIN}')
        e(f's_cbranch_scc1 {lab}')
        e(f'{lab}_ok:')

    def maxu(self, dst, regs):
        e = self.e
        regs = list(regs)
        e(f'v_max3_u32 v{dst}, v{regs[0]}, v{regs[1]}, v{regs[2]}')
        regs = regs[3:]
        while len(regs) >= 2:
            e(f'v_max3_u32 v{dst}, v{dst}, v{regs[0]}, v{regs[1]}')
            regs = regs[2:]
        if regs:
            e(f'v_max_u32 v{dst}, v{dst}, v{regs[0]}')

    def helper(self):
        e = self.e
        rng = lambda r: f'v[{r}:{r+3}]'
        XA = 16
        WB = 64
        DQ = 40
        e('s_and_b32 s40, s32, 63')
        e('s_lshr_b32 s35, s32, 6')
        e('v_lshrrev_b32 v1, 3, v0')
        e('v_lshlrev_b32 v1, 13, v1')
        e('v_and_b32 v2, 7, v0')
        e('v_lshl_add_u32 v1, v2, 4, v1')
        e(f's_mul_i32 s42, s35, {144 * 8192}')
        e('s_lshl_b32 s41, s40, 7')
        e('s_add_u32 s42, s42, s41')
        e('v_and_b32 v2, 3, v0')
        e('v_mul_u32_u24 v2, 1152, v2')
        e('v_lshrrev_b32 v3, 4, v0')
        e('v_lshl_add_u32 v7, v3, 3, v2')
        e('v_lshl_add_u32 v2, v3, 4, v2')
        e('s_mul_i32 s43, s35, 288')
        e('s_waitcnt lgkmcnt(0)')
        e('s_load_dword s34, s[18:19], 0')
        self.srd(24, 4, 4 * 576 * 2)
        for kk in range(4):
            e(f'buffer_load_dwordx4 {rng(XA + 4*kk)}, v2, s[24:27], s43 offen offset:{kk*64}')
        e(f'buffer_load_dwordx2 v[{XA+16}:{XA+17}], v7, s[24:27], s43 offen offset:256')
        self.srd(20, 10, 576 * 4096 * 2)
        for i in range(18):
            e(f's_mov_b32 m0, {L_WQ + 1024 * i}')
            if i:
                e('s_add_u32 s42, s42, 0x10000')
            else:
                e('s_nop 0')
            if self.wqp and i >= self.wqp:
                e(f's_waitcnt vmcnt({self.wqp - 1})')
            if not self.abl & 1:
                e('buffer_load_dwordx4 v1, s[20:23], s42 offen nt lds')
        if self.pf:
            e('s_getpc_b64 s[54:55]')
            e('L_pc:')
            e(f's_sub_u32 s54, s54, L_pc-{NAME}')
            e('s_subb_u32 s55, s55, 0')
            e('v_lshlrev_b32 v14, 7, v0')
            e('global_load_dword v60, v14, s[54:55]')
            e('v_add_u32 v14, 0x2000, v14')
            e(f'v_cmp_gt_u32 vcc, L_codeend-{NAME}, v14')
            e('s_and_saveexec_b64 s[56:57], vcc')
            e('global_load_dword v61, v14, s[54:55]')
            e('s_mov_b64 exec, s[56:57]')
        self.srd(28, 18, WSWIN)
        for r in range(4):
            e(f'v_mov_b32 v{8+r}, -1')
        e('v_lshlrev_b32 v4, 4, v0')
        e('s_lshr_b32 s44, s32, 2')
        e(f's_mul_i32 s44, s44, {self.PS}')
        e(f's_add_u32 s44, s44, {PBASE}')
        e('s_and_b32 s43, s32, 3')
        e('s_lshl_b32 s45, s43, 9')
        e('s_add_u32 s45, s45, s44')
        e('s_lshl_b32 s47, s43, 8')
        e('s_add_u32 s47, s47, s44')
        e('s_mov_b64 exec, 15')
        e(f'ds_write_b128 v4, v[8:11] offset:{L_ML}')
        e('s_mov_b64 exec, -1')
        self.pack_consts()
        e('v_bfe_u32 v5, v0, 2, 2')
        e('v_lshlrev_b32 v5, 7, v5')
        e('v_and_b32 v6, 3, v0')
        e('v_lshl_add_u32 v5, v6, 3, v5')
        e('v_lshl_add_u32 v6, v3, 9, v5')
        e('v_lshl_add_u32 v5, v3, 10, v5')
        e(f's_mov_b32 s41, {16 * self.PS}')
        e('v_mul_lo_u32 v7, s41, v3')
        e('v_and_b32 v12, 15, v0')
        e('v_lshl_add_u32 v7, v12, 4, v7')
        e('s_lshr_b32 s46, s40, 2')
        e(f's_mul_i32 s46, s46, {self.PS}')
        e('s_lshl_b32 s41, s35, 10')
        e('s_add_u32 s46, s46, s41')
        e('s_and_b32 s41, s40, 3')
        e('s_lshl_b32 s41, s41, 8')
        e('s_add_u32 s46, s46, s41')
        e(f's_add_u32 s46, s46, {PBASE + 4096}')
        e('s_add_u32 s50, s44, 4096')
        e('v_and_b32 v12, 15, v0')
        e('v_lshlrev_b32 v12, 1, v12')
        e('v_lshl_add_u32 v12, v3, 7, v12')
        e('s_waitcnt lgkmcnt(0)')
        self.make_tag()
        e('v_mov_b32 v13, s34')
        self.keep_time(74)
        e('s_waitcnt vmcnt(0)')
        self.keep_time(60)
        for t in range(4):
            for kk in range(4):
                for hf in range(2):
                    r = WB + 20*t + 4*kk + 2*hf
                    e(f'ds_read_b64_tr_b16 v[{r}:{r+1}], v5 offset:{L_WQ + (32*kk + 4*hf)*128 + 32*t}')
            r = WB + 20*t + 16
            e(f'ds_read_b64_tr_b16 v[{r}:{r+1}], v6 offset:{L_WQ + 128*128 + 32*t}')
        for t in range(4):
            e(f's_waitcnt lgkmcnt({min(15, 9*(3-t))})')
            for kk in range(4):
                c = '0' if kk == 0 else rng(DQ + 4*t)
                e(f'v_mfma_f32_16x16x32_bf16 {rng(DQ + 4*t)}, {rng(XA + 4*kk)}, {rng(WB + 20*t + 4*kk)}, {c}')
        e('s_nop 3')
        for t in range(4):
            r = WB + 20*t + 16
            e(f'v_mfma_f32_16x16x16_bf16 {rng(DQ + 4*t)}, v[{XA+16}:{XA+17}], v[{r}:{r+1}], {rng(DQ + 4*t)}')
        e('s_nop 4')
        for t in range(4):
            for b in range(1, 4):
                e(f'v_mov_b32_dpp v{DQ+4*t}, v{DQ+4*t+b} quad_perm:[0,1,2,3] row_mask:{1 << b:#x} bank_mask:0xf')
        self.pack4(36, [DQ + 4*t for t in range(4)], 13)
        e('v_mov_b32 v5, 0')
        self.read_loc(5, 14)
        self.publish(['buffer_store_dwordx4 v[36:39], v7, s[28:31], s46 offen',
                      's_mov_b32 exec_hi, 0',
                      'buffer_store_dwordx4 v[8:11], v4, s[28:31], s45 offen',
                      's_mov_b32 exec_hi, -1'])
        self.keep_time(62)
        e('s_mov_b32 s48, 0')
        if self.qd:
            e(f's_sleep {self.qd}')
        if self.abl & 10:
            e('s_branch L_qok')
        e('L_qpoll:')
        for k in range(4):
            e(f'buffer_load_dwordx4 {rng(16 + 4*k)}, v4, s[28:31], s50 offen offset:{1024*k} sc1')
        e('s_add_u32 s48, s48, 1')
        e('s_waitcnt vmcnt(0)')
        self.check4([16, 20, 24, 28], 32)
        e('s_nop 0')
        e('s_cbranch_vccz L_qok')
        e(f's_sleep {self.qslp}')
        e(f's_cmp_lt_u32 s48, {SPIN}')
        e('s_cbranch_scc1 L_qpoll')
        e('L_qok:')
        self.unpack_sum4([16, 20, 24, 28])
        e('v_cvt_pk_bf16_f32 v20, v16, v17')
        e('v_cvt_pk_bf16_f32 v21, v18, v19')
        e(f'ds_write_b16 v12, v20 offset:{L_Q}')
        e(f'ds_write_b16_d16_hi v12, v20 offset:{L_Q + 32}')
        e(f'ds_write_b16 v12, v21 offset:{L_Q + 64}')
        e(f'ds_write_b16_d16_hi v12, v21 offset:{L_Q + 96}')
        e('s_waitcnt lgkmcnt(0)')
        self.keep_time(64)
        e('s_barrier')
        self.wait_mid('L_mlwait', 5, 48)
        e('s_waitcnt vmcnt(0)')
        for h in range(2):
            m = [16 + 4*w + 2*h for w in range(4)]
            d = 36 + 4*h
            e(f'v_max3_f32 v{d}, v{m[0]}, v{m[1]}, v{m[2]}')
            e(f'v_max_f32 v{d}, v{d}, v{m[3]}')
            for w in range(4):
                e(f'v_sub_f32 v{44+w}, v{m[w]}, v{d}')
                e(f'v_exp_f32 v{44+w}, v{44+w}')
            e(f'v_mov_b32 v{d+1}, s34')
            e(f'v_mul_f32 v{d+2}, v44, v{m[0]+1}')
            for w in range(1, 4):
                e(f'v_fmac_f32 v{d+2}, v{44+w}, v{m[w]+1}')
            e(f'v_mov_b32 v{d+3}, s34')
        e('s_mov_b64 exec, 1')
        if self.abl & 64:
            e('s_branch L_wrdy_ok')
        self.publish(['buffer_store_dwordx4 v[36:39], v5, s[28:31], s47 offen offset:2048',
                      'buffer_store_dwordx4 v[40:43], v5, s[28:31], s47 offen offset:2064'])
        e('s_mov_b32 s48, 0')
        for _ in range(self.mld):
            e('s_sleep 127')
        e('L_gml:')
        e(f's_sleep {self.slp}')
        for s_ in range(4):
            for h in range(2):
                e(f'buffer_load_dwordx4 {rng(64 + 8*s_ + 4*h)}, v5, s[28:31], s44 offen offset:{2048 + 256*s_ + 16*h} sc1')
        e('s_add_u32 s48, s48, 1')
        e('s_waitcnt vmcnt(0)')
        e('v_mov_b32 v32, 0')
        for i in range(8):
            e(f'v_xor_b32 v33, s34, v{65 + 4*i}')
            e(f'v_xor_b32 v34, s34, v{67 + 4*i}')
            e('v_or3_b32 v32, v32, v33, v34')
        e('v_cmp_ne_u32 vcc, 0, v32')
        e('s_nop 0')
        e('s_cbranch_vccz L_gmlok')
        e(f's_cmp_lt_u32 s48, {SPIN}')
        e('s_cbranch_scc1 L_gml')
        e('L_gmlok:')
        for h in range(2):
            m = [64 + 8*s_ + 4*h for s_ in range(4)]
            e(f'v_max3_f32 v36, v{m[0]}, v{m[1]}, v{m[2]}')
            e(f'v_max_f32 v36, v36, v{m[3]}')
            for s_ in range(4):
                e(f'v_sub_f32 v{44+s_}, v{m[s_]}, v36')
                e(f'v_exp_f32 v{44+s_}, v{44+s_}')
            e('s_nop 0')
            e(f'v_mul_f32 v37, v44, v{m[0]+2}')
            for s_ in range(1, 4):
                e(f'v_fmac_f32 v37, v{44+s_}, v{m[s_]+2}')
            e('v_rcp_f32 v37, v37')
            for w in range(4):
                e(f'v_sub_f32 v{44+w}, v{16 + 4*w + 2*h}, v36')
                e(f'v_exp_f32 v{44+w}, v{44+w}')
            e('s_nop 0')
            for w in range(4):
                e(f'v_mul_f32 v{44+w}, v{44+w}, v37')
            e('s_nop 0')
            for w in range(4):
                e(f'v_readfirstlane_b32 s{50 + 2*w + h}, v{44+w}')
        e('s_cmp_ge_u32 s2, 144')
        e('s_cbranch_scc1 L_wrdy_ok')
        e('s_mov_b64 exec, 0xffff')
        self.proj_role(40, 41)
        e(f's_mul_i32 s40, s40, {self.PS}')
        e(f's_add_u32 s40, s40, {PBASE + 2052}')
        e(f's_mov_b32 s41, {16 * self.PS}')
        e('v_lshrrev_b32 v6, 2, v0')
        e('v_mul_lo_u32 v6, s41, v6')
        e('v_and_b32 v7, 3, v0')
        e('v_lshl_add_u32 v6, v7, 8, v6')
        e('s_mov_b32 s48, 0')
        e('L_wrdy:')
        e(f's_sleep {self.slp}')
        e('buffer_load_dword v8, v6, s[28:31], s40 offen sc1')
        e('s_add_u32 s48, s48, 1')
        e('s_waitcnt vmcnt(0)')
        e('v_cmp_ne_u32 vcc, s34, v8')
        e('s_nop 0')
        e('s_cbranch_vccz L_wrdy_ok')
        e(f's_cmp_lt_u32 s48, {SPIN}')
        e('s_cbranch_scc1 L_wrdy')
        e('L_wrdy_ok:')
        e('s_mov_b64 exec, -1')
        e('v_lshlrev_b32 v5, 3, v0')
        e('s_mov_b32 s48, 0x55555555')
        e('s_setprio 3')
        self.keep_time(66)
        e('s_barrier')
        self.keep_time(68)
        for w in range(4):
            e(f'ds_read_b128 {rng(16 + 4*w)}, v4 offset:{L_O + 1024*w}')
        for w in range(4):
            e(f's_waitcnt lgkmcnt({3-w})')
            for r in range(4):
                if w == 0:
                    e(f'v_mul_f32 v{32+r}, s{50 + (r & 1)}, v{16+r}')
                else:
                    e(f'v_fmac_f32 v{32+r}, s{50 + 2*w + (r & 1)}, v{16 + 4*w + r}')
        e('v_cvt_pk_bf16_f32 v36, v32, v34')
        e('v_cvt_pk_bf16_f32 v37, v33, v35')
        e('v_min_u32 v36, 0xfffffffe, v36')
        e('v_min_u32 v37, 0xfffffffe, v37')
        e('s_nop 0')
        e('v_mov_b32_dpp v38, v36 quad_perm:[1,1,3,3] row_mask:0xf bank_mask:0xf')
        e('v_mov_b32_dpp v39, v37 quad_perm:[1,1,3,3] row_mask:0xf bank_mask:0xf')
        e('s_mov_b32 exec_lo, s48')
        e('s_mov_b32 exec_hi, s48')
        self.publish(['buffer_store_dwordx4 v[36:39], v5, s[28:31], s45 offen'])
        self.keep_time(70)
        e('s_cmp_ge_u32 s2, 144')
        e('s_cbranch_scc1 L_hdone')
        e('s_barrier')
        e('s_barrier')
        e('s_barrier')
        e('L_hdone:')
        if self.stamps:
            e('s_mov_b64 exec, -1')
            for k, sr in enumerate((60, 62, 64, 66, 68, 70)):
                self.flush_time(6 + k, sr)
            self.flush_time(18, 74)
        e('s_endpgm')

    def balancer(self):
        e = self.e
        e('s_getreg_b32 s40, hwreg(HW_REG_XCC_ID, 0, 4)')
        e('v_lshlrev_b32 v1, 2, v0')
        e('v_lshlrev_b32 v2, 4, v0')
        for r in range(4):
            e(f'v_mov_b32 v{4+r}, 0')
        e(f'ds_write_b128 v2, v[4:7] offset:{L_PR}')
        e(f'ds_write_b128 v2, v[4:7] offset:{L_PR + 1024}')
        e('s_waitcnt lgkmcnt(0)')
        e('s_load_dword s34, s[18:19], 0')
        self.srd(28, 18, WSWIN)
        e('s_mul_i32 s46, s40, 4352')
        e(f's_add_u32 s46, s46, {XOFF}')
        e('s_lshl_b32 s40, s40, 12')
        e(f's_add_u32 s40, s40, {BOFF}')
        e('s_lshr_b32 s41, s2, 3')
        e('s_lshl_b32 s41, s41, 2')
        e('v_mov_b32 v3, s41')
        e('s_mov_b32 s48, 0')
        e('s_waitcnt lgkmcnt(0)')
        self.make_tag()
        if self.loc:
            e('s_and_b32 s41, s2, 7')
            e('s_add_u32 s41, s41, s34')
            e('v_mov_b32 v8, s41')
            e('s_mov_b64 exec, 1')
            e('buffer_store_dword v8, v3, s[28:31], s40 offen offset:256')
            e('s_mov_b32 exec_lo, -1')
            e('L_rz:')
            e('buffer_load_dword v9, v1, s[28:31], s40 offen offset:256 sc1')
            e('s_add_u32 s48, s48, 1')
            e('s_waitcnt vmcnt(0)')
            e('v_cmp_ne_u32 vcc, s41, v9')
            e('s_nop 0')
            e('s_cbranch_vccz L_rzok')
            e('s_cmp_lt_u32 s48, 6')
            e('s_cbranch_scc1 L_rz')
            e('s_add_u32 s41, s34, 1')
            e('s_branch L_rzdone')
            e('L_rzok:')
            e('s_mov_b32 s41, s34')
            e('L_rzdone:')
            e('v_mov_b32 v8, s41')
            e(f'ds_write_b32 v4, v8 offset:{L_LOC}')
            e('s_mov_b64 exec, -1')
        if self.hot:
            e('s_lshr_b32 s50, s32, 2')
            e(f's_mul_i32 s50, s50, {self.PS}')
            e(f's_add_u32 s50, s50, {PBASE}')
            e('s_and_b32 s51, s32, 3')
            e('s_lshl_b32 s52, s51, 10')
            e('s_add_u32 s52, s52, 4096')
            e('s_lshl_b32 s51, s51, 9')
            e('s_sub_u32 s51, s51, 1024')
            e('v_mov_b32 v20, s52')
            e('v_mov_b32 v21, s51')
            e('v_cmp_gt_u32 vcc, 8, v0')
            e('s_nop 1')
            e('v_cndmask_b32 v20, v21, v20, vcc')
            e('v_lshl_add_u32 v20, v0, 7, v20')
        if self.xb:
            e(f's_mov_b32 s60, {self.ck0}')
            for j in range(8):
                e(f's_mov_b32 s{72+j}, -1')
                e(f's_mov_b32 s{80+j}, 0')
        e('s_lshl_b32 s34, s34, 16')
        e('s_barrier')
        e('L_bal:')
        e(f's_sleep {self.bslp}')
        e(f'ds_read2st64_b32 v[8:9], v4 offset0:{L_PR // 256} offset1:{L_PR // 256 + 1}')
        e(f'ds_read2st64_b32 v[10:11], v4 offset0:{L_PR // 256 + 2} offset1:{L_PR // 256 + 3}')
        e('s_add_u32 s48, s48, 1')
        e('s_waitcnt lgkmcnt(0)')
        e('v_add3_u32 v8, v8, v9, v10')
        e('v_add_u32 v8, v8, v11')
        e('v_or_b32 v9, s34, v8')
        e('v_readfirstlane_b32 s42, v8')
        e('s_mov_b64 exec, 1')
        e('buffer_store_dword v9, v3, s[28:31], s40 offen')
        e('s_mov_b64 exec, -1')
        e(f's_cmp_ge_u32 s42, {4 * 248}')
        e('s_cbranch_scc1 L_end')
        if self.xb:
            e('s_cmp_ge_u32 s2, 8')
            e('s_cbranch_scc1 L_nosl')
            for j in range(8):
                e(f's_load_dword s{64+j}, s[18:19], {XOFF + 4352*j} glc')
            e('L_nosl:')
        e('v_mov_b32 v10, 0')
        e(f's_mov_b32 exec_hi, {1 if self.xb else 0}')
        e('buffer_load_dword v10, v1, s[28:31], s40 offen sc1')
        if self.hot:
            e('s_mov_b64 exec, 0xfff')
            e('buffer_load_dword v21, v20, s[28:31], s50 offen sc1')
            e('s_mov_b32 exec_lo, -1')
        e('s_mov_b32 exec_hi, -1')
        e('s_waitcnt vmcnt(0)')
        e('v_xor_b32 v10, s34, v10')
        e('v_add_u32 v11, -1, v10')
        e('v_cmp_gt_u32 vcc, 0xffff, v11')
        e('s_nop 1')
        e('v_cndmask_b32 v10, 0, v10, vcc')
        e('s_bcnt1_i32_b32 s43, vcc_lo')
        for k in (1, 2, 4, 8):
            e('s_nop 1')
            e(f'v_add_u32_dpp v10, v10, v10 row_ror:{k} row_mask:0xf bank_mask:0xf')
        e('s_lshl_b32 s43, s43, 2')
        e('v_cvt_f32_u32 v12, s43')
        e('v_readlane_b32 s44, v10, 0')
        e('v_readlane_b32 s45, v10, 16')
        e('v_rcp_f32 v12, v12')
        e('s_add_u32 s44, s44, s45')
        e('v_cvt_f32_u32 v13, s44')
        e('v_mul_f32 v13, v13, v12')
        e('v_cvt_u32_f32 v16, v13')
        e(f'v_add_u32 v12, {self.bias}, v16')
        if self.xb:
            e('v_readlane_b32 s45, v10, 32')
            e('s_cmp_eq_u32 s45, 0')
            e('s_cselect_b32 s45, 32, s45')
            e('s_sub_u32 s45, s45, 32')
            e('v_add_u32 v12, s45, v12')
        e('v_mov_b32 v13, v12')
        e('v_mov_b32 v14, v12')
        e('v_mov_b32 v15, v12')
        e(f'ds_write_b128 v2, v[12:15] offset:{L_PR + 1024}')
        if self.xb:
            e('s_cmp_ge_u32 s2, 8')
            e('s_cbranch_scc1 L_balnext')
            e('v_readfirstlane_b32 s47, v16')
            e('v_or_b32 v17, s34, v16')
            e('s_mov_b64 exec, 1')
            e('s_cmp_lt_u32 s47, s60')
            e('s_cbranch_scc1 L_nopub')
            e('buffer_store_dword v17, v4, s[28:31], s46 offen sc1')
            e(f's_add_u32 s60, s60, {self.ck}')
            e('L_nopub:')
            e('s_mov_b32 s43, 0')
            e('s_mov_b32 s44, 0')
            e('s_waitcnt lgkmcnt(0)')
            for j in range(8):
                e(f's_xor_b32 s{64+j}, s{64+j}, s34')
                e(f's_or_b32 s43, s43, s{64+j}')
                e(f's_sub_i32 s45, s{64+j}, s47')
                e(f's_cmp_lg_u32 s{64+j}, s{72+j}')
                e(f's_cselect_b32 s{80+j}, s45, s{80+j}')
                e(f's_mov_b32 s{72+j}, s{64+j}')
                e(f's_add_i32 s44, s44, s{80+j}')
            e('s_ashr_i32 s44, s44, 3')
            e(f's_add_i32 s44, s44, {self.lagc}')
            e(f's_max_i32 s44, s44, {-self.xmin}')
            e(f's_min_i32 s44, s44, {self.xmax}')
            e('s_add_i32 s44, s44, 32')
            e('s_cmp_lt_u32 s43, 0x10000')
            e('s_cselect_b32 s44, s44, 0')
            e('s_or_b32 s44, s44, s34')
            e('v_mov_b32 v17, s44')
            e('buffer_store_dword v17, v4, s[28:31], s40 offen offset:128')
            e('s_mov_b64 exec, -1')
            e('L_balnext:')
        e(f's_cmp_lt_u32 s48, {SPIN}')
        e('s_cbranch_scc1 L_bal')
        e('s_endpgm')

    def build(self):
        e = self.e
        e('.amdgcn_target "amdgcn-amd-amdhsa--gfx950"')
        e('.text')
        e(f'.globl {NAME}')
        e('.p2align 8')
        e(f'.type {NAME},@function')
        e(f'{NAME}:')
        e('s_cmp_ge_u32 s2, 256')
        e('s_cbranch_scc1 L_end')
        self.keep_time(58)
        if self.clk:
            e('s_memrealtime s[88:89]')
        e('s_load_dwordx16 s[4:19], s[0:1], 0')
        e('v_lshrrev_b32 v1, 6, v0')
        e('v_and_b32 v0, 63, v0')
        e('v_readfirstlane_b32 s3, v1')
        e('s_and_b32 s32, s2, 15')
        e('s_lshl_b32 s32, s32, 2')
        e('s_bfe_u32 s31, s2, 0x20004')
        e('s_or_b32 s32, s32, s31')
        e('s_and_b32 s31, s2, 0xc0')
        e('s_or_b32 s32, s32, s31')
        e('s_cmp_eq_u32 s3, 4')
        e('s_cbranch_scc1 L_helper')
        if self.bal:
            e('s_cmp_eq_u32 s3, 5')
            e('s_cbranch_scc1 L_balancer')
        self.stream()
        e('L_helper:')
        self.helper()
        if self.bal:
            e('L_balancer:')
            self.balancer()
        e('L_end:')
        e('s_endpgm')
        e('L_codeend:')
        nv = 256 if self.stamps else 248
        e('.section .rodata,"a"')
        e('.p2align 6')
        e(f'.amdhsa_kernel {NAME}')
        e(f'  .amdhsa_next_free_vgpr {nv}')
        e('  .amdhsa_next_free_sgpr 96')
        e(f'  .amdhsa_accum_offset {nv}')
        e('  .amdhsa_group_segment_fixed_size 0')
        e('  .amdhsa_kernarg_size 64')
        e('  .amdhsa_user_sgpr_count 2')
        e('  .amdhsa_user_sgpr_kernarg_segment_ptr 1')
        e('  .amdhsa_system_sgpr_workgroup_id_x 1')
        e('.end_amdhsa_kernel')
        errs = check([l.lstrip() if l.lstrip().startswith('.') else l for l in self.o])
        for x in errs:
            print('HAZARD', x, file=sys.stderr)
        txt = HEADER + f'; @launch grid=(256,1,1) block=({384 if self.bal else 320},1,1) lds={LDS_BYTES}\n' + '\n'.join(self.o) + '\n'
        return txt, errs


if __name__ == '__main__':
    kw = {}
    out = sys.argv[1]
    for a in sys.argv[2:]:
        k, v = a.split('=')
        kw[k] = int(v)
    txt, errs = G(**kw).build()
    open(out, 'w').write(txt)
    sys.exit(1 if errs else 0)
```

```python
import sys, struct
from hazard import check

NAME = "standalone__gqa_block_cached__decode_kernel"

HEADER = """; Kernarg layout for this problem (64 bytes, ptrs only, base s[0:1]):
"""

PBASE = 0x100000
POFF = 0x80000
WSWIN = 0x10000000
BOFF = 0x10000
XOFF = 0x20000
STAMP0 = 0x10000000
STAMP1 = 0x10100000

L_WQ = 0x0000
L_WO = 0x5000
L_A = 0x0000
L_Q = 0xD000
L_ML = 0xD200
L_O = 0xD400
L_PR = 0xE400
L_LOC = 0xD240
LDS_BYTES = 0xEC00

def f2u(x):
    return struct.unpack('<I', struct.pack('<f', x))[0]

SCALE = f2u(128 ** -0.5 * 1.4426950408889634)
SPIN = 1 << 20
T_WO, T_TR, T_A, T_P, T_OL, T_AW = 184, 186, 188, 189, 190, 191


class G:
    def __init__(self, D=5, LV=16, stamps=False, D0=None, dbgt=0, kf=1, vf=1, pf=1, enc=-1, prio=3, slp=64, qslp=8, pre=2, dfn=0, d2=16, qd=0, clr=0, abl=0, kfirst=0, wqp=0, mld=0, wod=1, dper=0, il=0, pslp=0, rslp=0, PS=8192, clk=0, tau=1094, toff=200, dh=7, bal=1, bias=10, bslp=1, bstep=4, xm=1, p4=1, osc=0, xb=1, lagc=11, lper=2, xmax=12, loc=1, hot=0, ck=24, ck0=64, him=8, xmin=12, dl=4, encm=1, piece=32768, rd=0, rsp=2, rb=1, sb=0, snap=0, fin=0, df=12):
        self.o = []
        self.D = D
        self.D0 = D0 or D
        self.LV = LV
        self.stamps = stamps
        self.dbgt = dbgt
        FL = ['', ' nt', ' sc1', ' sc1 nt', ' sc0 sc1', ' sc0 sc1 nt', ' sc0', ' sc0 nt']
        self.kf, self.vf = FL[kf], FL[vf]
        self.pf = pf
        self.enc = enc
        self.prio = prio
        self.slp = slp
        self.qslp = qslp
        self.pre = pre
        self.qd = qd
        self.abl = abl
        self.mld = mld
        self.dper = dper
        self.il = il
        self.PS = PS
        self.fin, self.df = fin, df
        self.snap = snap
        self.sb = sb
        self.rb = rb
        self.rd, self.rsp = rd, rsp
        self.piece = piece
        self.encm = encm
        self.him, self.xmin, self.dl = him, xmin, dl
        self.ck, self.ck0 = ck, ck0
        self.hot = hot
        self.loc = loc
        self.xb, self.lagc, self.lper, self.xmax = xb, lagc, lper, xmax
        self.osc = osc
        self.xm, self.p4 = xm, p4
        self.bal, self.bias, self.bslp, self.bstep = bal, bias, bslp, bstep
        self.clk, self.tau, self.toff, self.dh = clk, tau, toff, dh
        self.pslp = pslp
        self.rslp = rslp
        self.wod = wod
        self.kfirst = kfirst
        self.wqp = wqp
        self.clr = clr
        self.dfn = dfn
        self.d2 = d2

    def e(self, s):
        self.o.append(s if s.endswith(':') or s.startswith('.') or s.startswith(';') else '    ' + s)

    def stamp(self, idx, sbase=80):
        if not self.stamps:
            return
        e = self.e
        e('s_memrealtime s[80:81]')
        e(f's_add_u32 s82, s18, {STAMP1 + idx * 8}')
        e('s_addc_u32 s83, s19, 0')
        e('s_lshl_b32 s84, s2, 8')
        e('s_waitcnt lgkmcnt(0)')
        e('v_mov_b32 v250, s84')
        e('v_mov_b32 v252, s80')
        e('v_mov_b32 v253, s81')
        e('s_mov_b64 s[56:57], exec')
        e('s_mov_b64 exec, 1')
        e('global_store_dwordx2 v250, v[252:253], s[82:83]')
        e('s_mov_b64 exec, s[56:57]')

    def keep_time(self, sreg):
        if self.stamps or self.dbgt:
            self.e(f's_memrealtime s[{sreg}:{sreg+1}]')

    def flush_time(self, idx, sreg):
        if not self.stamps:
            return
        e = self.e
        e(f's_add_u32 s82, s18, {STAMP1 + idx * 8}')
        e('s_addc_u32 s83, s19, 0')
        e('s_lshl_b32 s84, s2, 8')
        e('s_waitcnt lgkmcnt(0)')
        e('v_mov_b32 v250, s84')
        e(f'v_mov_b32 v252, s{sreg}')
        e(f'v_mov_b32 v253, s{sreg+1}')
        e('s_mov_b64 s[56:57], exec')
        e('s_mov_b64 exec, 1')
        e('global_store_dwordx2 v250, v[252:253], s[82:83]')
        e('s_mov_b64 exec, s[56:57]')

    def srd(self, d, base, size, add=None):
        e = self.e
        if add is None:
            e(f's_mov_b32 s{d}, s{base}')
            e(f's_mov_b32 s{d+1}, s{base+1}')
        else:
            e(f's_add_u32 s{d}, s{base}, {add}')
            e(f's_addc_u32 s{d+1}, s{base+1}, 0')
        e(f's_mov_b32 s{d+2}, {size:#x}')
        e(f's_mov_b32 s{d+3}, 0x20000')

    def stream(self):
        e, D, LV = self.e, self.D, 16
        vK, vV = 1, 2
        QB = [4, 8]
        DT = [12, 16]
        T, X = 20, 21
        A = 24
        MK = 28
        OA = 32
        M, L, T2, T3 = 36, 37, 38, 39
        S = 40
        RING = 56
        VP = 184
        rng = lambda r: f'v[{r}:{r+3}]'
        kslot = lambda n: RING + 4 * (n % 32)
        vslot = lambda v: VP + 4 * v if v < 16 else RING + 4 * ((v - 16) % 32)
        kpos = lambda n: 16 + n
        vpos = lambda v: v if v < 16 else 128 + v
        st = {'issued': -1, 'landed': -1}
        rpp = self.piece // 16384
        step = lambda n: 0x4000 + (3 * self.piece if self.piece < 0x80000 and (n // 4) % rpp == rpp - 1 else 0)

        def need_landed(x):
            if x > st['landed']:
                e(f's_waitcnt vmcnt({st["issued"] - x})')
                st['landed'] = x

        lab = [0]

        def clk_step():
            e('s_waitcnt lgkmcnt(0)')
            e('s_sub_u32 s86, s88, s85')
            e('s_mul_i32 s86, s86, 10')
            e('s_cmp_gt_u32 s86, s87')
            e('s_cselect_b32 vcc_lo, 1, 0')
            e(f's_add_u32 s87, s87, {self.tau}')
            e('s_memrealtime s[88:89]')

        vPos, vRef, vPA = 22, 23, 3

        def bal_step(i):
            if not self.bal:
                return
            if i % self.bstep == self.bstep - 2:
                e(f'v_add_u32 v{vPos}, {self.bstep}, v{vPos}')
                e(f'ds_write_b32 v{vPA}, v{vPos} offset:{L_PR}')
                e(f'ds_read_b32 v{vRef}, v{vPA} offset:{L_PR + 1024}')
            if i % self.bstep == self.bstep - 1:
                e('s_waitcnt lgkmcnt(0)')
                if self.snap:
                    e(f'v_cmp_gt_i32 vcc, 0, v{vRef}')
                    e(f'v_cmp_lt_i32 s[92:93], {self.him}, v{vRef}')
                    return
                e(f'v_cmp_gt_u32 vcc, v{vRef}, v{vPos}')
                if self.him:
                    e(f'v_sub_u32 v{vRef}, v{vPos}, v{vRef}')
                    e(f'v_add_u32 v{vRef}, {-self.him - 1}, v{vRef}')
                    e(f'v_cmp_gt_u32 s[92:93], 32, v{vRef}')

        def gate(pos, d):
            if (self.clk or self.bal) and st.get('adapt') and d == D:
                lab[0] += 1
                e(f's_cbranch_vccnz L_dg{lab[0]}')
                e(f's_waitcnt vmcnt({D-1})')
                if self.him:
                    e('s_cmp_eq_u32 s92, 0')
                    e(f's_cbranch_scc1 L_dg{lab[0]}')
                    e(f's_waitcnt vmcnt({self.dl-1})')
                e(f'L_dg{lab[0]}:')
                d = st.get('dh', self.dh)
            if self.dper and d == D and pos % self.dper == 0:
                d = D + 1
            if pos >= d:
                e(f's_waitcnt vmcnt({d-1})')
                st['landed'] = max(st['landed'], pos - d)
            st['issued'] = pos

        def kissue(n, d=None):
            gate(kpos(n), d or D)
            e(f'buffer_load_dwordx4 {rng(kslot(n))}, v{vK}, s[20:23], s28 offen offset:{(n % 4) * 1024}{self.kf}')
            if n % 4 == 3:
                e(f's_add_u32 s28, s28, {step(n):#x}')

        def vissue(v, d=None):
            if 16 <= v < 32 and st.get('adapt'):
                bal_step(v)
            gate(vpos(v), d or D)
            e(f'buffer_load_dwordx4 {rng(vslot(v))}, v{vV}, s[24:27], s33 offen offset:{(v % 4) * 1024}{self.vf}')
            if v % 4 == 3:
                e(f's_add_u32 s33, s33, {step(v):#x}')

        def kadds(pair, sreg):
            d = DT[pair & 1]
            i = pair & 3
            e(f'v_add_f32_dpp v{T}, v{d + (i+1) % 4}, v{d + i} row_ror:12 row_mask:0xf bank_mask:0xf')
            e(f'v_add_f32_dpp v{T}, v{d + (i+2) % 4}, v{T} row_ror:8 row_mask:0xf bank_mask:0xf')
            e(f'v_add_f32_dpp v{sreg}, v{d + (i+3) % 4}, v{T} row_ror:4 row_mask:0xf bank_mask:{1 << i:#x}')

        def kmfma(n):
            d = DT[(n >> 1) & 1]
            c = '0' if n % 2 == 0 else rng(d)
            e(f'v_mfma_f32_16x16x32_bf16 {rng(d)}, {rng(kslot(n))}, {rng(QB[n & 1])}, {c}')

        def shift4():
            for i in range(12):
                e(f'v_mov_b32 v{S+i}, v{S+i+4}')

        def vprep(pn, yreg):
            i = pn & 7
            e(f'v_mov_b32_dpp v{X}, v{yreg} row_newbcast:{2*i} row_mask:0xf bank_mask:0x3')
            e(f'v_mov_b32_dpp v{X}, v{yreg} row_newbcast:{2*i+1} row_mask:0xf bank_mask:0xc')
            for r in range(4):
                e(f'v_and_b32 v{A+r}, v{X}, v{MK+r}')

        def vmfma(v, first=False):
            c = '0' if first else rng(OA)
            e(f'v_mfma_f32_16x16x32_bf16 {rng(OA)}, {rng(A)}, {rng(vslot(v))}, {c}')

        e(f'v_lshlrev_b32 v{vV}, 4, v0')
        e('s_and_b32 s31, s32, 3')
        e(f's_mul_i32 s31, s31, {self.piece}')
        e('s_lshl_b32 s33, s3, 12')
        e('s_add_u32 s33, s33, s31')
        e('s_mov_b32 s28, s33')
        e('s_lshr_b32 s31, s32, 2')
        e('s_lshl_b32 s31, s31, 21')
        if self.prio:
            e(f's_setprio {self.prio}')
        e('s_waitcnt lgkmcnt(0)')
        self.keep_time(70)
        if self.clk:
            e('s_mov_b32 s85, s88')
        self.srd(24, 8, 0x200000, add='s31')
        for v in range(min(self.D0, 16)):
            vissue(v, d=self.D0)
        e('s_load_dword s34, s[18:19], 0')
        self.srd(20, 6, 0x200000, add='s31')
        e('v_lshrrev_b32 v3, 4, v0')
        e('v_bfe_u32 v4, v0, 2, 2')
        e('v_and_b32 v5, 3, v0')
        e('v_lshlrev_b32 v3, 6, v3')
        e('v_lshlrev_b32 v4, 8, v4')
        e('v_lshlrev_b32 v5, 4, v5')
        e(f'v_add3_u32 v{vK}, v3, v4, v5')
        e(f's_mov_b32 s30, {SCALE:#x}')
        e('v_lshrrev_b32 v3, 3, v0')
        e('v_xor_b32 v3, v3, v0')
        e('v_and_b32 v3, 1, v3')
        e('v_lshlrev_b32 v3, 4, v3')
        e('v_mov_b32 v4, 0xffff')
        e('v_lshlrev_b32 v3, v3, v4')
        e('v_bfe_u32 v4, v0, 1, 2')
        for r in range(4):
            e(f'v_cmp_eq_u32 vcc, {r}, v4')
            e('s_nop 1')
            e(f'v_cndmask_b32 v{MK+r}, 0, v3, vcc')
        e('v_and_b32 v3, 1, v0')
        e('v_lshlrev_b32 v3, 8, v3')
        e('v_lshrrev_b32 v4, 2, v0')
        e(f'v_lshl_add_u32 v{T2}, v4, 4, v3')
        e('v_and_b32 v3, 2, v0')
        e('v_cmp_ne_u32 vcc, 0, v3')
        for v in range(min(self.D0, 16), 16):
            vissue(v, d=self.D0)
            if v == self.D0:
                self.keep_time(72)
        self.keep_time(76)
        for n in range(32):
            kissue(n, d=self.D0 + max(0, n - (31 - self.pre)))
            if n == 8:
                self.keep_time(78)
        self.keep_time(60)
        e('s_barrier')
        e(f'ds_read_b128 {rng(DT[0])}, v{T2} offset:{L_Q}')
        e('s_mov_b32 s29, 0')
        e(f's_waitcnt lgkmcnt(0) vmcnt({min(self.D0, 30)})')
        self.keep_time(62)
        self.make_tag()
        for r in range(4):
            e(f'v_cndmask_b32 v{QB[1]+r}, 0, v{DT[0]+r}, vcc')
            e(f'v_cndmask_b32 v{QB[0]+r}, v{DT[0]+r}, 0, vcc')
        e('s_nop 1')
        if self.clk:
            e('s_mov_b64 vcc, 0')
            e('s_memrealtime s[88:89]')
            e(f's_mov_b32 s87, {self.toff * 10 + 6 * self.tau}')
            st['adapt'] = True
        if self.bal:
            e('s_mov_b64 vcc, 0')
            e('s_mov_b64 s[92:93], 0')
            e(f'v_mov_b32 v{vPos}, 48')
            e(f'v_lshlrev_b32 v{vPA}, 2, v0')
            e('s_lshl_b32 s31, s3, 8')
            e(f'v_add_u32 v{vPA}, s31, v{vPA}')
            st['adapt'] = True
        self.align()
        e('L_kloop:')
        for p in range(16):
            n = 2 * p
            if self.clk and p % 4 == 3:
                clk_step()
            bal_step(n)
            kmfma(n)
            kissue(n + 32)
            bal_step(n + 1)
            kmfma(n + 1)
            kadds((p - 1) % 16, S + 12 + (((p - 1) % 16) >> 2))
            if p == 0:
                shift4()
            kissue(n + 33)
        e('s_add_u32 s29, s29, 1')
        e('s_cmp_lt_u32 s29, 3')
        e('s_cbranch_scc1 L_kloop')
        nv = 16
        st['issued'], st['landed'] = kpos(127), kpos(127) - max(D + 1, self.dh if (self.clk or self.bal) else 0)
        for p in range(16):
            n = 2 * p
            need_landed(kpos(96 + n + 1))
            kmfma(n)
            kmfma(n + 1)
            e('s_nop 0')
            kadds((p - 1) % 16, S + 12 + (((p - 1) % 16) >> 2))
            if p == 0:
                shift4()
            if p % 3 == 0:
                vissue(nv); nv += 1
            else:
                e('s_nop 1')
        e('s_nop 1')
        kadds(15, S + 15)
        e(f'v_max3_f32 v{M}, v{S}, v{S+1}, v{S+2}')
        e(f'v_max3_f32 v{T}, v{S+3}, v{S+4}, v{S+5}')
        for i in range(6, 14, 4):
            e(f'v_max3_f32 v{M}, v{M}, v{S+i}, v{S+i+1}')
            e(f'v_max3_f32 v{T}, v{T}, v{S+i+2}, v{S+i+3}')
        e(f'v_max3_f32 v{M}, v{M}, v{S+14}, v{S+15}')
        e(f'v_max_f32 v{M}, v{M}, v{T}')

        def allreduce(reg, op):
            for k in (2, 4, 8):
                e('s_nop 1')
                e(f'{op}_dpp v{reg}, v{reg}, v{reg} row_ror:{k} row_mask:0xf bank_mask:0xf')
            for sw in ('v_permlane16_swap_b32', 'v_permlane32_swap_b32'):
                e(f'v_mov_b32 v{T}, v{reg}')
                e('s_nop 1')
                e(f'{sw} v{reg}, v{T}')
                e(f'{op} v{reg}, v{reg}, v{T}')
        allreduce(M, 'v_max_f32')
        e(f'v_mul_f32 v{M}, s30, v{M}')
        vissue(nv); nv += 1
        for i in range(16):
            e(f'v_fma_f32 v{S+i}, v{S+i}, s30, -v{M}')
            e(f'v_exp_f32 v{S+i}, v{S+i}')
            if i == 10:
                vissue(nv); nv += 1
        e(f'v_add_f32 v{L}, v{S}, v{S+1}')
        for i in range(2, 16):
            e(f'v_add_f32 v{L}, v{L}, v{S+i}')
        vissue(nv); nv += 1
        for i in range(16):
            t = T2 if i & 1 else T3
            e(f'v_mov_b32_dpp v{t}, v{S+i} quad_perm:[1,0,3,2] row_mask:0xf bank_mask:0xf')
            e(f'v_cvt_pk_bf16_f32 v{S+i}, v{S+i}, v{t}')
        vissue(nv); nv += 1
        allreduce(L, 'v_add_f32')
        e(f'v_lshlrev_b32 v{T2}, 3, v0')
        e('s_lshl_b32 s31, s3, 4')
        e(f'v_add_u32 v{T2}, s31, v{T2}')
        e('s_mov_b64 exec, 3')
        e(f'ds_write_b64 v{T2}, v[{M}:{L}] offset:{L_ML}')
        e('s_mov_b64 exec, -1')
        self.keep_time(64)
        for pn in range(16):
            vprep(pn, S + (pn >> 3))
            if pn % 3 == 0 and pn < 15:
                vissue(nv); nv += 1
            else:
                e('s_nop 1')
            vmfma(pn, first=(pn == 0))
        assert nv <= 32, nv
        self.tail_setup()
        while nv < 32:
            vissue(nv); nv += 1
        e('s_mov_b32 s29, 0')
        if self.clk:
            e('s_waitcnt lgkmcnt(0)')
            e('s_memrealtime s[88:89]')
            e(f's_mov_b32 s87, {self.toff * 10 + 20 * self.tau}')
        elif not self.bal:
            e('s_mov_b64 vcc, 0')
        self.align()
        e('L_vloop:')
        sw_it, sw_i = divmod(96 - self.dfn, 32)
        for i in range(32):
            p2 = 16 + i
            if self.dfn and i == sw_i:
                e(f's_cmp_ge_u32 s29, {sw_it}')
                e('s_cselect_b32 vcc_lo, 1, 0')
            if self.clk and i % 8 == 7:
                clk_step()
            bal_step(i)
            if self.fin and i >= 32 - self.fin:
                st['dh'] = self.df
                if i == 32 - self.fin or i % self.bstep == self.bstep - 1:
                    e('s_cmp_eq_u32 s29, 2')
                    e('s_cselect_b32 vcc_lo, 1, vcc_lo')
            vprep(p2, S + (p2 >> 3))
            if self.dfn:
                e(f's_cbranch_vccnz L_g{i}')
                e(f's_waitcnt vmcnt({D-1})')
                e(f'L_g{i}:')
                vissue(32 + i, d=self.d2)
            else:
                vissue(32 + i)
            vmfma(p2)
        shift4()
        e('s_add_u32 s29, s29, 1')
        e('s_cmp_lt_u32 s29, 3')
        e('s_cbranch_scc1 L_vloop')
        self.keep_time(66)
        for i in range(8):
            e('s_mov_b32 m0, s46')
            e('s_add_u32 s46, s46, 1024')
            e(f'buffer_load_dwordx4 v{T_WO + ((i >> 1) & 1)}, s[36:39], s45 offen nt lds')
            e('s_add_u32 s45, s45, 9216')
        for i in range(LV):
            p2 = 16 + i
            vprep(p2, S + (p2 >> 3))
            if LV - 1 - i < (self.d2 if self.dfn else max(D + 1, self.df if self.fin else 0, self.dh if (self.clk or self.bal) else 0)):
                e(f's_waitcnt vmcnt({LV - 1 - i + 8})')
                e('s_nop 0')
            else:
                e('s_nop 1')
            vmfma(p2)
        e('s_cmp_ge_u32 s2, 144')
        e('s_nop 6')
        e(f'ds_write_b128 v{T_OL}, {rng(OA)} offset:{L_O}')
        e('s_waitcnt lgkmcnt(0)')
        self.keep_time(68)
        e('s_barrier')
        if self.enc >= 1000:
            e('s_cselect_b32 s84, 1, 0')
            e('s_waitcnt lgkmcnt(0)')
            e('v_mov_b32 v12, s58')
            e(f'v_mov_b32 v13, s{self.enc % 1000}')
            e('s_lshl_b32 s85, s2, 5')
            e('s_lshl_b32 s86, s3, 3')
            e('s_add_u32 s85, s85, s86')
            e('s_add_u32 s85, s85, 0x40000')
            e('v_mov_b32 v14, 0')
            e('s_mov_b64 exec, 1')
            e('buffer_store_dwordx2 v[12:13], v14, s[40:43], s85 offen sc1')
            e('s_mov_b64 exec, -1')
            e('s_cmp_eq_u32 s84, 1')
        e('s_cbranch_scc1 L_notproj')
        BW, AO, PO = 56, 88, 120
        e('s_barrier')
        for j in range(2):
            e(f'buffer_load_dwordx4 {rng(PO + 4*j)}, v{vV}, s[40:43], s44 offen offset:{1024*j} sc1')
        e('s_mov_b32 s48, 0')
        e('s_waitcnt vmcnt(2)')
        e('s_barrier')
        self.keep_time(50)
        for kk in range(8):
            gp = kk >> 1
            for hf in range(2):
                row = 64 * (kk & 1) + 8 * hf + 4 * (gp & 1)
                r = BW + kk * 4 + 2 * hf
                e(f'ds_read_b64_tr_b16 v[{r}:{r+1}], v{T_TR + (gp >> 1)} offset:{L_WO + row * 128}')
        e('s_branch L_ochk')
        self.align()
        e('L_opoll:')
        if self.pslp:
            e(f's_sleep {self.pslp}')
        for j in range(2):
            e(f'buffer_load_dwordx4 {rng(PO + 4*j)}, v{vV}, s[40:43], s44 offen offset:{1024*j} sc1')
        e('L_ochk:')
        e('s_add_u32 s48, s48, 1')
        e(f's_cmp_ge_u32 s48, {SPIN}')
        e('s_cbranch_scc1 L_ook')
        e('s_waitcnt vmcnt(1)')
        e(f'v_max3_u32 v20, v{PO}, v{PO+1}, v{PO+2}')
        e('s_waitcnt vmcnt(0)')
        e(f'v_max3_u32 v21, v{PO+4}, v{PO+5}, v{PO+6}')
        e(f'v_max3_u32 v20, v20, v{PO+3}, v{PO+7}')
        e('v_max_u32 v20, v20, v21')
        e('v_cmp_eq_u32 vcc, -1, v20')
        e('s_and_b64 exec, exec, vcc')
        e('s_cbranch_scc1 L_opoll')
        e('L_ook:')
        e('s_mov_b64 exec, -1')
        e(f'ds_write_b128 v{T_AW}, {rng(PO)} offset:{L_A}')
        e(f'ds_write_b128 v{T_AW}, {rng(PO+4)} offset:{L_A + 2*528}')
        e('s_waitcnt lgkmcnt(0)')
        e('s_barrier')
        self.keep_time(52)
        for kk in range(8):
            e(f'ds_read_b128 {rng(AO + 4*kk)}, v{T_A} offset:{L_A + 64*kk}')
        for kk in range(8):
            c = '0' if kk == 0 else 'v[12:15]'
            e(f's_waitcnt lgkmcnt({7-kk})')
            e(f'v_mfma_f32_16x16x32_bf16 v[12:15], {rng(AO + 4*kk)}, {rng(BW + 4*kk)}, {c}')
        e('v_mov_b32 v17, s34')
        e('v_mov_b32 v19, s34')
        e('s_mov_b32 s48, 0x55555555')
        e('s_nop 4')
        e('v_add_f32 v12, v12, v13')
        e('v_add_f32 v14, v14, v15')
        e('v_add_f32 v16, v12, v14')
        if self.abl & 256:
            e('s_cmp_lg_u32 s3, 0')
            e('s_cbranch_scc1 L_end')
        if self.p4:
            e('s_nop 1')
            e('v_mov_b32_dpp v18, v16 quad_perm:[1,1,3,3] row_mask:0xf bank_mask:0xf')
            e('s_mov_b32 exec_lo, s48')
            e('s_mov_b32 exec_hi, s48')
            e(f'buffer_store_dwordx4 v[16:19], v{T_P}, s[40:43], s47 offen sc1')
        else:
            e(f'buffer_store_dwordx2 v[16:17], v{T_P}, s[40:43], s47 offen sc1')
        self.keep_time(54)
        if self.stamps:
            e('s_branch L_sflush')
        e('s_endpgm')
        e('L_notproj:')
        e('s_cmp_ge_u32 s2, 180')
        e('s_cbranch_scc1 ' + ('L_sflush' if self.stamps else 'L_end'))
        if self.rb:
            e('s_barrier')
        if self.abl & 256:
            e('s_cmp_lg_u32 s3, 0')
            e('s_cbranch_scc1 L_end')
        self.keep_time(50)
        e('s_mov_b32 s48, 0')
        e(f's_mov_b32 s38, {4 * 576 * 2}')
        e('s_and_b32 s45, s35, 3')
        e('s_mul_i32 s45, s45, 1152')
        e('s_lshr_b32 s31, s35, 2')
        e('s_lshl_b32 s31, s31, 7')
        e('s_add_u32 s45, s45, s31')
        e('s_lshl_b32 s31, s3, 5')
        e('s_add_u32 s45, s45, s31')
        if self.rd:
            R = self.rd
            base = lambda k: 56 + 8 * (k % R)

            def rissue(k):
                r = base(k)
                e(f'buffer_load_dwordx4 v[{r}:{r+3}], v{T_A}, s[40:43], s44 offen sc1')
                e(f'buffer_load_dwordx4 v[{r+4}:{r+7}], v{T_A}, s[40:43], s47 offen sc1')
            for k in range(R - 1):
                rissue(k)
            self.align()
            e('L_ppoll:')
            for k in range(R):
                rissue(k + R - 1)
                if self.rsp:
                    e(f's_sleep {self.rsp}')
                r = base(k)
                e(f's_waitcnt vmcnt({2 * (R - 1)})')
                e(f'v_xor_b32 v20, s34, v{r+1}')
                e(f'v_xor_b32 v21, s34, v{r+3}')
                e(f'v_xor_b32 v22, s34, v{r+5}')
                e(f'v_xor_b32 v23, s34, v{r+7}')
                e(f'v_add_f32 v12, v{r}, v{r+4}')
                e('v_or3_b32 v20, v20, v21, v22')
                e(f'v_add_f32 v14, v{r+2}, v{r+6}')
                e('v_or_b32 v20, v20, v23')
                e('v_cmp_ne_u32 vcc, 0, v20')
                e('s_cbranch_vccz L_pok')
            e('s_add_u32 s48, s48, 1')
            e(f's_cmp_lt_u32 s48, {SPIN}')
            e('s_cbranch_scc1 L_ppoll')
            e('L_pok:')
            self.keep_time(52)
        else:
            self.align()
            e('L_ppoll:')
            if self.rslp:
                e(f's_sleep {self.rslp}')
            e(f'buffer_load_dwordx4 v[12:15], v{T_A}, s[40:43], s44 offen sc1')
            e(f'buffer_load_dwordx4 v[16:19], v{T_A}, s[40:43], s47 offen sc1')
            e('s_add_u32 s48, s48, 1')
            e(f's_cmp_ge_u32 s48, {SPIN}')
            e('s_cbranch_scc1 L_pok')
            e('s_waitcnt vmcnt(1)')
            e('v_xor_b32 v20, s34, v13')
            e('v_xor_b32 v21, s34, v15')
            e('s_waitcnt vmcnt(0)')
            e('v_xor_b32 v22, s34, v17')
            e('v_xor_b32 v23, s34, v19')
            e('v_or3_b32 v20, v20, v21, v22')
            e('v_or_b32 v20, v20, v23')
            e('v_cmp_ne_u32 vcc, 0, v20')
            e('s_and_b64 exec, exec, vcc')
            e('s_cbranch_scc1 L_ppoll')
            e('L_pok:')
            e('s_mov_b64 exec, -1')
            e('s_waitcnt vmcnt(0)')
            self.keep_time(52)
            e('v_add_f32 v12, v12, v16')
            e('v_add_f32 v14, v14, v18')
        e('s_nop 0')
        e('v_add_f32_dpp v12, v12, v12 row_ror:8 row_mask:0xf bank_mask:0xf')
        e('v_add_f32_dpp v14, v14, v14 row_ror:8 row_mask:0xf bank_mask:0xf')
        e('s_nop 1')
        e('v_permlane16_swap_b32 v12, v14')
        e('v_add_f32 v12, v12, v14')
        e('v_mov_b32 v14, v12')
        e('s_nop 1')
        e('v_permlane32_swap_b32 v12, v14')
        e('v_add_f32 v12, v12, v14')
        e('v_cvt_pk_bf16_f32 v12, v12, v12')
        e('s_mov_b64 exec, 0x00ff00ff')
        e(f'buffer_store_short v12, v{T_P}, s[36:39], s45 offen' + ['', ' sc1', ' nt', ' sc0 sc1'][self.osc])
        self.keep_time(54)
        e('s_add_u32 s48, s2, s3')
        e('s_cmp_lg_u32 s48, 144')
        e('s_cbranch_scc1 ' + ('L_sflush' if self.stamps else 'L_end'))
        e('v_mov_b32 v4, s34')
        e('v_mov_b32 v6, 0')
        e('s_mov_b64 exec, 1')
        e('buffer_store_dword v4, v6, s[40:43], 0 offen sc1')
        if self.dbgt:
            e('s_waitcnt lgkmcnt(0)')
            e('s_mov_b32 s80, 8000')
            if self.enc >= 1000:
                e('s_mov_b64 exec, -1')
                e('s_sleep 64')
                e('v_lshlrev_b32 v14, 7, v0')
                e('s_mov_b32 s85, 0x40000')
                for i in range(4):
                    e(f'buffer_load_dwordx2 v[{20+2*i}:{21+2*i}], v14, s[40:43], s85 offen offset:{32*i} sc1')
                e('s_waitcnt vmcnt(0)')
                op = 'v_max_u32' if self.enc < 2000 else 'v_min_u32'
                for i in range(1, 4):
                    e(f'v_min_u32 v20, v20, v{20+2*i}')
                    e(f'{op} v21, v21, v{21+2*i}')
                e('s_nop 1')
                e('v_readlane_b32 s81, v21, 0')
                e('v_readlane_b32 s85, v20, 0')
                for l in range(1, 64):
                    e(f'v_readlane_b32 s86, v21, {l}')
                    e(f'v_readlane_b32 s87, v20, {l}')
                    e(('s_max_u32' if self.enc < 2000 else 's_min_u32') + ' s81, s81, s86')
                    e('s_min_u32 s85, s85, s87')
                e('s_sub_u32 s81, s81, s85')
                e(f's_mul_i32 s81, s81, {self.encm}')
                e('s_add_u32 s80, s80, s81')
            elif self.enc > 0:
                e(f's_sub_u32 s81, s{self.enc}, s58')
                e(f's_mul_i32 s81, s81, {self.encm}')
                e('s_add_u32 s80, s80, s81')
            e('L_enc:')
            e('s_memrealtime s[82:83]')
            e('s_waitcnt lgkmcnt(0)')
            e('s_sub_u32 s82, s82, s58')
            e('s_cmp_lt_u32 s82, s80')
            e('s_cbranch_scc1 L_enc')
        if self.stamps:
            e('L_sflush:')
            e('s_mov_b64 exec, -1')
            e('s_cmp_lg_u32 s3, 0')
            e('s_cbranch_scc1 L_end')
            for k, sr in enumerate((58, 60, 62, 64, 66, 68)):
                self.flush_time(k, sr)
            for k, sr in ((12, 50), (13, 52), (14, 54), (16, 70), (17, 72), (15, 76), (19, 78)):
                self.flush_time(k, sr)
        e('s_endpgm')

    def proj_role(self, shkv, stg):
        e = self.e
        if self.xm:
            e(f's_lshr_b32 s{stg}, s2, 3')
            e(f's_and_b32 s{shkv}, s2, 7')
            e(f's_cmp_ge_u32 s{stg}, 9')
            e(f's_cselect_b32 s95, 8, 0')
            e(f's_add_u32 s{shkv}, s{shkv}, s95')
            e(f's_cmp_ge_u32 s{stg}, 9')
            e(f's_cselect_b32 s95, 9, 0')
            e(f's_sub_u32 s{stg}, s{stg}, s95')
        else:
            e(f's_mul_i32 s{shkv}, s2, 57')
            e(f's_lshr_b32 s{shkv}, s{shkv}, 9')
            e(f's_mul_i32 s{stg}, s{shkv}, 9')
            e(f's_sub_u32 s{stg}, s2, s{stg}')

    def tail_setup(self):
        e = self.e
        t0, t1, t2, t3 = 200, 201, 202, 203
        self.srd(40, 18, WSWIN)
        e(f'v_lshlrev_b32 v{T_OL}, 4, v0')
        e('s_lshl_b32 s31, s3, 10')
        e(f'v_add_u32 v{T_OL}, s31, v{T_OL}')
        e('s_lshl_b32 s46, s3, 13')
        e(f's_add_u32 s46, s46, {L_WO}')
        e('s_cmp_ge_u32 s2, 144')
        e('s_cbranch_scc1 L_ts_red')
        self.proj_role(35, 31)
        e('s_mul_i32 s47, s35, 9')
        e('s_add_u32 s47, s47, s31')
        self.srd(36, 12, 0 if self.abl & 4 else 4096 * 576 * 2)
        e('s_lshl_b32 s45, s35, 2')
        e('s_add_u32 s45, s45, s3')
        e(f's_mul_i32 s45, s45, {64 * 1152}')
        e('s_lshl_b32 s31, s31, 7')
        e('s_add_u32 s45, s45, s31')
        e(f'v_lshrrev_b32 v{t0}, 3, v0')
        e(f'v_mul_u32_u24 v{t1}, 1152, v{t0}')
        e(f'v_and_b32 v{t0}, 2, v{t0}')
        e(f'v_and_b32 v{t2}, 7, v0')
        e(f'v_xor_b32 v{t2}, v{t2}, v{t0}')
        e(f'v_lshl_add_u32 v{T_WO}, v{t2}, 4, v{t1}')
        e(f'v_xor_b32 v{t2}, 4, v{t2}')
        e(f'v_lshl_add_u32 v{T_WO+1}, v{t2}, 4, v{t1}')
        e(f'v_bfe_u32 v{t0}, v0, 3, 1')
        e(f'v_bfe_u32 v{t1}, v0, 2, 1')
        e(f'v_lshl_add_u32 v{t2}, v{t1}, 1, v{t0}')
        e(f'v_and_b32 v{t3}, 0x30, v0')
        e(f'v_lshl_add_u32 v{t3}, v{t0}, 7, v{t3}')
        e(f'v_add_u32 v{T_TR}, v{t3}, v{t2}')
        e(f'v_xor_b32 v{T_TR+1}, 1, v{T_TR}')
        e(f'v_bfe_u32 v{t0}, v0, 4, 1')
        e(f'v_lshl_add_u32 v{t0}, v{t0}, 1, v{t1}')
        e(f'v_xor_b32 v{t0}, s3, v{t0}')
        e(f'v_lshlrev_b32 v{t0}, 5, v{t0}')
        e(f'v_and_b32 v{t1}, 3, v0')
        e(f'v_lshl_add_u32 v{t0}, v{t1}, 3, v{t0}')
        e(f'v_lshl_add_u32 v{T_TR}, v{T_TR}, 7, v{t0}')
        e(f'v_lshl_add_u32 v{T_TR+1}, v{T_TR+1}, 7, v{t0}')
        e('s_lshl_b32 s44, s3, 4')
        e('s_add_u32 s44, s44, s35')
        e(f's_mul_i32 s44, s44, {self.PS}')
        e(f's_add_u32 s44, s44, {PBASE}')
        e(f'v_lshrrev_b32 v{t0}, 5, v0')
        e(f'v_lshl_add_u32 v{t0}, s3, 2, v{t0}')
        e(f'v_mul_u32_u24 v{t0}, 528, v{t0}')
        e(f'v_and_b32 v{t1}, 31, v0')
        e(f'v_lshl_add_u32 v{T_AW}, v{t1}, 4, v{t0}')
        e(f'v_and_b32 v{t0}, 15, v0')
        e(f'v_mul_u32_u24 v{t0}, 528, v{t0}')
        e(f'v_and_b32 v{t1}, 0x30, v0')
        e(f'v_add_u32 v{T_A}, v{t0}, v{t1}')
        e(f'v_and_b32 v{t0}, 15, v0')
        e(f'v_lshlrev_b32 v{t0}, 3, v{t0}')
        e(f'v_lshl_add_u32 v{T_P}, v{t1}, 5, v{t0}')
        e('s_lshl_b32 s47, s47, 11')
        e('s_lshl_b32 s31, s3, 7')
        e('s_add_u32 s47, s47, s31')
        e(f's_add_u32 s47, s47, {POFF}')
        e('s_branch L_ts_done')
        e('L_ts_red:')
        self.srd(36, 14, 0)
        e('s_mov_b32 s45, 0')
        e(f'v_mov_b32 v{T_WO}, 0')
        e(f'v_mov_b32 v{T_WO+1}, 0')
        e(f'v_mov_b32 v{T_TR}, 0')
        e(f'v_mov_b32 v{T_TR+1}, 0')
        e('s_sub_u32 s35, s2, 144')
        e(f'v_lshrrev_b32 v{t0}, 3, v0')
        e(f'v_mul_u32_u24 v{t0}, 18432, v{t0}')
        e(f'v_and_b32 v{t1}, 7, v0')
        e(f'v_lshl_add_u32 v{T_A}, v{t1}, 4, v{t0}')
        e('s_lshl_b32 s44, s35, 9')
        e('s_lshl_b32 s31, s3, 7')
        e('s_add_u32 s44, s44, s31')
        e(f's_add_u32 s44, s44, {POFF}')
        e(f's_add_u32 s47, s44, {8 * 18432}')
        e(f'v_lshrrev_b32 v{t0}, 4, v0')
        e(f'v_lshl_add_u32 v{t0}, v{t1}, 1, v{t0}')
        e(f'v_lshlrev_b32 v{T_P}, 1, v{t0}')
        e('L_ts_done:')

    def align(self):
        self.e('.p2align 3')

    def make_tag(self):
        self.e('s_add_u32 s34, s34, 0x7f4a7c15')

    def pack4(self, dst, z, vtag):
        e = self.e
        e(f'v_perm_b32 v{dst}, v{z[0]}, v{z[1]}, s90')
        e(f'v_perm_b32 v{dst+1}, v{z[1]}, v{vtag}, s91')
        e(f'v_perm_b32 v{dst+2}, v{z[2]}, v{z[3]}, s90')
        e(f'v_perm_b32 v{dst+3}, v{z[3]}, v{vtag}, s92')

    def pack_consts(self):
        e = self.e
        e('s_mov_b32 s90, 0x07060501')
        e('s_mov_b32 s91, 0x07060100')
        e('s_mov_b32 s92, 0x07060302')
        e('s_mov_b32 s93, 0x05040100')
        e('s_mov_b32 s94, 0x0706000c')

    def check4(self, pieces, tmp):
        e = self.e
        for i, p in enumerate(pieces):
            e(f'v_perm_b32 v{tmp+i}, v{p+3}, v{p+1}, s93')
        for i, p in enumerate(pieces):
            e(f'v_xor_b32 v{tmp+i}, s34, v{tmp+i}')
        e(f'v_or3_b32 v{tmp}, v{tmp}, v{tmp+1}, v{tmp+2}')
        e(f'v_or_b32 v{tmp}, v{tmp}, v{tmp+3}')
        e(f'v_cmp_ne_u32 vcc, 0, v{tmp}')

    def unpack_sum4(self, pieces):
        e = self.e
        for p in pieces:
            e(f'v_perm_b32 v{p+1}, v{p+1}, v{p}, s94')
            e(f'v_perm_b32 v{p+3}, v{p+3}, v{p+2}, s94')
            e(f'v_and_b32 v{p}, 0xffffff00, v{p}')
            e(f'v_and_b32 v{p+2}, 0xffffff00, v{p+2}')
        p0, p1, p2, p3 = pieces
        for t in range(4):
            e(f'v_add_f32 v{p0+t}, v{p0+t}, v{p1+t}')
            e(f'v_add_f32 v{p2+t}, v{p2+t}, v{p3+t}')
        for t in range(4):
            e(f'v_add_f32 v{p0+t}, v{p0+t}, v{p2+t}')

    def publish(self, stores):
        e = self.e
        self.npub = getattr(self, 'npub', 0) + 1
        n = self.npub
        if self.loc:
            e('s_cmp_lg_u32 s49, 0')
            e(f's_cbranch_scc1 L_pubL{n}')
        for st in stores:
            e(st + (' sc1' if st.startswith('buffer_store') else ''))
        if self.loc:
            e(f's_branch L_pubE{n}')
            e(f'L_pubL{n}:')
            for st in stores:
                e(st)
            e(f'L_pubE{n}:')

    def read_loc(self, vz, vt):
        e = self.e
        if not self.loc:
            return
        e('s_mov_b32 s48, 0')
        e('L_locw:')
        e(f'ds_read_b32 v{vt}, v{vz} offset:{L_LOC}')
        e('s_add_u32 s48, s48, 1')
        e('s_waitcnt lgkmcnt(0)')
        e(f'v_readfirstlane_b32 s49, v{vt}')
        e('s_sub_u32 s49, s49, s34')
        e('s_cmp_lt_u32 s49, 2')
        e('s_cbranch_scc1 L_locd')
        e('s_sleep 2')
        e(f's_cmp_lt_u32 s48, {SPIN}')
        e('s_cbranch_scc1 L_locw')
        e('L_locd:')
        e('s_cmp_eq_u32 s49, 0')
        e('s_cselect_b32 s49, 1, 0')

    def wait_mid(self, lab, vzero, scnt):
        e = self.e
        e(f's_mov_b32 s{scnt}, 0')
        e(f'{lab}:')
        e(f's_sleep {self.slp}')
        for w in range(4):
            e(f'ds_read_b128 v[{16 + 4*w}:{19 + 4*w}], v{vzero} offset:{L_ML + 16*w}')
        e(f's_add_u32 s{scnt}, s{scnt}, 1')
        e('s_waitcnt lgkmcnt(0)')
        self.maxu(32, range(16, 32))
        e('v_cmp_eq_u32 vcc, -1, v32')
        e('s_nop 0')
        e(f's_cbranch_vccz {lab}_ok')
        e(f's_cmp_lt_u32 s{scnt}, {SPIN}')
        e(f's_cbranch_scc1 {lab}')
        e(f'{lab}_ok:')

    def maxu(self, dst, regs):
        e = self.e
        regs = list(regs)
        e(f'v_max3_u32 v{dst}, v{regs[0]}, v{regs[1]}, v{regs[2]}')
        regs = regs[3:]
        while len(regs) >= 2:
            e(f'v_max3_u32 v{dst}, v{dst}, v{regs[0]}, v{regs[1]}')
            regs = regs[2:]
        if regs:
            e(f'v_max_u32 v{dst}, v{dst}, v{regs[0]}')

    def helper(self):
        e = self.e
        rng = lambda r: f'v[{r}:{r+3}]'
        XA = 16
        WB = 64
        DQ = 40
        e('s_and_b32 s40, s32, 63')
        e('s_lshr_b32 s35, s32, 6')
        e('v_lshrrev_b32 v1, 3, v0')
        e('v_lshlrev_b32 v1, 13, v1')
        e('v_and_b32 v2, 7, v0')
        e('v_lshl_add_u32 v1, v2, 4, v1')
        e(f's_mul_i32 s42, s35, {144 * 8192}')
        e('s_lshl_b32 s41, s40, 7')
        e('s_add_u32 s42, s42, s41')
        e('v_and_b32 v2, 3, v0')
        e('v_mul_u32_u24 v2, 1152, v2')
        e('v_lshrrev_b32 v3, 4, v0')
        e('v_lshl_add_u32 v7, v3, 3, v2')
        e('v_lshl_add_u32 v2, v3, 4, v2')
        e('s_mul_i32 s43, s35, 288')
        e('s_waitcnt lgkmcnt(0)')
        e('s_load_dword s34, s[18:19], 0')
        self.srd(24, 4, 4 * 576 * 2)
        for kk in range(4):
            e(f'buffer_load_dwordx4 {rng(XA + 4*kk)}, v2, s[24:27], s43 offen offset:{kk*64}')
        e(f'buffer_load_dwordx2 v[{XA+16}:{XA+17}], v7, s[24:27], s43 offen offset:256')
        self.srd(20, 10, 576 * 4096 * 2)
        for i in range(18):
            e(f's_mov_b32 m0, {L_WQ + 1024 * i}')
            if i:
                e('s_add_u32 s42, s42, 0x10000')
            else:
                e('s_nop 0')
            if self.wqp and i >= self.wqp:
                e(f's_waitcnt vmcnt({self.wqp - 1})')
            if not self.abl & 1:
                e('buffer_load_dwordx4 v1, s[20:23], s42 offen nt lds')
        if self.pf:
            e('s_getpc_b64 s[54:55]')
            e('L_pc:')
            e(f's_sub_u32 s54, s54, L_pc-{NAME}')
            e('s_subb_u32 s55, s55, 0')
            e('v_lshlrev_b32 v14, 7, v0')
            e('global_load_dword v60, v14, s[54:55]')
            e('v_add_u32 v14, 0x2000, v14')
            e(f'v_cmp_gt_u32 vcc, L_codeend-{NAME}, v14')
            e('s_and_saveexec_b64 s[56:57], vcc')
            e('global_load_dword v61, v14, s[54:55]')
            e('s_mov_b64 exec, s[56:57]')
        self.srd(28, 18, WSWIN)
        for r in range(4):
            e(f'v_mov_b32 v{8+r}, -1')
        e('v_lshlrev_b32 v4, 4, v0')
        e('s_lshr_b32 s44, s32, 2')
        e(f's_mul_i32 s44, s44, {self.PS}')
        e(f's_add_u32 s44, s44, {PBASE}')
        e('s_and_b32 s43, s32, 3')
        e('s_lshl_b32 s45, s43, 9')
        e('s_add_u32 s45, s45, s44')
        e('s_lshl_b32 s47, s43, 8')
        e('s_add_u32 s47, s47, s44')
        e('s_mov_b64 exec, 15')
        e(f'ds_write_b128 v4, v[8:11] offset:{L_ML}')
        e('s_mov_b64 exec, -1')
        self.pack_consts()
        e('v_bfe_u32 v5, v0, 2, 2')
        e('v_lshlrev_b32 v5, 7, v5')
        e('v_and_b32 v6, 3, v0')
        e('v_lshl_add_u32 v5, v6, 3, v5')
        e('v_lshl_add_u32 v6, v3, 9, v5')
        e('v_lshl_add_u32 v5, v3, 10, v5')
        e(f's_mov_b32 s41, {16 * self.PS}')
        e('v_mul_lo_u32 v7, s41, v3')
        e('v_and_b32 v12, 15, v0')
        e('v_lshl_add_u32 v7, v12, 4, v7')
        e('s_lshr_b32 s46, s40, 2')
        e(f's_mul_i32 s46, s46, {self.PS}')
        e('s_lshl_b32 s41, s35, 10')
        e('s_add_u32 s46, s46, s41')
        e('s_and_b32 s41, s40, 3')
        e('s_lshl_b32 s41, s41, 8')
        e('s_add_u32 s46, s46, s41')
        e(f's_add_u32 s46, s46, {PBASE + 4096}')
        e('s_add_u32 s50, s44, 4096')
        e('v_and_b32 v12, 15, v0')
        e('v_lshlrev_b32 v12, 1, v12')
        e('v_lshl_add_u32 v12, v3, 7, v12')
        e('s_waitcnt lgkmcnt(0)')
        self.make_tag()
        e('v_mov_b32 v13, s34')
        self.keep_time(74)
        e('s_waitcnt vmcnt(0)')
        self.keep_time(60)
        for t in range(4):
            for kk in range(4):
                for hf in range(2):
                    r = WB + 20*t + 4*kk + 2*hf
                    e(f'ds_read_b64_tr_b16 v[{r}:{r+1}], v5 offset:{L_WQ + (32*kk + 4*hf)*128 + 32*t}')
            r = WB + 20*t + 16
            e(f'ds_read_b64_tr_b16 v[{r}:{r+1}], v6 offset:{L_WQ + 128*128 + 32*t}')
        for t in range(4):
            e(f's_waitcnt lgkmcnt({min(15, 9*(3-t))})')
            for kk in range(4):
                c = '0' if kk == 0 else rng(DQ + 4*t)
                e(f'v_mfma_f32_16x16x32_bf16 {rng(DQ + 4*t)}, {rng(XA + 4*kk)}, {rng(WB + 20*t + 4*kk)}, {c}')
        e('s_nop 3')
        for t in range(4):
            r = WB + 20*t + 16
            e(f'v_mfma_f32_16x16x16_bf16 {rng(DQ + 4*t)}, v[{XA+16}:{XA+17}], v[{r}:{r+1}], {rng(DQ + 4*t)}')
        e('s_nop 4')
        for t in range(4):
            for b in range(1, 4):
                e(f'v_mov_b32_dpp v{DQ+4*t}, v{DQ+4*t+b} quad_perm:[0,1,2,3] row_mask:{1 << b:#x} bank_mask:0xf')
        self.pack4(36, [DQ + 4*t for t in range(4)], 13)
        e('v_mov_b32 v5, 0')
        self.read_loc(5, 14)
        self.publish(['buffer_store_dwordx4 v[36:39], v7, s[28:31], s46 offen',
                      's_mov_b32 exec_hi, 0',
                      'buffer_store_dwordx4 v[8:11], v4, s[28:31], s45 offen',
                      's_mov_b32 exec_hi, -1'])
        self.keep_time(62)
        e('s_mov_b32 s48, 0')
        if self.qd:
            e(f's_sleep {self.qd}')
        if self.abl & 10:
            e('s_branch L_qok')
        e('L_qpoll:')
        for k in range(4):
            e(f'buffer_load_dwordx4 {rng(16 + 4*k)}, v4, s[28:31], s50 offen offset:{1024*k} sc1')
        e('s_add_u32 s48, s48, 1')
        e('s_waitcnt vmcnt(0)')
        self.check4([16, 20, 24, 28], 32)
        e('s_nop 0')
        e('s_cbranch_vccz L_qok')
        e(f's_sleep {self.qslp}')
        e(f's_cmp_lt_u32 s48, {SPIN}')
        e('s_cbranch_scc1 L_qpoll')
        e('L_qok:')
        self.unpack_sum4([16, 20, 24, 28])
        e('v_cvt_pk_bf16_f32 v20, v16, v17')
        e('v_cvt_pk_bf16_f32 v21, v18, v19')
        e(f'ds_write_b16 v12, v20 offset:{L_Q}')
        e(f'ds_write_b16_d16_hi v12, v20 offset:{L_Q + 32}')
        e(f'ds_write_b16 v12, v21 offset:{L_Q + 64}')
        e(f'ds_write_b16_d16_hi v12, v21 offset:{L_Q + 96}')
        e('s_waitcnt lgkmcnt(0)')
        self.keep_time(64)
        e('s_barrier')
        self.wait_mid('L_mlwait', 5, 48)
        e('s_waitcnt vmcnt(0)')
        for h in range(2):
            m = [16 + 4*w + 2*h for w in range(4)]
            d = 36 + 4*h
            e(f'v_max3_f32 v{d}, v{m[0]}, v{m[1]}, v{m[2]}')
            e(f'v_max_f32 v{d}, v{d}, v{m[3]}')
            for w in range(4):
                e(f'v_sub_f32 v{44+w}, v{m[w]}, v{d}')
                e(f'v_exp_f32 v{44+w}, v{44+w}')
            e(f'v_mov_b32 v{d+1}, s34')
            e(f'v_mul_f32 v{d+2}, v44, v{m[0]+1}')
            for w in range(1, 4):
                e(f'v_fmac_f32 v{d+2}, v{44+w}, v{m[w]+1}')
            e(f'v_mov_b32 v{d+3}, s34')
        e('s_mov_b64 exec, 1')
        if self.abl & 64:
            e('s_branch L_wrdy_ok')
        self.publish(['buffer_store_dwordx4 v[36:39], v5, s[28:31], s47 offen offset:2048',
                      'buffer_store_dwordx4 v[40:43], v5, s[28:31], s47 offen offset:2064'])
        e('s_mov_b32 s48, 0')
        for _ in range(self.mld):
            e('s_sleep 127')
        e('L_gml:')
        e(f's_sleep {self.slp}')
        for s_ in range(4):
            for h in range(2):
                e(f'buffer_load_dwordx4 {rng(64 + 8*s_ + 4*h)}, v5, s[28:31], s44 offen offset:{2048 + 256*s_ + 16*h} sc1')
        e('s_add_u32 s48, s48, 1')
        e('s_waitcnt vmcnt(0)')
        e('v_mov_b32 v32, 0')
        for i in range(8):
            e(f'v_xor_b32 v33, s34, v{65 + 4*i}')
            e(f'v_xor_b32 v34, s34, v{67 + 4*i}')
            e('v_or3_b32 v32, v32, v33, v34')
        e('v_cmp_ne_u32 vcc, 0, v32')
        e('s_nop 0')
        e('s_cbranch_vccz L_gmlok')
        e(f's_cmp_lt_u32 s48, {SPIN}')
        e('s_cbranch_scc1 L_gml')
        e('L_gmlok:')
        for h in range(2):
            m = [64 + 8*s_ + 4*h for s_ in range(4)]
            e(f'v_max3_f32 v36, v{m[0]}, v{m[1]}, v{m[2]}')
            e(f'v_max_f32 v36, v36, v{m[3]}')
            for s_ in range(4):
                e(f'v_sub_f32 v{44+s_}, v{m[s_]}, v36')
                e(f'v_exp_f32 v{44+s_}, v{44+s_}')
            e('s_nop 0')
            e(f'v_mul_f32 v37, v44, v{m[0]+2}')
            for s_ in range(1, 4):
                e(f'v_fmac_f32 v37, v{44+s_}, v{m[s_]+2}')
            e('v_rcp_f32 v37, v37')
            for w in range(4):
                e(f'v_sub_f32 v{44+w}, v{16 + 4*w + 2*h}, v36')
                e(f'v_exp_f32 v{44+w}, v{44+w}')
            e('s_nop 0')
            for w in range(4):
                e(f'v_mul_f32 v{44+w}, v{44+w}, v37')
            e('s_nop 0')
            for w in range(4):
                e(f'v_readfirstlane_b32 s{50 + 2*w + h}, v{44+w}')
        e('s_cmp_ge_u32 s2, 144')
        e('s_cbranch_scc1 L_wrdy_ok')
        e('s_mov_b64 exec, 0xffff')
        self.proj_role(40, 41)
        e(f's_mul_i32 s40, s40, {self.PS}')
        e(f's_add_u32 s40, s40, {PBASE + 2052}')
        e(f's_mov_b32 s41, {16 * self.PS}')
        e('v_lshrrev_b32 v6, 2, v0')
        e('v_mul_lo_u32 v6, s41, v6')
        e('v_and_b32 v7, 3, v0')
        e('v_lshl_add_u32 v6, v7, 8, v6')
        e('s_mov_b32 s48, 0')
        e('L_wrdy:')
        e(f's_sleep {self.slp}')
        e('buffer_load_dword v8, v6, s[28:31], s40 offen sc1')
        e('s_add_u32 s48, s48, 1')
        e('s_waitcnt vmcnt(0)')
        e('v_cmp_ne_u32 vcc, s34, v8')
        e('s_nop 0')
        e('s_cbranch_vccz L_wrdy_ok')
        e(f's_cmp_lt_u32 s48, {SPIN}')
        e('s_cbranch_scc1 L_wrdy')
        e('L_wrdy_ok:')
        e('s_mov_b64 exec, -1')
        e('v_lshlrev_b32 v5, 3, v0')
        e('s_mov_b32 s48, 0x55555555')
        e('s_setprio 3')
        self.keep_time(66)
        e('s_barrier')
        self.keep_time(68)
        for w in range(4):
            e(f'ds_read_b128 {rng(16 + 4*w)}, v4 offset:{L_O + 1024*w}')
        for w in range(4):
            e(f's_waitcnt lgkmcnt({3-w})')
            for r in range(4):
                if w == 0:
                    e(f'v_mul_f32 v{32+r}, s{50 + (r & 1)}, v{16+r}')
                else:
                    e(f'v_fmac_f32 v{32+r}, s{50 + 2*w + (r & 1)}, v{16 + 4*w + r}')
        e('v_cvt_pk_bf16_f32 v36, v32, v34')
        e('v_cvt_pk_bf16_f32 v37, v33, v35')
        e('v_min_u32 v36, 0xfffffffe, v36')
        e('v_min_u32 v37, 0xfffffffe, v37')
        e('s_nop 0')
        e('v_mov_b32_dpp v38, v36 quad_perm:[1,1,3,3] row_mask:0xf bank_mask:0xf')
        e('v_mov_b32_dpp v39, v37 quad_perm:[1,1,3,3] row_mask:0xf bank_mask:0xf')
        e('s_mov_b32 exec_lo, s48')
        e('s_mov_b32 exec_hi, s48')
        self.publish(['buffer_store_dwordx4 v[36:39], v5, s[28:31], s45 offen'])
        self.keep_time(70)
        if self.rb:
            e('s_barrier')
        e('s_cmp_ge_u32 s2, 144')
        e('s_cbranch_scc1 L_hdone')
        if not self.rb:
            e('s_barrier')
        e('s_barrier')
        e('s_barrier')
        e('L_hdone:')
        if self.stamps:
            e('s_mov_b64 exec, -1')
            for k, sr in enumerate((60, 62, 64, 66, 68, 70)):
                self.flush_time(6 + k, sr)
            self.flush_time(18, 74)
        e('s_endpgm')

    def balancer(self):
        e = self.e
        e('s_getreg_b32 s40, hwreg(HW_REG_XCC_ID, 0, 4)')
        e('v_lshlrev_b32 v1, 2, v0')
        e('v_lshlrev_b32 v2, 4, v0')
        for r in range(4):
            e(f'v_mov_b32 v{4+r}, 0')
        e(f'ds_write_b128 v2, v[4:7] offset:{L_PR + 1024}')
        if self.snap:
            for r in range(4):
                e(f'v_mov_b32 v{8+r}, 48')
            e(f'ds_write_b128 v2, v[8:11] offset:{L_PR}')
            e('v_and_b32 v18, 0x300, v2')
        else:
            e(f'ds_write_b128 v2, v[4:7] offset:{L_PR}')
        e('s_waitcnt lgkmcnt(0)')
        e('s_load_dword s34, s[18:19], 0')
        self.srd(28, 18, WSWIN)
        e('s_mul_i32 s46, s40, 4352')
        e(f's_add_u32 s46, s46, {XOFF}')
        e('s_lshl_b32 s40, s40, 12')
        e(f's_add_u32 s40, s40, {BOFF}')
        e('s_lshr_b32 s41, s2, 3')
        e('s_lshl_b32 s41, s41, 2')
        e('v_mov_b32 v3, s41')
        e('s_mov_b32 s48, 0')
        e('s_waitcnt lgkmcnt(0)')
        self.make_tag()
        if self.loc:
            e('s_and_b32 s41, s2, 7')
            e('s_add_u32 s41, s41, s34')
            e('v_mov_b32 v8, s41')
            e('s_mov_b64 exec, 1')
            e('buffer_store_dword v8, v3, s[28:31], s40 offen offset:256')
            e('s_mov_b32 exec_lo, -1')
            e('L_rz:')
            e('buffer_load_dword v9, v1, s[28:31], s40 offen offset:256 sc1')
            e('s_add_u32 s48, s48, 1')
            e('s_waitcnt vmcnt(0)')
            e('v_cmp_ne_u32 vcc, s41, v9')
            e('s_nop 0')
            e('s_cbranch_vccz L_rzok')
            e('s_cmp_lt_u32 s48, 6')
            e('s_cbranch_scc1 L_rz')
            e('s_add_u32 s41, s34, 1')
            e('s_branch L_rzdone')
            e('L_rzok:')
            e('s_mov_b32 s41, s34')
            e('L_rzdone:')
            e('v_mov_b32 v8, s41')
            e(f'ds_write_b32 v4, v8 offset:{L_LOC}')
            e('s_mov_b64 exec, -1')
        if self.hot:
            e('s_lshr_b32 s50, s32, 2')
            e(f's_mul_i32 s50, s50, {self.PS}')
            e(f's_add_u32 s50, s50, {PBASE}')
            e('s_and_b32 s51, s32, 3')
            e('s_lshl_b32 s52, s51, 10')
            e('s_add_u32 s52, s52, 4096')
            e('s_lshl_b32 s51, s51, 9')
            e('s_sub_u32 s51, s51, 1024')
            e('v_mov_b32 v20, s52')
            e('v_mov_b32 v21, s51')
            e('v_cmp_gt_u32 vcc, 8, v0')
            e('s_nop 1')
            e('v_cndmask_b32 v20, v21, v20, vcc')
            e('v_lshl_add_u32 v20, v0, 7, v20')
        if self.xb:
            e(f's_mov_b32 s60, {self.ck0}')
            for j in range(8):
                e(f's_mov_b32 s{72+j}, -1')
                e(f's_mov_b32 s{80+j}, 0')
        e('s_cmp_lt_u32 s2, 144')
        e(f's_cselect_b32 s61, {self.bias + (self.sb + 1) // 2}, {self.bias - self.sb // 2}')
        e('s_lshl_b32 s34, s34, 16')
        e('s_barrier')
        e('L_bal:')
        e(f's_sleep {self.bslp}')
        e(f'ds_read2st64_b32 v[8:9], v4 offset0:{L_PR // 256} offset1:{L_PR // 256 + 1}')
        e(f'ds_read2st64_b32 v[10:11], v4 offset0:{L_PR // 256 + 2} offset1:{L_PR // 256 + 3}')
        if self.snap:
            e(f'ds_read_b32 v19, v18 offset:{L_PR}')
        e('s_add_u32 s48, s48, 1')
        e('s_waitcnt lgkmcnt(0)')
        e('v_add3_u32 v8, v8, v9, v10')
        e('v_add_u32 v8, v8, v11')
        e('v_or_b32 v9, s34, v8')
        e('v_readfirstlane_b32 s42, v8')
        e('s_mov_b64 exec, 1')
        e('buffer_store_dword v9, v3, s[28:31], s40 offen')
        e('s_mov_b64 exec, -1')
        e(f's_cmp_ge_u32 s42, {4 * 248}')
        e('s_cbranch_scc1 L_end')
        if self.xb:
            e('s_cmp_ge_u32 s2, 8')
            e('s_cbranch_scc1 L_nosl')
            for j in range(8):
                e(f's_load_dword s{64+j}, s[18:19], {XOFF + 4352*j} glc')
            e('L_nosl:')
        e('v_mov_b32 v10, 0')
        e(f's_mov_b32 exec_hi, {1 if self.xb else 0}')
        e('buffer_load_dword v10, v1, s[28:31], s40 offen sc1')
        if self.hot:
            e('s_mov_b64 exec, 0xfff')
            e('buffer_load_dword v21, v20, s[28:31], s50 offen sc1')
            e('s_mov_b32 exec_lo, -1')
        e('s_mov_b32 exec_hi, -1')
        e('s_waitcnt vmcnt(0)')
        e('v_xor_b32 v10, s34, v10')
        e('v_add_u32 v11, -1, v10')
        e('v_cmp_gt_u32 vcc, 0xffff, v11')
        e('s_nop 1')
        e('v_cndmask_b32 v10, 0, v10, vcc')
        e('s_bcnt1_i32_b32 s43, vcc_lo')
        for k in (1, 2, 4, 8):
            e('s_nop 1')
            e(f'v_add_u32_dpp v10, v10, v10 row_ror:{k} row_mask:0xf bank_mask:0xf')
        e('s_lshl_b32 s43, s43, 2')
        e('v_cvt_f32_u32 v12, s43')
        e('v_readlane_b32 s44, v10, 0')
        e('v_readlane_b32 s45, v10, 16')
        e('v_rcp_f32 v12, v12')
        e('s_add_u32 s44, s44, s45')
        e('v_cvt_f32_u32 v13, s44')
        e('v_mul_f32 v13, v13, v12')
        e('v_cvt_u32_f32 v16, v13')
        e('v_add_u32 v12, s61, v16')
        if self.xb:
            e('v_readlane_b32 s45, v10, 32')
            e('s_cmp_eq_u32 s45, 0')
            e('s_cselect_b32 s45, 32, s45')
            e('s_sub_u32 s45, s45, 32')
            e('v_add_u32 v12, s45, v12')
        if self.snap:
            e('v_sub_u32 v12, v19, v12')
        e('v_mov_b32 v13, v12')
        e('v_mov_b32 v14, v12')
        e('v_mov_b32 v15, v12')
        e(f'ds_write_b128 v2, v[12:15] offset:{L_PR + 1024}')
        if self.xb:
            e('s_cmp_ge_u32 s2, 8')
            e('s_cbranch_scc1 L_balnext')
            e('v_readfirstlane_b32 s47, v16')
            e('v_or_b32 v17, s34, v16')
            e('s_mov_b64 exec, 1')
            e('s_cmp_lt_u32 s47, s60')
            e('s_cbranch_scc1 L_nopub')
            e('buffer_store_dword v17, v4, s[28:31], s46 offen sc1')
            e(f's_add_u32 s60, s60, {self.ck}')
            e('L_nopub:')
            e('s_mov_b32 s43, 0')
            e('s_mov_b32 s44, 0')
            e('s_waitcnt lgkmcnt(0)')
            for j in range(8):
                e(f's_xor_b32 s{64+j}, s{64+j}, s34')
                e(f's_or_b32 s43, s43, s{64+j}')
                e(f's_sub_i32 s45, s{64+j}, s47')
                e(f's_cmp_lg_u32 s{64+j}, s{72+j}')
                e(f's_cselect_b32 s{80+j}, s45, s{80+j}')
                e(f's_mov_b32 s{72+j}, s{64+j}')
                e(f's_add_i32 s44, s44, s{80+j}')
            e('s_ashr_i32 s44, s44, 3')
            e(f's_add_i32 s44, s44, {self.lagc}')
            e(f's_max_i32 s44, s44, {-self.xmin}')
            e(f's_min_i32 s44, s44, {self.xmax}')
            e('s_add_i32 s44, s44, 32')
            e('s_cmp_lt_u32 s43, 0x10000')
            e('s_cselect_b32 s44, s44, 0')
            e('s_or_b32 s44, s44, s34')
            e('v_mov_b32 v17, s44')
            e('buffer_store_dword v17, v4, s[28:31], s40 offen offset:128')
            e('s_mov_b64 exec, -1')
            e('L_balnext:')
        e(f's_cmp_lt_u32 s48, {SPIN}')
        e('s_cbranch_scc1 L_bal')
        e('s_endpgm')

    def build(self):
        e = self.e
        e('.amdgcn_target "amdgcn-amd-amdhsa--gfx950"')
        e('.text')
        e(f'.globl {NAME}')
        e('.p2align 8')
        e(f'.type {NAME},@function')
        e(f'{NAME}:')
        e('s_cmp_ge_u32 s2, 256')
        e('s_cbranch_scc1 L_end')
        self.keep_time(58)
        if self.clk:
            e('s_memrealtime s[88:89]')
        e('s_load_dwordx16 s[4:19], s[0:1], 0')
        e('v_lshrrev_b32 v1, 6, v0')
        e('v_and_b32 v0, 63, v0')
        e('v_readfirstlane_b32 s3, v1')
        e('s_and_b32 s32, s2, 15')
        e('s_lshl_b32 s32, s32, 2')
        e('s_bfe_u32 s31, s2, 0x20004')
        e('s_or_b32 s32, s32, s31')
        e('s_and_b32 s31, s2, 0xc0')
        e('s_or_b32 s32, s32, s31')
        e('s_cmp_eq_u32 s3, 4')
        e('s_cbranch_scc1 L_helper')
        if self.bal:
            e('s_cmp_eq_u32 s3, 5')
            e('s_cbranch_scc1 L_balancer')
        self.stream()
        e('L_helper:')
        self.helper()
        if self.bal:
            e('L_balancer:')
            self.balancer()
        e('L_end:')
        e('s_endpgm')
        e('L_codeend:')
        nv = 256 if self.stamps else 248
        e('.section .rodata,"a"')
        e('.p2align 6')
        e(f'.amdhsa_kernel {NAME}')
        e(f'  .amdhsa_next_free_vgpr {nv}')
        e('  .amdhsa_next_free_sgpr 96')
        e(f'  .amdhsa_accum_offset {nv}')
        e('  .amdhsa_group_segment_fixed_size 0')
        e('  .amdhsa_kernarg_size 64')
        e('  .amdhsa_user_sgpr_count 2')
        e('  .amdhsa_user_sgpr_kernarg_segment_ptr 1')
        e('  .amdhsa_system_sgpr_workgroup_id_x 1')
        e('.end_amdhsa_kernel')
        errs = check([l.lstrip() if l.lstrip().startswith('.') else l for l in self.o])
        for x in errs:
            print('HAZARD', x, file=sys.stderr)
        txt = HEADER + f'; @launch grid=(256,1,1) block=({384 if self.bal else 320},1,1) lds={LDS_BYTES}\n' + '\n'.join(self.o) + '\n'
        return txt, errs


if __name__ == '__main__':
    kw = {}
    out = sys.argv[1]
    for a in sys.argv[2:]:
        k, v = a.split('=')
        kw[k] = int(v)
    txt, errs = G(**kw).build()
    open(out, 'w').write(txt)
    sys.exit(1 if errs else 0)
```

```python
import sys, struct
from hazard import check

NAME = "standalone__gqa_block_cached__decode_kernel"

HEADER = """; Kernarg layout for this problem (64 bytes, ptrs only, base s[0:1]):
"""

DOC = """;
"""

PBASE = 0x100000
POFF = 0x80000
WSWIN = 0x10000000
BOFF = 0x10000
XOFF = 0x20000
STAMP0 = 0x10000000
STAMP1 = 0x10100000

L_WQ = 0x0000
L_WO = 0x5000
L_A = 0x0000
L_Q = 0xD000
L_ML = 0xD200
L_O = 0xD400
L_PR = 0xE400
L_LOC = 0xD240
LDS_BYTES = 0xEC00

def f2u(x):
    return struct.unpack('<I', struct.pack('<f', x))[0]

SCALE = f2u(128 ** -0.5 * 1.4426950408889634)
SPIN = 1 << 20
T_WO, T_TR, T_A, T_P, T_OL, T_AW = 184, 186, 188, 189, 190, 191


class G:
    def __init__(self, D=5, LV=16, stamps=False, D0=None, dbgt=0, kf=1, vf=1, pf=1, enc=-1, prio=3, slp=64, qslp=8, pre=2, dfn=0, d2=16, qd=0, clr=0, abl=0, kfirst=0, wqp=0, mld=0, wod=1, dper=0, il=0, pslp=0, rslp=0, PS=8192, clk=0, tau=1094, toff=200, dh=7, bal=1, bias=10, bslp=1, bstep=4, xm=1, p4=1, osc=0, xb=1, lagc=11, lper=2, xmax=12, loc=1, hot=0, ck=40, ck0=72, him=8, xmin=12, dl=4, encm=1, piece=16384, rd=0, rsp=2, rb=1, sb=0, snap=0, fin=0, df=12, fpre=0, pw=5, pw0=2, pwall=1, pf2=0):
        self.o = []
        self.D = D
        self.D0 = D0 or D
        self.LV = LV
        self.stamps = stamps
        self.dbgt = dbgt
        FL = ['', ' nt', ' sc1', ' sc1 nt', ' sc0 sc1', ' sc0 sc1 nt', ' sc0', ' sc0 nt']
        self.kf, self.vf = FL[kf], FL[vf]
        self.pf = pf
        self.enc = enc
        self.prio = prio
        self.slp = slp
        self.qslp = qslp
        self.pre = pre
        self.qd = qd
        self.abl = abl
        self.mld = mld
        self.dper = dper
        self.il = il
        self.PS = PS
        self.pf2 = pf2
        self.pw, self.pw0, self.pwall = pw, pw0, pwall
        self.fpre = fpre
        self.fin, self.df = fin, df
        self.snap = snap
        self.sb = sb
        self.rb = rb
        self.rd, self.rsp = rd, rsp
        self.piece = piece
        self.encm = encm
        self.him, self.xmin, self.dl = him, xmin, dl
        self.ck, self.ck0 = ck, ck0
        self.hot = hot
        self.loc = loc
        self.xb, self.lagc, self.lper, self.xmax = xb, lagc, lper, xmax
        self.osc = osc
        self.xm, self.p4 = xm, p4
        self.bal, self.bias, self.bslp, self.bstep = bal, bias, bslp, bstep
        self.clk, self.tau, self.toff, self.dh = clk, tau, toff, dh
        self.pslp = pslp
        self.rslp = rslp
        self.wod = wod
        self.kfirst = kfirst
        self.wqp = wqp
        self.clr = clr
        self.dfn = dfn
        self.d2 = d2

    def e(self, s):
        self.o.append(s if s.endswith(':') or s.startswith('.') or s.startswith(';') else '    ' + s)

    def stamp(self, idx, sbase=80):
        if not self.stamps:
            return
        e = self.e
        e('s_memrealtime s[80:81]')
        e(f's_add_u32 s82, s18, {STAMP1 + idx * 8}')
        e('s_addc_u32 s83, s19, 0')
        e('s_lshl_b32 s84, s2, 8')
        e('s_waitcnt lgkmcnt(0)')
        e('v_mov_b32 v250, s84')
        e('v_mov_b32 v252, s80')
        e('v_mov_b32 v253, s81')
        e('s_mov_b64 s[56:57], exec')
        e('s_mov_b64 exec, 1')
        e('global_store_dwordx2 v250, v[252:253], s[82:83]')
        e('s_mov_b64 exec, s[56:57]')

    def keep_time(self, sreg):
        if self.stamps or self.dbgt:
            self.e(f's_memrealtime s[{sreg}:{sreg+1}]')

    def flush_time(self, idx, sreg):
        if not self.stamps:
            return
        e = self.e
        e(f's_add_u32 s82, s18, {STAMP1 + idx * 8}')
        e('s_addc_u32 s83, s19, 0')
        e('s_lshl_b32 s84, s2, 8')
        e('s_waitcnt lgkmcnt(0)')
        e('v_mov_b32 v250, s84')
        e(f'v_mov_b32 v252, s{sreg}')
        e(f'v_mov_b32 v253, s{sreg+1}')
        e('s_mov_b64 s[56:57], exec')
        e('s_mov_b64 exec, 1')
        e('global_store_dwordx2 v250, v[252:253], s[82:83]')
        e('s_mov_b64 exec, s[56:57]')

    def srd(self, d, base, size, add=None):
        e = self.e
        if add is None:
            e(f's_mov_b32 s{d}, s{base}')
            e(f's_mov_b32 s{d+1}, s{base+1}')
        else:
            e(f's_add_u32 s{d}, s{base}, {add}')
            e(f's_addc_u32 s{d+1}, s{base+1}, 0')
        e(f's_mov_b32 s{d+2}, {size:#x}')
        e(f's_mov_b32 s{d+3}, 0x20000')

    def stream(self):
        e, D, LV = self.e, self.D, 16
        vK, vV = 1, 2
        QB = [4, 8]
        DT = [12, 16]
        T, X = 20, 21
        A = 24
        MK = 28
        OA = 32
        M, L, T2, T3 = 36, 37, 38, 39
        S = 40
        RING = 56
        VP = 184
        rng = lambda r: f'v[{r}:{r+3}]'
        kslot = lambda n: RING + 4 * (n % 32)
        vslot = lambda v: VP + 4 * v if v < 16 else RING + 4 * ((v - 16) % 32)
        kpos = lambda n: 16 + n
        vpos = lambda v: v if v < 16 else 128 + v
        st = {'issued': -1, 'landed': -1}
        rpp = self.piece // 16384
        step = lambda n: 0x4000 + (3 * self.piece if self.piece < 0x80000 and (n // 4) % rpp == rpp - 1 else 0)

        def need_landed(x):
            if x > st['landed']:
                e(f's_waitcnt vmcnt({st["issued"] - x})')
                st['landed'] = x

        lab = [0]

        def clk_step():
            e('s_waitcnt lgkmcnt(0)')
            e('s_sub_u32 s86, s88, s85')
            e('s_mul_i32 s86, s86, 10')
            e('s_cmp_gt_u32 s86, s87')
            e('s_cselect_b32 vcc_lo, 1, 0')
            e(f's_add_u32 s87, s87, {self.tau}')
            e('s_memrealtime s[88:89]')

        vPos, vRef, vPA = 22, 23, 3

        def bal_step(i):
            if not self.bal:
                return
            if i % self.bstep == self.bstep - 2:
                e(f'v_add_u32 v{vPos}, {self.bstep}, v{vPos}')
                e(f'ds_write_b32 v{vPA}, v{vPos} offset:{L_PR}')
                e(f'ds_read_b32 v{vRef}, v{vPA} offset:{L_PR + 1024}')
            if i % self.bstep == self.bstep - 1:
                e('s_waitcnt lgkmcnt(0)')
                if self.snap:
                    e(f'v_cmp_gt_i32 vcc, 0, v{vRef}')
                    e(f'v_cmp_lt_i32 s[92:93], {self.him}, v{vRef}')
                    return
                e(f'v_cmp_gt_u32 vcc, v{vRef}, v{vPos}')
                if self.him:
                    e(f'v_sub_u32 v{vRef}, v{vPos}, v{vRef}')
                    e(f'v_add_u32 v{vRef}, {-self.him - 1}, v{vRef}')
                    e(f'v_cmp_gt_u32 s[92:93], 32, v{vRef}')

        def gate(pos, d):
            if (self.clk or self.bal) and st.get('adapt') and d == D:
                lab[0] += 1
                e(f's_cbranch_vccnz L_dg{lab[0]}')
                e(f's_waitcnt vmcnt({D-1})')
                if self.him:
                    e('s_cmp_eq_u32 s92, 0')
                    e(f's_cbranch_scc1 L_dg{lab[0]}')
                    e(f's_waitcnt vmcnt({self.dl-1})')
                e(f'L_dg{lab[0]}:')
                d = st.get('dh', self.dh)
            if self.dper and d == D and pos % self.dper == 0:
                d = D + 1
            if pos >= d:
                e(f's_waitcnt vmcnt({d-1})')
                st['landed'] = max(st['landed'], pos - d)
            st['issued'] = pos

        def kissue(n, d=None):
            gate(kpos(n), d or D)
            e(f'buffer_load_dwordx4 {rng(kslot(n))}, v{vK}, s[20:23], s28 offen offset:{(n % 4) * 1024}{self.kf}')
            if n % 4 == 3:
                e(f's_add_u32 s28, s28, {step(n):#x}')

        def vissue(v, d=None):
            if 16 <= v < 32 and st.get('adapt'):
                bal_step(v)
            gate(vpos(v), d or D)
            e(f'buffer_load_dwordx4 {rng(vslot(v))}, v{vV}, s[24:27], s33 offen offset:{(v % 4) * 1024}{self.vf}')
            if v % 4 == 3:
                e(f's_add_u32 s33, s33, {step(v):#x}')

        def kadds(pair, sreg):
            d = DT[pair & 1]
            i = pair & 3
            e(f'v_add_f32_dpp v{T}, v{d + (i+1) % 4}, v{d + i} row_ror:12 row_mask:0xf bank_mask:0xf')
            e(f'v_add_f32_dpp v{T}, v{d + (i+2) % 4}, v{T} row_ror:8 row_mask:0xf bank_mask:0xf')
            e(f'v_add_f32_dpp v{sreg}, v{d + (i+3) % 4}, v{T} row_ror:4 row_mask:0xf bank_mask:{1 << i:#x}')

        def kmfma(n):
            d = DT[(n >> 1) & 1]
            c = '0' if n % 2 == 0 else rng(d)
            e(f'v_mfma_f32_16x16x32_bf16 {rng(d)}, {rng(kslot(n))}, {rng(QB[n & 1])}, {c}')

        def shift4():
            for i in range(12):
                e(f'v_mov_b32 v{S+i}, v{S+i+4}')

        def vprep(pn, yreg, A=A):
            i = pn & 7
            e(f'v_mov_b32_dpp v{X}, v{yreg} row_newbcast:{2*i} row_mask:0xf bank_mask:0x3')
            e(f'v_mov_b32_dpp v{X}, v{yreg} row_newbcast:{2*i+1} row_mask:0xf bank_mask:0xc')
            for r in range(4):
                e(f'v_and_b32 v{A+r}, v{X}, v{MK+r}')

        def vmfma(v, first=False, A=A):
            c = '0' if first else rng(OA)
            e(f'v_mfma_f32_16x16x32_bf16 {rng(OA)}, {rng(A)}, {rng(vslot(v))}, {c}')

        e(f'v_lshlrev_b32 v{vV}, 4, v0')
        e('s_and_b32 s31, s32, 3')
        e(f's_mul_i32 s31, s31, {self.piece}')
        e('s_lshl_b32 s33, s3, 12')
        e('s_add_u32 s33, s33, s31')
        e('s_mov_b32 s28, s33')
        e('s_lshr_b32 s31, s32, 2')
        e('s_lshl_b32 s31, s31, 21')
        if self.prio:
            e(f's_setprio {self.prio}')
        e('s_waitcnt lgkmcnt(0)')
        self.keep_time(70)
        if self.clk:
            e('s_mov_b32 s85, s88')
        self.srd(24, 8, 0x200000, add='s31')
        for v in range(min(self.D0, 16)):
            vissue(v, d=self.D0)
        e('s_load_dword s34, s[18:19], 0')
        self.srd(20, 6, 0x200000, add='s31')
        e('v_lshrrev_b32 v3, 4, v0')
        e('v_bfe_u32 v4, v0, 2, 2')
        e('v_and_b32 v5, 3, v0')
        e('v_lshlrev_b32 v3, 6, v3')
        e('v_lshlrev_b32 v4, 8, v4')
        e('v_lshlrev_b32 v5, 4, v5')
        e(f'v_add3_u32 v{vK}, v3, v4, v5')
        e(f's_mov_b32 s30, {SCALE:#x}')
        e('v_lshrrev_b32 v3, 3, v0')
        e('v_xor_b32 v3, v3, v0')
        e('v_and_b32 v3, 1, v3')
        e('v_lshlrev_b32 v3, 4, v3')
        e('v_mov_b32 v4, 0xffff')
        e('v_lshlrev_b32 v3, v3, v4')
        e('v_bfe_u32 v4, v0, 1, 2')
        for r in range(4):
            e(f'v_cmp_eq_u32 vcc, {r}, v4')
            e('s_nop 1')
            e(f'v_cndmask_b32 v{MK+r}, 0, v3, vcc')
        e('v_and_b32 v3, 1, v0')
        e('v_lshlrev_b32 v3, 8, v3')
        e('v_lshrrev_b32 v4, 2, v0')
        e(f'v_lshl_add_u32 v{T2}, v4, 4, v3')
        e('v_and_b32 v3, 2, v0')
        e('v_cmp_ne_u32 vcc, 0, v3')
        for v in range(min(self.D0, 16), 16):
            vissue(v, d=self.D0)
            if v == self.D0:
                self.keep_time(72)
        self.keep_time(76)
        for n in range(32):
            kissue(n, d=self.D0 + max(0, n - (31 - self.pre)))
            if n == 8:
                self.keep_time(78)
        self.keep_time(60)
        e('s_barrier')
        e(f'ds_read_b128 {rng(DT[0])}, v{T2} offset:{L_Q}')
        e('s_mov_b32 s29, 0')
        e(f's_waitcnt lgkmcnt(0) vmcnt({min(self.D0, 30)})')
        self.keep_time(62)
        self.make_tag()
        for r in range(4):
            e(f'v_cndmask_b32 v{QB[1]+r}, 0, v{DT[0]+r}, vcc')
            e(f'v_cndmask_b32 v{QB[0]+r}, v{DT[0]+r}, 0, vcc')
        e('s_nop 1')
        if self.clk:
            e('s_mov_b64 vcc, 0')
            e('s_memrealtime s[88:89]')
            e(f's_mov_b32 s87, {self.toff * 10 + 6 * self.tau}')
            st['adapt'] = True
        if self.bal:
            e('s_mov_b64 vcc, 0')
            e('s_mov_b64 s[92:93], 0')
            e(f'v_mov_b32 v{vPos}, 48')
            e(f'v_lshlrev_b32 v{vPA}, 2, v0')
            e('s_lshl_b32 s31, s3, 8')
            e(f'v_add_u32 v{vPA}, s31, v{vPA}')
            st['adapt'] = True
        self.align()
        e('L_kloop:')
        for p in range(16):
            n = 2 * p
            if self.clk and p % 4 == 3:
                clk_step()
            bal_step(n)
            kmfma(n)
            kissue(n + 32)
            bal_step(n + 1)
            kmfma(n + 1)
            kadds((p - 1) % 16, S + 12 + (((p - 1) % 16) >> 2))
            if p == 0:
                shift4()
            kissue(n + 33)
        e('s_add_u32 s29, s29, 1')
        e('s_cmp_lt_u32 s29, 3')
        e('s_cbranch_scc1 L_kloop')
        nv = 16
        st['issued'], st['landed'] = kpos(127), kpos(127) - max(D + 1, self.dh if (self.clk or self.bal) else 0)
        for p in range(16):
            n = 2 * p
            need_landed(kpos(96 + n + 1))
            kmfma(n)
            kmfma(n + 1)
            e('s_nop 0')
            kadds((p - 1) % 16, S + 12 + (((p - 1) % 16) >> 2))
            if p == 0:
                shift4()
            if p % 3 == 0:
                vissue(nv); nv += 1
            else:
                e('s_nop 1')
        e('s_nop 1')
        kadds(15, S + 15)
        e(f'v_max3_f32 v{M}, v{S}, v{S+1}, v{S+2}')
        e(f'v_max3_f32 v{T}, v{S+3}, v{S+4}, v{S+5}')
        for i in range(6, 14, 4):
            e(f'v_max3_f32 v{M}, v{M}, v{S+i}, v{S+i+1}')
            e(f'v_max3_f32 v{T}, v{T}, v{S+i+2}, v{S+i+3}')
        e(f'v_max3_f32 v{M}, v{M}, v{S+14}, v{S+15}')
        e(f'v_max_f32 v{M}, v{M}, v{T}')

        def allreduce(reg, op):
            for k in (2, 4, 8):
                e('s_nop 1')
                e(f'{op}_dpp v{reg}, v{reg}, v{reg} row_ror:{k} row_mask:0xf bank_mask:0xf')
            for sw in ('v_permlane16_swap_b32', 'v_permlane32_swap_b32'):
                e(f'v_mov_b32 v{T}, v{reg}')
                e('s_nop 1')
                e(f'{sw} v{reg}, v{T}')
                e(f'{op} v{reg}, v{reg}, v{T}')
        allreduce(M, 'v_max_f32')
        e(f'v_mul_f32 v{M}, s30, v{M}')
        vissue(nv); nv += 1
        for i in range(16):
            e(f'v_fma_f32 v{S+i}, v{S+i}, s30, -v{M}')
            e(f'v_exp_f32 v{S+i}, v{S+i}')
            if i == 10:
                vissue(nv); nv += 1
        e(f'v_add_f32 v{L}, v{S}, v{S+1}')
        for i in range(2, 16):
            e(f'v_add_f32 v{L}, v{L}, v{S+i}')
        vissue(nv); nv += 1
        for i in range(16):
            t = T2 if i & 1 else T3
            e(f'v_mov_b32_dpp v{t}, v{S+i} quad_perm:[1,0,3,2] row_mask:0xf bank_mask:0xf')
            e(f'v_cvt_pk_bf16_f32 v{S+i}, v{S+i}, v{t}')
        vissue(nv); nv += 1
        allreduce(L, 'v_add_f32')
        e(f'v_lshlrev_b32 v{T2}, 3, v0')
        e('s_lshl_b32 s31, s3, 4')
        e(f'v_add_u32 v{T2}, s31, v{T2}')
        e('s_mov_b64 exec, 3')
        e(f'ds_write_b64 v{T2}, v[{M}:{L}] offset:{L_ML}')
        e('s_mov_b64 exec, -1')
        self.keep_time(64)
        for pn in range(16):
            vprep(pn, S + (pn >> 3))
            if pn % 3 == 0 and pn < 15:
                vissue(nv); nv += 1
            else:
                e('s_nop 1')
            vmfma(pn, first=(pn == 0))
        assert nv <= 32, nv
        self.tail_setup()
        while nv < 32:
            vissue(nv); nv += 1
        e('s_mov_b32 s29, 0')
        if self.clk:
            e('s_waitcnt lgkmcnt(0)')
            e('s_memrealtime s[88:89]')
            e(f's_mov_b32 s87, {self.toff * 10 + 20 * self.tau}')
        elif not self.bal:
            e('s_mov_b64 vcc, 0')
        self.align()
        e('L_vloop:')
        sw_it, sw_i = divmod(96 - self.dfn, 32)
        for i in range(32):
            p2 = 16 + i
            if self.dfn and i == sw_i:
                e(f's_cmp_ge_u32 s29, {sw_it}')
                e('s_cselect_b32 vcc_lo, 1, 0')
            if self.clk and i % 8 == 7:
                clk_step()
            bal_step(i)
            if self.fin and i >= 32 - self.fin:
                st['dh'] = self.df
                if i == 32 - self.fin or i % self.bstep == self.bstep - 1:
                    e('s_cmp_eq_u32 s29, 2')
                    e('s_cselect_b32 vcc_lo, 1, vcc_lo')
            vprep(p2, S + (p2 >> 3))
            if self.dfn:
                e(f's_cbranch_vccnz L_g{i}')
                e(f's_waitcnt vmcnt({D-1})')
                e(f'L_g{i}:')
                vissue(32 + i, d=self.d2)
            else:
                vissue(32 + i)
            vmfma(p2)
        shift4()
        e('s_add_u32 s29, s29, 1')
        e('s_cmp_lt_u32 s29, 3')
        e('s_cbranch_scc1 L_vloop')
        e('L_tailcode:')
        self.keep_time(66)

        def wo_issue(i):
            e('s_mov_b32 m0, s46')
            e('s_add_u32 s46, s46, 1024')
            e(f'buffer_load_dwordx4 v{T_WO + ((i >> 1) & 1)}, s[36:39], s45 offen nt lds')
            e('s_add_u32 s45, s45, 9216')
        if self.pw:
            if not self.pwall:
                e('s_cbranch_vccnz L_fburst')
            nwo = 0
            for _ in range(self.pw0):
                wo_issue(nwo); nwo += 1
            for i in range(LV):
                p2 = 16 + i
                vprep(p2, S + (p2 >> 3))
                if LV - 1 - i < max(D + 1, self.dh):
                    e(f's_waitcnt vmcnt({LV - 1 - i + nwo})')
                    e('s_nop 0')
                else:
                    e('s_nop 1')
                vmfma(p2)
                if LV - 1 - i < self.pw and nwo < 8:
                    wo_issue(nwo); nwo += 1
            while nwo < 8:
                wo_issue(nwo); nwo += 1
            if not self.pwall:
                e('s_branch L_fdone')
                e('L_fburst:')
        single = self.pw and self.pwall
        for i in range(0 if single else 8):
            wo_issue(i)
        dmax = self.d2 if self.dfn else max(D + 1, self.df if self.fin else 0, self.dh if (self.clk or self.bal) else 0)
        for i in range(0 if single else LV - self.fpre):
            p2 = 16 + i
            vprep(p2, S + (p2 >> 3))
            if LV - 1 - i < dmax:
                e(f's_waitcnt vmcnt({LV - 1 - i + 8})')
                e('s_nop 0')
            else:
                e('s_nop 1')
            vmfma(p2)
        for i in range(LV - self.fpre, LV):
            vprep(16 + i, S + ((16 + i) >> 3), A=192 + 4 * (LV - 1 - i))
        for i in range(LV - self.fpre, LV):
            e(f's_waitcnt vmcnt({LV - 1 - i + 8})')
            vmfma(16 + i, A=192 + 4 * (LV - 1 - i))
        e('L_fdone:')
        e('s_cmp_ge_u32 s2, 144')
        e('s_nop 6')
        e(f'ds_write_b128 v{T_OL}, {rng(OA)} offset:{L_O}')
        e('s_waitcnt lgkmcnt(0)')
        self.keep_time(68)
        e('s_barrier')
        if self.enc >= 1000:
            e('s_cselect_b32 s84, 1, 0')
            e('s_waitcnt lgkmcnt(0)')
            e('v_mov_b32 v12, s58')
            e(f'v_mov_b32 v13, s{self.enc % 1000}')
            e('s_lshl_b32 s85, s2, 5')
            e('s_lshl_b32 s86, s3, 3')
            e('s_add_u32 s85, s85, s86')
            e('s_add_u32 s85, s85, 0x40000')
            e('v_mov_b32 v14, 0')
            e('s_mov_b64 exec, 1')
            e('buffer_store_dwordx2 v[12:13], v14, s[40:43], s85 offen sc1')
            e('s_mov_b64 exec, -1')
            e('s_cmp_eq_u32 s84, 1')
        e('s_cbranch_scc1 L_notproj')
        BW, AO, PO = 56, 88, 120
        e('s_barrier')
        for j in range(2):
            e(f'buffer_load_dwordx4 {rng(PO + 4*j)}, v{vV}, s[40:43], s44 offen offset:{1024*j} sc1')
        e('s_mov_b32 s48, 0')
        e('s_waitcnt vmcnt(2)')
        e('s_barrier')
        self.keep_time(50)
        for kk in range(8):
            gp = kk >> 1
            for hf in range(2):
                row = 64 * (kk & 1) + 8 * hf + 4 * (gp & 1)
                r = BW + kk * 4 + 2 * hf
                e(f'ds_read_b64_tr_b16 v[{r}:{r+1}], v{T_TR + (gp >> 1)} offset:{L_WO + row * 128}')
        e('s_branch L_ochk')
        self.align()
        e('L_opoll:')
        if self.pslp:
            e(f's_sleep {self.pslp}')
        for j in range(2):
            e(f'buffer_load_dwordx4 {rng(PO + 4*j)}, v{vV}, s[40:43], s44 offen offset:{1024*j} sc1')
        e('L_ochk:')
        e('s_add_u32 s48, s48, 1')
        e(f's_cmp_ge_u32 s48, {SPIN}')
        e('s_cbranch_scc1 L_ook')
        e('s_waitcnt vmcnt(1)')
        e(f'v_max3_u32 v20, v{PO}, v{PO+1}, v{PO+2}')
        e('s_waitcnt vmcnt(0)')
        e(f'v_max3_u32 v21, v{PO+4}, v{PO+5}, v{PO+6}')
        e(f'v_max3_u32 v20, v20, v{PO+3}, v{PO+7}')
        e('v_max_u32 v20, v20, v21')
        e('v_cmp_eq_u32 vcc, -1, v20')
        e('s_and_b64 exec, exec, vcc')
        e('s_cbranch_scc1 L_opoll')
        e('L_ook:')
        e('s_mov_b64 exec, -1')
        e(f'ds_write_b128 v{T_AW}, {rng(PO)} offset:{L_A}')
        e(f'ds_write_b128 v{T_AW}, {rng(PO+4)} offset:{L_A + 2*528}')
        e('s_waitcnt lgkmcnt(0)')
        e('s_barrier')
        self.keep_time(52)
        for kk in range(8):
            e(f'ds_read_b128 {rng(AO + 4*kk)}, v{T_A} offset:{L_A + 64*kk}')
        for kk in range(8):
            c = '0' if kk == 0 else 'v[12:15]'
            e(f's_waitcnt lgkmcnt({7-kk})')
            e(f'v_mfma_f32_16x16x32_bf16 v[12:15], {rng(AO + 4*kk)}, {rng(BW + 4*kk)}, {c}')
        e('v_mov_b32 v17, s34')
        e('v_mov_b32 v19, s34')
        e('s_mov_b32 s48, 0x55555555')
        e('s_nop 4')
        e('v_add_f32 v12, v12, v13')
        e('v_add_f32 v14, v14, v15')
        e('v_add_f32 v16, v12, v14')
        if self.abl & 256:
            e('s_cmp_lg_u32 s3, 0')
            e('s_cbranch_scc1 L_end')
        if self.p4:
            e('s_nop 1')
            e('v_mov_b32_dpp v18, v16 quad_perm:[1,1,3,3] row_mask:0xf bank_mask:0xf')
            e('s_mov_b32 exec_lo, s48')
            e('s_mov_b32 exec_hi, s48')
            e(f'buffer_store_dwordx4 v[16:19], v{T_P}, s[40:43], s47 offen sc1')
        else:
            e(f'buffer_store_dwordx2 v[16:17], v{T_P}, s[40:43], s47 offen sc1')
        self.keep_time(54)
        if self.stamps:
            e('s_branch L_sflush')
        e('s_endpgm')
        e('L_notproj:')
        e('s_cmp_ge_u32 s2, 180')
        e('s_cbranch_scc1 ' + ('L_sflush' if self.stamps else 'L_end'))
        if self.rb:
            e('s_barrier')
        if self.abl & 256:
            e('s_cmp_lg_u32 s3, 0')
            e('s_cbranch_scc1 L_end')
        self.keep_time(50)
        e('s_mov_b32 s48, 0')
        e(f's_mov_b32 s38, {4 * 576 * 2}')
        e('s_and_b32 s45, s35, 3')
        e('s_mul_i32 s45, s45, 1152')
        e('s_lshr_b32 s31, s35, 2')
        e('s_lshl_b32 s31, s31, 7')
        e('s_add_u32 s45, s45, s31')
        e('s_lshl_b32 s31, s3, 5')
        e('s_add_u32 s45, s45, s31')
        if self.rd:
            R = self.rd
            base = lambda k: 56 + 8 * (k % R)

            def rissue(k):
                r = base(k)
                e(f'buffer_load_dwordx4 v[{r}:{r+3}], v{T_A}, s[40:43], s44 offen sc1')
                e(f'buffer_load_dwordx4 v[{r+4}:{r+7}], v{T_A}, s[40:43], s47 offen sc1')
            for k in range(R - 1):
                rissue(k)
            self.align()
            e('L_ppoll:')
            for k in range(R):
                rissue(k + R - 1)
                if self.rsp:
                    e(f's_sleep {self.rsp}')
                r = base(k)
                e(f's_waitcnt vmcnt({2 * (R - 1)})')
                e(f'v_xor_b32 v20, s34, v{r+1}')
                e(f'v_xor_b32 v21, s34, v{r+3}')
                e(f'v_xor_b32 v22, s34, v{r+5}')
                e(f'v_xor_b32 v23, s34, v{r+7}')
                e(f'v_add_f32 v12, v{r}, v{r+4}')
                e('v_or3_b32 v20, v20, v21, v22')
                e(f'v_add_f32 v14, v{r+2}, v{r+6}')
                e('v_or_b32 v20, v20, v23')
                e('v_cmp_ne_u32 vcc, 0, v20')
                e('s_cbranch_vccz L_pok')
            e('s_add_u32 s48, s48, 1')
            e(f's_cmp_lt_u32 s48, {SPIN}')
            e('s_cbranch_scc1 L_ppoll')
            e('L_pok:')
            self.keep_time(52)
        else:
            self.align()
            e('L_ppoll:')
            if self.rslp:
                e(f's_sleep {self.rslp}')
            e(f'buffer_load_dwordx4 v[12:15], v{T_A}, s[40:43], s44 offen sc1')
            e(f'buffer_load_dwordx4 v[16:19], v{T_A}, s[40:43], s47 offen sc1')
            e('s_add_u32 s48, s48, 1')
            e(f's_cmp_ge_u32 s48, {SPIN}')
            e('s_cbranch_scc1 L_pok')
            e('s_waitcnt vmcnt(1)')
            e('v_xor_b32 v20, s34, v13')
            e('v_xor_b32 v21, s34, v15')
            e('s_waitcnt vmcnt(0)')
            e('v_xor_b32 v22, s34, v17')
            e('v_xor_b32 v23, s34, v19')
            e('v_or3_b32 v20, v20, v21, v22')
            e('v_or_b32 v20, v20, v23')
            e('v_cmp_ne_u32 vcc, 0, v20')
            e('s_and_b64 exec, exec, vcc')
            e('s_cbranch_scc1 L_ppoll')
            e('L_pok:')
            e('s_mov_b64 exec, -1')
            e('s_waitcnt vmcnt(0)')
            self.keep_time(52)
            e('v_add_f32 v12, v12, v16')
            e('v_add_f32 v14, v14, v18')
        e('s_nop 0')
        e('v_add_f32_dpp v12, v12, v12 row_ror:8 row_mask:0xf bank_mask:0xf')
        e('v_add_f32_dpp v14, v14, v14 row_ror:8 row_mask:0xf bank_mask:0xf')
        e('s_nop 1')
        e('v_permlane16_swap_b32 v12, v14')
        e('v_add_f32 v12, v12, v14')
        e('v_mov_b32 v14, v12')
        e('s_nop 1')
        e('v_permlane32_swap_b32 v12, v14')
        e('v_add_f32 v12, v12, v14')
        e('v_cvt_pk_bf16_f32 v12, v12, v12')
        e('s_mov_b64 exec, 0x00ff00ff')
        e(f'buffer_store_short v12, v{T_P}, s[36:39], s45 offen' + ['', ' sc1', ' nt', ' sc0 sc1'][self.osc])
        self.keep_time(54)
        e('s_add_u32 s48, s2, s3')
        e('s_cmp_lg_u32 s48, 144')
        e('s_cbranch_scc1 ' + ('L_sflush' if self.stamps else 'L_end'))
        e('v_mov_b32 v4, s34')
        e('v_mov_b32 v6, 0')
        e('s_mov_b64 exec, 1')
        e('buffer_store_dword v4, v6, s[40:43], 0 offen')
        if self.dbgt:
            e('s_waitcnt lgkmcnt(0)')
            e('s_mov_b32 s80, 8000')
            if self.enc >= 1000:
                e('s_mov_b64 exec, -1')
                e('s_sleep 64')
                e('v_lshlrev_b32 v14, 7, v0')
                e('s_mov_b32 s85, 0x40000')
                for i in range(4):
                    e(f'buffer_load_dwordx2 v[{20+2*i}:{21+2*i}], v14, s[40:43], s85 offen offset:{32*i} sc1')
                e('s_waitcnt vmcnt(0)')
                op = 'v_max_u32' if self.enc < 2000 else 'v_min_u32'
                for i in range(1, 4):
                    e(f'v_min_u32 v20, v20, v{20+2*i}')
                    e(f'{op} v21, v21, v{21+2*i}')
                e('s_nop 1')
                e('v_readlane_b32 s81, v21, 0')
                e('v_readlane_b32 s85, v20, 0')
                for l in range(1, 64):
                    e(f'v_readlane_b32 s86, v21, {l}')
                    e(f'v_readlane_b32 s87, v20, {l}')
                    e(('s_max_u32' if self.enc < 2000 else 's_min_u32') + ' s81, s81, s86')
                    e('s_min_u32 s85, s85, s87')
                e('s_sub_u32 s81, s81, s85')
                e(f's_mul_i32 s81, s81, {self.encm}')
                e('s_add_u32 s80, s80, s81')
            elif self.enc > 0:
                e(f's_sub_u32 s81, s{self.enc}, s58')
                e(f's_mul_i32 s81, s81, {self.encm}')
                e('s_add_u32 s80, s80, s81')
            e('L_enc:')
            e('s_memrealtime s[82:83]')
            e('s_waitcnt lgkmcnt(0)')
            e('s_sub_u32 s82, s82, s58')
            e('s_cmp_lt_u32 s82, s80')
            e('s_cbranch_scc1 L_enc')
        if self.stamps:
            e('L_sflush:')
            e('s_mov_b64 exec, -1')
            e('s_cmp_lg_u32 s3, 0')
            e('s_cbranch_scc1 L_end')
            for k, sr in enumerate((58, 60, 62, 64, 66, 68)):
                self.flush_time(k, sr)
            for k, sr in ((12, 50), (13, 52), (14, 54), (16, 70), (17, 72), (15, 76), (19, 78)):
                self.flush_time(k, sr)
        e('s_endpgm')

    def proj_role(self, shkv, stg):
        e = self.e
        if self.xm:
            e(f's_lshr_b32 s{stg}, s2, 3')
            e(f's_and_b32 s{shkv}, s2, 7')
            e(f's_cmp_ge_u32 s{stg}, 9')
            e(f's_cselect_b32 s95, 8, 0')
            e(f's_add_u32 s{shkv}, s{shkv}, s95')
            e(f's_cmp_ge_u32 s{stg}, 9')
            e(f's_cselect_b32 s95, 9, 0')
            e(f's_sub_u32 s{stg}, s{stg}, s95')
        else:
            e(f's_mul_i32 s{shkv}, s2, 57')
            e(f's_lshr_b32 s{shkv}, s{shkv}, 9')
            e(f's_mul_i32 s{stg}, s{shkv}, 9')
            e(f's_sub_u32 s{stg}, s2, s{stg}')

    def tail_setup(self):
        e = self.e
        t0, t1, t2, t3 = 200, 201, 202, 203
        self.srd(40, 18, WSWIN)
        e(f'v_lshlrev_b32 v{T_OL}, 4, v0')
        e('s_lshl_b32 s31, s3, 10')
        e(f'v_add_u32 v{T_OL}, s31, v{T_OL}')
        e('s_lshl_b32 s46, s3, 13')
        e(f's_add_u32 s46, s46, {L_WO}')
        e('s_cmp_ge_u32 s2, 144')
        e('s_cbranch_scc1 L_ts_red')
        self.proj_role(35, 31)
        e('s_mul_i32 s47, s35, 9')
        e('s_add_u32 s47, s47, s31')
        self.srd(36, 12, 0 if self.abl & 4 else 4096 * 576 * 2)
        e('s_lshl_b32 s45, s35, 2')
        e('s_add_u32 s45, s45, s3')
        e(f's_mul_i32 s45, s45, {64 * 1152}')
        e('s_lshl_b32 s31, s31, 7')
        e('s_add_u32 s45, s45, s31')
        e(f'v_lshrrev_b32 v{t0}, 3, v0')
        e(f'v_mul_u32_u24 v{t1}, 1152, v{t0}')
        e(f'v_and_b32 v{t0}, 2, v{t0}')
        e(f'v_and_b32 v{t2}, 7, v0')
        e(f'v_xor_b32 v{t2}, v{t2}, v{t0}')
        e(f'v_lshl_add_u32 v{T_WO}, v{t2}, 4, v{t1}')
        e(f'v_xor_b32 v{t2}, 4, v{t2}')
        e(f'v_lshl_add_u32 v{T_WO+1}, v{t2}, 4, v{t1}')
        e(f'v_bfe_u32 v{t0}, v0, 3, 1')
        e(f'v_bfe_u32 v{t1}, v0, 2, 1')
        e(f'v_lshl_add_u32 v{t2}, v{t1}, 1, v{t0}')
        e(f'v_and_b32 v{t3}, 0x30, v0')
        e(f'v_lshl_add_u32 v{t3}, v{t0}, 7, v{t3}')
        e(f'v_add_u32 v{T_TR}, v{t3}, v{t2}')
        e(f'v_xor_b32 v{T_TR+1}, 1, v{T_TR}')
        e(f'v_bfe_u32 v{t0}, v0, 4, 1')
        e(f'v_lshl_add_u32 v{t0}, v{t0}, 1, v{t1}')
        e(f'v_xor_b32 v{t0}, s3, v{t0}')
        e(f'v_lshlrev_b32 v{t0}, 5, v{t0}')
        e(f'v_and_b32 v{t1}, 3, v0')
        e(f'v_lshl_add_u32 v{t0}, v{t1}, 3, v{t0}')
        e(f'v_lshl_add_u32 v{T_TR}, v{T_TR}, 7, v{t0}')
        e(f'v_lshl_add_u32 v{T_TR+1}, v{T_TR+1}, 7, v{t0}')
        e('s_lshl_b32 s44, s3, 4')
        e('s_add_u32 s44, s44, s35')
        e(f's_mul_i32 s44, s44, {self.PS}')
        e(f's_add_u32 s44, s44, {PBASE}')
        e(f'v_lshrrev_b32 v{t0}, 5, v0')
        e(f'v_lshl_add_u32 v{t0}, s3, 2, v{t0}')
        e(f'v_mul_u32_u24 v{t0}, 528, v{t0}')
        e(f'v_and_b32 v{t1}, 31, v0')
        e(f'v_lshl_add_u32 v{T_AW}, v{t1}, 4, v{t0}')
        e(f'v_and_b32 v{t0}, 15, v0')
        e(f'v_mul_u32_u24 v{t0}, 528, v{t0}')
        e(f'v_and_b32 v{t1}, 0x30, v0')
        e(f'v_add_u32 v{T_A}, v{t0}, v{t1}')
        e(f'v_and_b32 v{t0}, 15, v0')
        e(f'v_lshlrev_b32 v{t0}, 3, v{t0}')
        e(f'v_lshl_add_u32 v{T_P}, v{t1}, 5, v{t0}')
        e('s_lshl_b32 s47, s47, 11')
        e('s_lshl_b32 s31, s3, 7')
        e('s_add_u32 s47, s47, s31')
        e(f's_add_u32 s47, s47, {POFF}')
        e('s_branch L_ts_done')
        e('L_ts_red:')
        self.srd(36, 14, 0)
        e('s_mov_b32 s45, 0')
        e(f'v_mov_b32 v{T_WO}, 0')
        e(f'v_mov_b32 v{T_WO+1}, 0')
        e(f'v_mov_b32 v{T_TR}, 0')
        e(f'v_mov_b32 v{T_TR+1}, 0')
        e('s_sub_u32 s35, s2, 144')
        e(f'v_lshrrev_b32 v{t0}, 3, v0')
        e(f'v_mul_u32_u24 v{t0}, 18432, v{t0}')
        e(f'v_and_b32 v{t1}, 7, v0')
        e(f'v_lshl_add_u32 v{T_A}, v{t1}, 4, v{t0}')
        e('s_lshl_b32 s44, s35, 9')
        e('s_lshl_b32 s31, s3, 7')
        e('s_add_u32 s44, s44, s31')
        e(f's_add_u32 s44, s44, {POFF}')
        e(f's_add_u32 s47, s44, {8 * 18432}')
        e(f'v_lshrrev_b32 v{t0}, 4, v0')
        e(f'v_lshl_add_u32 v{t0}, v{t1}, 1, v{t0}')
        e(f'v_lshlrev_b32 v{T_P}, 1, v{t0}')
        e('L_ts_done:')

    def align(self):
        self.e('.p2align 3')

    def make_tag(self):
        self.e('s_add_u32 s34, s34, 0x7f4a7c15')

    def pack4(self, dst, z, vtag):
        e = self.e
        e(f'v_perm_b32 v{dst}, v{z[0]}, v{z[1]}, s90')
        e(f'v_perm_b32 v{dst+1}, v{z[1]}, v{vtag}, s91')
        e(f'v_perm_b32 v{dst+2}, v{z[2]}, v{z[3]}, s90')
        e(f'v_perm_b32 v{dst+3}, v{z[3]}, v{vtag}, s92')

    def pack_consts(self):
        e = self.e
        e('s_mov_b32 s90, 0x07060501')
        e('s_mov_b32 s91, 0x07060100')
        e('s_mov_b32 s92, 0x07060302')
        e('s_mov_b32 s93, 0x05040100')
        e('s_mov_b32 s94, 0x0706000c')

    def check4(self, pieces, tmp):
        e = self.e
        for i, p in enumerate(pieces):
            e(f'v_perm_b32 v{tmp+i}, v{p+3}, v{p+1}, s93')
        for i, p in enumerate(pieces):
            e(f'v_xor_b32 v{tmp+i}, s34, v{tmp+i}')
        e(f'v_or3_b32 v{tmp}, v{tmp}, v{tmp+1}, v{tmp+2}')
        e(f'v_or_b32 v{tmp}, v{tmp}, v{tmp+3}')
        e(f'v_cmp_ne_u32 vcc, 0, v{tmp}')

    def unpack_sum4(self, pieces):
        e = self.e
        for p in pieces:
            e(f'v_perm_b32 v{p+1}, v{p+1}, v{p}, s94')
            e(f'v_perm_b32 v{p+3}, v{p+3}, v{p+2}, s94')
            e(f'v_and_b32 v{p}, 0xffffff00, v{p}')
            e(f'v_and_b32 v{p+2}, 0xffffff00, v{p+2}')
        p0, p1, p2, p3 = pieces
        for t in range(4):
            e(f'v_add_f32 v{p0+t}, v{p0+t}, v{p1+t}')
            e(f'v_add_f32 v{p2+t}, v{p2+t}, v{p3+t}')
        for t in range(4):
            e(f'v_add_f32 v{p0+t}, v{p0+t}, v{p2+t}')

    def publish(self, stores):
        e = self.e
        self.npub = getattr(self, 'npub', 0) + 1
        n = self.npub
        if self.loc:
            e('s_cmp_lg_u32 s49, 0')
            e(f's_cbranch_scc1 L_pubL{n}')
        for st in stores:
            e(st + (' sc1' if st.startswith('buffer_store') else ''))
        if self.loc:
            e(f's_branch L_pubE{n}')
            e(f'L_pubL{n}:')
            for st in stores:
                e(st)
            e(f'L_pubE{n}:')

    def read_loc(self, vz, vt):
        e = self.e
        if not self.loc:
            return
        e('s_mov_b32 s48, 0')
        e('L_locw:')
        e(f'ds_read_b32 v{vt}, v{vz} offset:{L_LOC}')
        e('s_add_u32 s48, s48, 1')
        e('s_waitcnt lgkmcnt(0)')
        e(f'v_readfirstlane_b32 s49, v{vt}')
        e('s_sub_u32 s49, s49, s34')
        e('s_cmp_lt_u32 s49, 2')
        e('s_cbranch_scc1 L_locd')
        e('s_sleep 2')
        e(f's_cmp_lt_u32 s48, {SPIN}')
        e('s_cbranch_scc1 L_locw')
        e('L_locd:')
        e('s_cmp_eq_u32 s49, 0')
        e('s_cselect_b32 s49, 1, 0')

    def wait_mid(self, lab, vzero, scnt):
        e = self.e
        e(f's_mov_b32 s{scnt}, 0')
        e(f'{lab}:')
        e(f's_sleep {self.slp}')
        for w in range(4):
            e(f'ds_read_b128 v[{16 + 4*w}:{19 + 4*w}], v{vzero} offset:{L_ML + 16*w}')
        e(f's_add_u32 s{scnt}, s{scnt}, 1')
        e('s_waitcnt lgkmcnt(0)')
        self.maxu(32, range(16, 32))
        e('v_cmp_eq_u32 vcc, -1, v32')
        e('s_nop 0')
        e(f's_cbranch_vccz {lab}_ok')
        e(f's_cmp_lt_u32 s{scnt}, {SPIN}')
        e(f's_cbranch_scc1 {lab}')
        e(f'{lab}_ok:')

    def maxu(self, dst, regs):
        e = self.e
        regs = list(regs)
        e(f'v_max3_u32 v{dst}, v{regs[0]}, v{regs[1]}, v{regs[2]}')
        regs = regs[3:]
        while len(regs) >= 2:
            e(f'v_max3_u32 v{dst}, v{dst}, v{regs[0]}, v{regs[1]}')
            regs = regs[2:]
        if regs:
            e(f'v_max_u32 v{dst}, v{dst}, v{regs[0]}')

    def helper(self):
        e = self.e
        rng = lambda r: f'v[{r}:{r+3}]'
        XA = 16
        WB = 64
        DQ = 40
        e('s_and_b32 s40, s32, 63')
        e('s_lshr_b32 s35, s32, 6')
        e('v_lshrrev_b32 v1, 3, v0')
        e('v_lshlrev_b32 v1, 13, v1')
        e('v_and_b32 v2, 7, v0')
        e('v_lshl_add_u32 v1, v2, 4, v1')
        e(f's_mul_i32 s42, s35, {144 * 8192}')
        e('s_lshl_b32 s41, s40, 7')
        e('s_add_u32 s42, s42, s41')
        e('v_and_b32 v2, 3, v0')
        e('v_mul_u32_u24 v2, 1152, v2')
        e('v_lshrrev_b32 v3, 4, v0')
        e('v_lshl_add_u32 v7, v3, 3, v2')
        e('v_lshl_add_u32 v2, v3, 4, v2')
        e('s_mul_i32 s43, s35, 288')
        e('s_waitcnt lgkmcnt(0)')
        e('s_load_dword s34, s[18:19], 0')
        self.srd(24, 4, 4 * 576 * 2)
        for kk in range(4):
            e(f'buffer_load_dwordx4 {rng(XA + 4*kk)}, v2, s[24:27], s43 offen offset:{kk*64}')
        e(f'buffer_load_dwordx2 v[{XA+16}:{XA+17}], v7, s[24:27], s43 offen offset:256')
        self.srd(20, 10, 576 * 4096 * 2)
        for i in range(18):
            e(f's_mov_b32 m0, {L_WQ + 1024 * i}')
            if i:
                e('s_add_u32 s42, s42, 0x10000')
            else:
                e('s_nop 0')
            if self.wqp and i >= self.wqp:
                e(f's_waitcnt vmcnt({self.wqp - 1})')
            if not self.abl & 1:
                e('buffer_load_dwordx4 v1, s[20:23], s42 offen nt lds')
        if self.pf:
            e('s_getpc_b64 s[54:55]')
            e('L_pc:')
            e(f's_sub_u32 s54, s54, L_pc-{NAME}')
            e('s_subb_u32 s55, s55, 0')
            e('v_lshlrev_b32 v14, 7, v0')
            e('global_load_dword v60, v14, s[54:55]')
            e('v_add_u32 v14, 0x2000, v14')
            e(f'v_cmp_gt_u32 vcc, L_codeend-{NAME}, v14')
            e('s_and_saveexec_b64 s[56:57], vcc')
            e('global_load_dword v61, v14, s[54:55]')
            e('s_mov_b64 exec, s[56:57]')
        self.srd(28, 18, WSWIN)
        for r in range(4):
            e(f'v_mov_b32 v{8+r}, -1')
        e('v_lshlrev_b32 v4, 4, v0')
        e('s_lshr_b32 s44, s32, 2')
        e(f's_mul_i32 s44, s44, {self.PS}')
        e(f's_add_u32 s44, s44, {PBASE}')
        e('s_and_b32 s43, s32, 3')
        e('s_lshl_b32 s45, s43, 9')
        e('s_add_u32 s45, s45, s44')
        e('s_lshl_b32 s47, s43, 8')
        e('s_add_u32 s47, s47, s44')
        e('s_mov_b64 exec, 15')
        e(f'ds_write_b128 v4, v[8:11] offset:{L_ML}')
        e('s_mov_b64 exec, -1')
        self.pack_consts()
        e('v_bfe_u32 v5, v0, 2, 2')
        e('v_lshlrev_b32 v5, 7, v5')
        e('v_and_b32 v6, 3, v0')
        e('v_lshl_add_u32 v5, v6, 3, v5')
        e('v_lshl_add_u32 v6, v3, 9, v5')
        e('v_lshl_add_u32 v5, v3, 10, v5')
        e(f's_mov_b32 s41, {16 * self.PS}')
        e('v_mul_lo_u32 v7, s41, v3')
        e('v_and_b32 v12, 15, v0')
        e('v_lshl_add_u32 v7, v12, 4, v7')
        e('s_lshr_b32 s46, s40, 2')
        e(f's_mul_i32 s46, s46, {self.PS}')
        e('s_lshl_b32 s41, s35, 10')
        e('s_add_u32 s46, s46, s41')
        e('s_and_b32 s41, s40, 3')
        e('s_lshl_b32 s41, s41, 8')
        e('s_add_u32 s46, s46, s41')
        e(f's_add_u32 s46, s46, {PBASE + 4096}')
        e('s_add_u32 s50, s44, 4096')
        e('v_and_b32 v12, 15, v0')
        e('v_lshlrev_b32 v12, 1, v12')
        e('v_lshl_add_u32 v12, v3, 7, v12')
        e('s_waitcnt lgkmcnt(0)')
        self.make_tag()
        e('v_mov_b32 v13, s34')
        self.keep_time(74)
        e('s_waitcnt vmcnt(0)')
        self.keep_time(60)
        for t in range(4):
            for kk in range(4):
                for hf in range(2):
                    r = WB + 20*t + 4*kk + 2*hf
                    e(f'ds_read_b64_tr_b16 v[{r}:{r+1}], v5 offset:{L_WQ + (32*kk + 4*hf)*128 + 32*t}')
            r = WB + 20*t + 16
            e(f'ds_read_b64_tr_b16 v[{r}:{r+1}], v6 offset:{L_WQ + 128*128 + 32*t}')
        for t in range(4):
            e(f's_waitcnt lgkmcnt({min(15, 9*(3-t))})')
            for kk in range(4):
                c = '0' if kk == 0 else rng(DQ + 4*t)
                e(f'v_mfma_f32_16x16x32_bf16 {rng(DQ + 4*t)}, {rng(XA + 4*kk)}, {rng(WB + 20*t + 4*kk)}, {c}')
        e('s_nop 3')
        for t in range(4):
            r = WB + 20*t + 16
            e(f'v_mfma_f32_16x16x16_bf16 {rng(DQ + 4*t)}, v[{XA+16}:{XA+17}], v[{r}:{r+1}], {rng(DQ + 4*t)}')
        e('s_nop 4')
        for t in range(4):
            for b in range(1, 4):
                e(f'v_mov_b32_dpp v{DQ+4*t}, v{DQ+4*t+b} quad_perm:[0,1,2,3] row_mask:{1 << b:#x} bank_mask:0xf')
        self.pack4(36, [DQ + 4*t for t in range(4)], 13)
        e('v_mov_b32 v5, 0')
        self.read_loc(5, 14)
        self.publish(['buffer_store_dwordx4 v[36:39], v7, s[28:31], s46 offen',
                      's_mov_b32 exec_hi, 0',
                      'buffer_store_dwordx4 v[8:11], v4, s[28:31], s45 offen',
                      's_mov_b32 exec_hi, -1'])
        self.keep_time(62)
        e('s_mov_b32 s48, 0')
        if self.qd:
            e(f's_sleep {self.qd}')
        if self.abl & 10:
            e('s_branch L_qok')
        e('L_qpoll:')
        for k in range(4):
            e(f'buffer_load_dwordx4 {rng(16 + 4*k)}, v4, s[28:31], s50 offen offset:{1024*k} sc1')
        e('s_add_u32 s48, s48, 1')
        e('s_waitcnt vmcnt(0)')
        self.check4([16, 20, 24, 28], 32)
        e('s_nop 0')
        e('s_cbranch_vccz L_qok')
        e(f's_sleep {self.qslp}')
        e(f's_cmp_lt_u32 s48, {SPIN}')
        e('s_cbranch_scc1 L_qpoll')
        e('L_qok:')
        self.unpack_sum4([16, 20, 24, 28])
        e('v_cvt_pk_bf16_f32 v20, v16, v17')
        e('v_cvt_pk_bf16_f32 v21, v18, v19')
        e(f'ds_write_b16 v12, v20 offset:{L_Q}')
        e(f'ds_write_b16_d16_hi v12, v20 offset:{L_Q + 32}')
        e(f'ds_write_b16 v12, v21 offset:{L_Q + 64}')
        e(f'ds_write_b16_d16_hi v12, v21 offset:{L_Q + 96}')
        e('s_waitcnt lgkmcnt(0)')
        self.keep_time(64)
        e('s_barrier')
        self.wait_mid('L_mlwait', 5, 48)
        e('s_waitcnt vmcnt(0)')
        for h in range(2):
            m = [16 + 4*w + 2*h for w in range(4)]
            d = 36 + 4*h
            e(f'v_max3_f32 v{d}, v{m[0]}, v{m[1]}, v{m[2]}')
            e(f'v_max_f32 v{d}, v{d}, v{m[3]}')
            for w in range(4):
                e(f'v_sub_f32 v{44+w}, v{m[w]}, v{d}')
                e(f'v_exp_f32 v{44+w}, v{44+w}')
            e(f'v_mov_b32 v{d+1}, s34')
            e(f'v_mul_f32 v{d+2}, v44, v{m[0]+1}')
            for w in range(1, 4):
                e(f'v_fmac_f32 v{d+2}, v{44+w}, v{m[w]+1}')
            e(f'v_mov_b32 v{d+3}, s34')
        e('s_mov_b64 exec, 1')
        if self.abl & 64:
            e('s_branch L_wrdy_ok')
        self.publish(['buffer_store_dwordx4 v[36:39], v5, s[28:31], s47 offen offset:2048',
                      'buffer_store_dwordx4 v[40:43], v5, s[28:31], s47 offen offset:2064'])
        e('s_mov_b32 s48, 0')
        for _ in range(self.mld):
            e('s_sleep 127')
        e('L_gml:')
        e(f's_sleep {self.slp}')
        for s_ in range(4):
            for h in range(2):
                e(f'buffer_load_dwordx4 {rng(64 + 8*s_ + 4*h)}, v5, s[28:31], s44 offen offset:{2048 + 256*s_ + 16*h} sc1')
        e('s_add_u32 s48, s48, 1')
        e('s_waitcnt vmcnt(0)')
        e('v_mov_b32 v32, 0')
        for i in range(8):
            e(f'v_xor_b32 v33, s34, v{65 + 4*i}')
            e(f'v_xor_b32 v34, s34, v{67 + 4*i}')
            e('v_or3_b32 v32, v32, v33, v34')
        e('v_cmp_ne_u32 vcc, 0, v32')
        e('s_nop 0')
        e('s_cbranch_vccz L_gmlok')
        e(f's_cmp_lt_u32 s48, {SPIN}')
        e('s_cbranch_scc1 L_gml')
        e('L_gmlok:')
        for h in range(2):
            m = [64 + 8*s_ + 4*h for s_ in range(4)]
            e(f'v_max3_f32 v36, v{m[0]}, v{m[1]}, v{m[2]}')
            e(f'v_max_f32 v36, v36, v{m[3]}')
            for s_ in range(4):
                e(f'v_sub_f32 v{44+s_}, v{m[s_]}, v36')
                e(f'v_exp_f32 v{44+s_}, v{44+s_}')
            e('s_nop 0')
            e(f'v_mul_f32 v37, v44, v{m[0]+2}')
            for s_ in range(1, 4):
                e(f'v_fmac_f32 v37, v{44+s_}, v{m[s_]+2}')
            e('v_rcp_f32 v37, v37')
            for w in range(4):
                e(f'v_sub_f32 v{44+w}, v{16 + 4*w + 2*h}, v36')
                e(f'v_exp_f32 v{44+w}, v{44+w}')
            e('s_nop 0')
            for w in range(4):
                e(f'v_mul_f32 v{44+w}, v{44+w}, v37')
            e('s_nop 0')
            for w in range(4):
                e(f'v_readfirstlane_b32 s{50 + 2*w + h}, v{44+w}')
        e('s_cmp_ge_u32 s2, 144')
        e('s_cbranch_scc1 L_wrdy_ok')
        e('s_mov_b64 exec, 0xffff')
        self.proj_role(40, 41)
        e(f's_mul_i32 s40, s40, {self.PS}')
        e(f's_add_u32 s40, s40, {PBASE + 2052}')
        e(f's_mov_b32 s41, {16 * self.PS}')
        e('v_lshrrev_b32 v6, 2, v0')
        e('v_mul_lo_u32 v6, s41, v6')
        e('v_and_b32 v7, 3, v0')
        e('v_lshl_add_u32 v6, v7, 8, v6')
        e('s_mov_b32 s48, 0')
        e('L_wrdy:')
        e(f's_sleep {self.slp}')
        e('buffer_load_dword v8, v6, s[28:31], s40 offen sc1')
        e('s_add_u32 s48, s48, 1')
        e('s_waitcnt vmcnt(0)')
        e('v_cmp_ne_u32 vcc, s34, v8')
        e('s_nop 0')
        e('s_cbranch_vccz L_wrdy_ok')
        e(f's_cmp_lt_u32 s48, {SPIN}')
        e('s_cbranch_scc1 L_wrdy')
        e('L_wrdy_ok:')
        e('s_mov_b64 exec, -1')
        e('v_lshlrev_b32 v5, 3, v0')
        if self.pf2:
            e('s_getpc_b64 s[60:61]')
            e('L_pc2:')
            e(f's_sub_u32 s60, s60, L_pc2-L_tailcode')
            e('s_subb_u32 s61, s61, 0')
            e('v_lshlrev_b32 v14, 7, v0')
            e(f'v_cmp_gt_u32 vcc, L_codeend-L_tailcode, v14')
            e('s_and_saveexec_b64 s[62:63], vcc')
            e('global_load_dword v61, v14, s[60:61]')
            e('s_mov_b64 exec, s[62:63]')
        e('s_mov_b32 s48, 0x55555555')
        e('s_setprio 3')
        self.keep_time(66)
        e('s_barrier')
        self.keep_time(68)
        for w in range(4):
            e(f'ds_read_b128 {rng(16 + 4*w)}, v4 offset:{L_O + 1024*w}')
        for w in range(4):
            e(f's_waitcnt lgkmcnt({3-w})')
            for r in range(4):
                if w == 0:
                    e(f'v_mul_f32 v{32+r}, s{50 + (r & 1)}, v{16+r}')
                else:
                    e(f'v_fmac_f32 v{32+r}, s{50 + 2*w + (r & 1)}, v{16 + 4*w + r}')
        e('v_cvt_pk_bf16_f32 v36, v32, v34')
        e('v_cvt_pk_bf16_f32 v37, v33, v35')
        e('v_min_u32 v36, 0xfffffffe, v36')
        e('v_min_u32 v37, 0xfffffffe, v37')
        e('s_nop 0')
        e('v_mov_b32_dpp v38, v36 quad_perm:[1,1,3,3] row_mask:0xf bank_mask:0xf')
        e('v_mov_b32_dpp v39, v37 quad_perm:[1,1,3,3] row_mask:0xf bank_mask:0xf')
        e('s_mov_b32 exec_lo, s48')
        e('s_mov_b32 exec_hi, s48')
        self.publish(['buffer_store_dwordx4 v[36:39], v5, s[28:31], s45 offen'])
        self.keep_time(70)
        if self.rb:
            e('s_barrier')
        e('s_cmp_ge_u32 s2, 144')
        e('s_cbranch_scc1 L_hdone')
        if not self.rb:
            e('s_barrier')
        e('s_barrier')
        e('s_barrier')
        e('L_hdone:')
        if self.stamps:
            e('s_mov_b64 exec, -1')
            for k, sr in enumerate((60, 62, 64, 66, 68, 70)):
                self.flush_time(6 + k, sr)
            self.flush_time(18, 74)
        e('s_endpgm')

    def balancer(self):
        e = self.e
        e('s_getreg_b32 s40, hwreg(HW_REG_XCC_ID, 0, 4)')
        e('v_lshlrev_b32 v1, 2, v0')
        e('v_lshlrev_b32 v2, 4, v0')
        for r in range(4):
            e(f'v_mov_b32 v{4+r}, 0')
        e(f'ds_write_b128 v2, v[4:7] offset:{L_PR + 1024}')
        if self.snap:
            for r in range(4):
                e(f'v_mov_b32 v{8+r}, 48')
            e(f'ds_write_b128 v2, v[8:11] offset:{L_PR}')
            e('v_and_b32 v18, 0x300, v2')
        else:
            e(f'ds_write_b128 v2, v[4:7] offset:{L_PR}')
        e('s_waitcnt lgkmcnt(0)')
        e('s_load_dword s34, s[18:19], 0')
        self.srd(28, 18, WSWIN)
        e('s_mul_i32 s46, s40, 4352')
        e(f's_add_u32 s46, s46, {XOFF}')
        e('s_lshl_b32 s40, s40, 12')
        e(f's_add_u32 s40, s40, {BOFF}')
        e('s_lshr_b32 s41, s2, 3')
        e('s_lshl_b32 s41, s41, 2')
        e('v_mov_b32 v3, s41')
        e('s_mov_b32 s48, 0')
        e('s_waitcnt lgkmcnt(0)')
        self.make_tag()
        if self.loc:
            e('s_and_b32 s41, s2, 7')
            e('s_add_u32 s41, s41, s34')
            e('v_mov_b32 v8, s41')
            e('s_mov_b64 exec, 1')
            e('buffer_store_dword v8, v3, s[28:31], s40 offen offset:256')
            e('s_mov_b32 exec_lo, -1')
            e('L_rz:')
            e('buffer_load_dword v9, v1, s[28:31], s40 offen offset:256 sc1')
            e('s_add_u32 s48, s48, 1')
            e('s_waitcnt vmcnt(0)')
            e('v_cmp_ne_u32 vcc, s41, v9')
            e('s_nop 0')
            e('s_cbranch_vccz L_rzok')
            e('s_cmp_lt_u32 s48, 6')
            e('s_cbranch_scc1 L_rz')
            e('s_add_u32 s41, s34, 1')
            e('s_branch L_rzdone')
            e('L_rzok:')
            e('s_mov_b32 s41, s34')
            e('L_rzdone:')
            e('v_mov_b32 v8, s41')
            e(f'ds_write_b32 v4, v8 offset:{L_LOC}')
            e('s_mov_b64 exec, -1')
        if self.hot:
            e('s_lshr_b32 s50, s32, 2')
            e(f's_mul_i32 s50, s50, {self.PS}')
            e(f's_add_u32 s50, s50, {PBASE}')
            e('s_and_b32 s51, s32, 3')
            e('s_lshl_b32 s52, s51, 10')
            e('s_add_u32 s52, s52, 4096')
            e('s_lshl_b32 s51, s51, 9')
            e('s_sub_u32 s51, s51, 1024')
            e('v_mov_b32 v20, s52')
            e('v_mov_b32 v21, s51')
            e('v_cmp_gt_u32 vcc, 8, v0')
            e('s_nop 1')
            e('v_cndmask_b32 v20, v21, v20, vcc')
            e('v_lshl_add_u32 v20, v0, 7, v20')
        if self.xb:
            e(f's_mov_b32 s60, {self.ck0}')
            for j in range(8):
                e(f's_mov_b32 s{72+j}, -1')
                e(f's_mov_b32 s{80+j}, 0')
        e('s_cmp_lt_u32 s2, 144')
        e(f's_cselect_b32 s61, {self.bias + (self.sb + 1) // 2}, {self.bias - self.sb // 2}')
        e('s_lshl_b32 s34, s34, 16')
        e('s_barrier')
        e('L_bal:')
        e(f's_sleep {self.bslp}')
        e(f'ds_read2st64_b32 v[8:9], v4 offset0:{L_PR // 256} offset1:{L_PR // 256 + 1}')
        e(f'ds_read2st64_b32 v[10:11], v4 offset0:{L_PR // 256 + 2} offset1:{L_PR // 256 + 3}')
        if self.snap:
            e(f'ds_read_b32 v19, v18 offset:{L_PR}')
        e('s_add_u32 s48, s48, 1')
        e('s_waitcnt lgkmcnt(0)')
        e('v_add3_u32 v8, v8, v9, v10')
        e('v_add_u32 v8, v8, v11')
        e('v_or_b32 v9, s34, v8')
        e('v_readfirstlane_b32 s42, v8')
        e('s_mov_b64 exec, 1')
        e('buffer_store_dword v9, v3, s[28:31], s40 offen')
        e('s_mov_b64 exec, -1')
        e(f's_cmp_ge_u32 s42, {4 * 248}')
        e('s_cbranch_scc1 L_end')
        if self.xb:
            e('s_cmp_ge_u32 s2, 8')
            e('s_cbranch_scc1 L_nosl')
            for j in range(8):
                e(f's_load_dword s{64+j}, s[18:19], {XOFF + 4352*j} glc')
            e('L_nosl:')
        e('v_mov_b32 v10, 0')
        e(f's_mov_b32 exec_hi, {1 if self.xb else 0}')
        e('buffer_load_dword v10, v1, s[28:31], s40 offen sc1')
        if self.hot:
            e('s_mov_b64 exec, 0xfff')
            e('buffer_load_dword v21, v20, s[28:31], s50 offen sc1')
            e('s_mov_b32 exec_lo, -1')
        e('s_mov_b32 exec_hi, -1')
        e('s_waitcnt vmcnt(0)')
        e('v_xor_b32 v10, s34, v10')
        e('v_add_u32 v11, -1, v10')
        e('v_cmp_gt_u32 vcc, 0xffff, v11')
        e('s_nop 1')
        e('v_cndmask_b32 v10, 0, v10, vcc')
        e('s_bcnt1_i32_b32 s43, vcc_lo')
        for k in (1, 2, 4, 8):
            e('s_nop 1')
            e(f'v_add_u32_dpp v10, v10, v10 row_ror:{k} row_mask:0xf bank_mask:0xf')
        e('s_lshl_b32 s43, s43, 2')
        e('v_cvt_f32_u32 v12, s43')
        e('v_readlane_b32 s44, v10, 0')
        e('v_readlane_b32 s45, v10, 16')
        e('v_rcp_f32 v12, v12')
        e('s_add_u32 s44, s44, s45')
        e('v_cvt_f32_u32 v13, s44')
        e('v_mul_f32 v13, v13, v12')
        e('v_cvt_u32_f32 v16, v13')
        e('v_add_u32 v12, s61, v16')
        if self.xb:
            e('v_readlane_b32 s45, v10, 32')
            e('s_cmp_eq_u32 s45, 0')
            e('s_cselect_b32 s45, 32, s45')
            e('s_sub_u32 s45, s45, 32')
            e('v_add_u32 v12, s45, v12')
        if self.snap:
            e('v_sub_u32 v12, v19, v12')
        e('v_mov_b32 v13, v12')
        e('v_mov_b32 v14, v12')
        e('v_mov_b32 v15, v12')
        e(f'ds_write_b128 v2, v[12:15] offset:{L_PR + 1024}')
        if self.xb:
            e('s_cmp_ge_u32 s2, 8')
            e('s_cbranch_scc1 L_balnext')
            e('v_readfirstlane_b32 s47, v16')
            e('v_or_b32 v17, s34, v16')
            e('s_mov_b64 exec, 1')
            e('s_cmp_lt_u32 s47, s60')
            e('s_cbranch_scc1 L_nopub')
            e('buffer_store_dword v17, v4, s[28:31], s46 offen sc1')
            e(f's_add_u32 s60, s60, {self.ck}')
            e('L_nopub:')
            e('s_mov_b32 s43, 0')
            e('s_mov_b32 s44, 0')
            e('s_waitcnt lgkmcnt(0)')
            for j in range(8):
                e(f's_xor_b32 s{64+j}, s{64+j}, s34')
                e(f's_or_b32 s43, s43, s{64+j}')
                e(f's_sub_i32 s45, s{64+j}, s47')
                e(f's_cmp_lg_u32 s{64+j}, s{72+j}')
                e(f's_cselect_b32 s{80+j}, s45, s{80+j}')
                e(f's_mov_b32 s{72+j}, s{64+j}')
                e(f's_add_i32 s44, s44, s{80+j}')
            e('s_ashr_i32 s44, s44, 3')
            e(f's_add_i32 s44, s44, {self.lagc}')
            e(f's_max_i32 s44, s44, {-self.xmin}')
            e(f's_min_i32 s44, s44, {self.xmax}')
            e('s_add_i32 s44, s44, 32')
            e('s_cmp_lt_u32 s43, 0x10000')
            e('s_cselect_b32 s44, s44, 0')
            e('s_or_b32 s44, s44, s34')
            e('v_mov_b32 v17, s44')
            e('buffer_store_dword v17, v4, s[28:31], s40 offen offset:128')
            e('s_mov_b64 exec, -1')
            e('L_balnext:')
        e(f's_cmp_lt_u32 s48, {SPIN}')
        e('s_cbranch_scc1 L_bal')
        e('s_endpgm')

    def build(self):
        e = self.e
        e('.amdgcn_target "amdgcn-amd-amdhsa--gfx950"')
        e('.text')
        e(f'.globl {NAME}')
        e('.p2align 8')
        e(f'.type {NAME},@function')
        e(f'{NAME}:')
        e('s_cmp_ge_u32 s2, 256')
        e('s_cbranch_scc1 L_end')
        self.keep_time(58)
        if self.clk:
            e('s_memrealtime s[88:89]')
        e('s_load_dwordx16 s[4:19], s[0:1], 0')
        e('v_lshrrev_b32 v1, 6, v0')
        e('v_and_b32 v0, 63, v0')
        e('v_readfirstlane_b32 s3, v1')
        e('s_and_b32 s32, s2, 15')
        e('s_lshl_b32 s32, s32, 2')
        e('s_bfe_u32 s31, s2, 0x20004')
        e('s_or_b32 s32, s32, s31')
        e('s_and_b32 s31, s2, 0xc0')
        e('s_or_b32 s32, s32, s31')
        e('s_cmp_eq_u32 s3, 4')
        e('s_cbranch_scc1 L_helper')
        if self.bal:
            e('s_cmp_eq_u32 s3, 5')
            e('s_cbranch_scc1 L_balancer')
        self.stream()
        e('L_helper:')
        self.helper()
        if self.bal:
            e('L_balancer:')
            self.balancer()
        e('L_end:')
        e('s_endpgm')
        e('L_codeend:')
        nv = 256 if self.stamps else 248
        e('.section .rodata,"a"')
        e('.p2align 6')
        e(f'.amdhsa_kernel {NAME}')
        e(f'  .amdhsa_next_free_vgpr {nv}')
        e('  .amdhsa_next_free_sgpr 96')
        e(f'  .amdhsa_accum_offset {nv}')
        e('  .amdhsa_group_segment_fixed_size 0')
        e('  .amdhsa_kernarg_size 64')
        e('  .amdhsa_user_sgpr_count 2')
        e('  .amdhsa_user_sgpr_kernarg_segment_ptr 1')
        e('  .amdhsa_system_sgpr_workgroup_id_x 1')
        e('.end_amdhsa_kernel')
        errs = check([l.lstrip() if l.lstrip().startswith('.') else l for l in self.o])
        for x in errs:
            print('HAZARD', x, file=sys.stderr)
        txt = HEADER + DOC + f'; @launch grid=(256,1,1) block=({384 if self.bal else 320},1,1) lds={LDS_BYTES}\n' + '\n'.join(self.o) + '\n'
        return txt, errs


if __name__ == '__main__':
    kw = {}
    out = sys.argv[1]
    for a in sys.argv[2:]:
        k, v = a.split('=')
        kw[k] = int(v)
    txt, errs = G(**kw).build()
    open(out, 'w').write(txt)
    sys.exit(1 if errs else 0)
```

```python
import sys, struct
from hazard import check

NAME = "standalone__gqa_block_cached__decode_kernel"

HEADER = """; Kernarg layout for this problem (64 bytes, ptrs only, base s[0:1]):
"""

DOC = """;
"""

PBASE = 0x100000
POFF = 0x80000
WSWIN = 0x10000000
BOFF = 0x10000
XOFF = 0x20000
STAMP0 = 0x10000000
STAMP1 = 0x10100000

L_WQ = 0x0000
L_WO = 0x5000
L_A = 0x0000
L_Q = 0xD000
L_ML = 0xD200
L_O = 0xD400
L_PR = 0xE400
LDS_BYTES = 0xEC00

def f2u(x):
    return struct.unpack('<I', struct.pack('<f', x))[0]

SCALE = f2u(128 ** -0.5 * 1.4426950408889634)
SPIN = 1 << 20
T_WO, T_TR, T_A, T_P, T_OL, T_AW = 184, 186, 188, 189, 190, 191


class G:
    def __init__(self, D=5, LV=16, stamps=False, D0=None, dbgt=0, kf=1, vf=1, pf=1, enc=-1, prio=3, slp=64, qslp=2, pre=2, dfn=0, d2=16, qd=0, clr=0, abl=0, kfirst=0, wqp=0, mld=0, wod=1, dper=0, il=0, pslp=0, rslp=0, PS=8192, clk=0, tau=1094, toff=200, dh=10, bal=1, bias=9, bslp=1, bstep=4, xm=1, p4=1, osc=0, xb=1, lagc=11, lper=2, xmax=12, loc=1, hot=0, ck=40, ck0=72, him=8, xmin=12, dl=4, encm=1, piece=16384, rd=0, rsp=2, rb=1, sb=0, snap=0, fin=0, df=12, fpre=0, pw=5, pw0=2, pwall=1, pf2=0, rsh=-1, lay=0, early=0, lnt=0, padt=0, padr=0):
        self.o = []
        self.D = D
        self.D0 = D0 or D
        self.LV = LV
        self.stamps = stamps
        self.dbgt = dbgt
        FL = ['', ' nt', ' sc1', ' sc1 nt', ' sc0 sc1', ' sc0 sc1 nt', ' sc0', ' sc0 nt']
        self.kf, self.vf = FL[kf], FL[vf]
        self.pf = pf
        self.enc = enc
        self.prio = prio
        self.slp = slp
        self.qslp = qslp
        self.pre = pre
        self.qd = qd
        self.abl = abl
        self.mld = mld
        self.dper = dper
        self.il = il
        self.PS = PS
        self.padt, self.padr = padt, padr
        self.lnt = lnt
        self.early = early
        self.lay = lay
        self.rsh = rsh
        self.pf2 = pf2
        self.pw, self.pw0, self.pwall = pw, pw0, pwall
        self.fpre = fpre
        self.fin, self.df = fin, df
        self.snap = snap
        self.sb = sb
        self.rb = rb
        self.rd, self.rsp = rd, rsp
        self.piece = piece
        self.encm = encm
        self.him, self.xmin, self.dl = him, xmin, dl
        self.ck, self.ck0 = ck, ck0
        self.hot = hot
        self.loc = loc
        self.xb, self.lagc, self.lper, self.xmax = xb, lagc, lper, xmax
        self.osc = osc
        self.xm, self.p4 = xm, p4
        self.bal, self.bias, self.bslp, self.bstep = bal, bias, bslp, bstep
        self.clk, self.tau, self.toff, self.dh = clk, tau, toff, dh
        self.pslp = pslp
        self.rslp = rslp
        self.wod = wod
        self.kfirst = kfirst
        self.wqp = wqp
        self.clr = clr
        self.dfn = dfn
        self.d2 = d2

    def e(self, s):
        self.o.append(s if s.endswith(':') or s.startswith('.') or s.startswith(';') else '    ' + s)

    def stamp(self, idx, sbase=80):
        if not self.stamps:
            return
        e = self.e
        e('s_memrealtime s[80:81]')
        e(f's_add_u32 s82, s18, {STAMP1 + idx * 8}')
        e('s_addc_u32 s83, s19, 0')
        e('s_lshl_b32 s84, s2, 8')
        e('s_waitcnt lgkmcnt(0)')
        e('v_mov_b32 v250, s84')
        e('v_mov_b32 v252, s80')
        e('v_mov_b32 v253, s81')
        e('s_mov_b64 s[56:57], exec')
        e('s_mov_b64 exec, 1')
        e('global_store_dwordx2 v250, v[252:253], s[82:83]')
        e('s_mov_b64 exec, s[56:57]')

    def keep_time(self, sreg):
        if self.stamps or self.dbgt:
            self.e(f's_memrealtime s[{sreg}:{sreg+1}]')

    def flush_time(self, idx, sreg):
        if not self.stamps:
            return
        e = self.e
        e(f's_add_u32 s82, s18, {STAMP1 + idx * 8}')
        e('s_addc_u32 s83, s19, 0')
        e('s_lshl_b32 s84, s2, 8')
        e('s_waitcnt lgkmcnt(0)')
        e('v_mov_b32 v250, s84')
        e(f'v_mov_b32 v252, s{sreg}')
        e(f'v_mov_b32 v253, s{sreg+1}')
        e('s_mov_b64 s[56:57], exec')
        e('s_mov_b64 exec, 1')
        e('global_store_dwordx2 v250, v[252:253], s[82:83]')
        e('s_mov_b64 exec, s[56:57]')

    def srd(self, d, base, size, add=None):
        e = self.e
        if add is None:
            e(f's_mov_b32 s{d}, s{base}')
            e(f's_mov_b32 s{d+1}, s{base+1}')
        else:
            e(f's_add_u32 s{d}, s{base}, {add}')
            e(f's_addc_u32 s{d+1}, s{base+1}, 0')
        e(f's_mov_b32 s{d+2}, {size:#x}')
        e(f's_mov_b32 s{d+3}, 0x20000')

    def stream(self):
        e, D, LV = self.e, self.D, 16
        vK, vV = 1, 2
        QB = [4, 8]
        DT = [12, 16]
        T, X = 20, 21
        A = 24
        MK = 28
        OA = 32
        M, L, T2, T3 = 36, 37, 38, 39
        S = 40
        RING = 56
        VP = 184
        rng = lambda r: f'v[{r}:{r+3}]'
        kslot = lambda n: RING + 4 * (n % 32)
        vslot = lambda v: VP + 4 * v if v < 16 else RING + 4 * ((v - 16) % 32)
        kpos = lambda n: 16 + n
        vpos = lambda v: v if v < 16 else 128 + v
        st = {'issued': -1, 'landed': -1}
        rpp = self.piece // 16384
        step = lambda n: 0x4000 + (3 * self.piece if self.piece < 0x80000 and (n // 4) % rpp == rpp - 1 else 0)

        def need_landed(x):
            if x > st['landed']:
                e(f's_waitcnt vmcnt({st["issued"] - x})')
                st['landed'] = x

        lab = [0]

        def clk_step():
            e('s_waitcnt lgkmcnt(0)')
            e('s_sub_u32 s86, s88, s85')
            e('s_mul_i32 s86, s86, 10')
            e('s_cmp_gt_u32 s86, s87')
            e('s_cselect_b32 vcc_lo, 1, 0')
            e(f's_add_u32 s87, s87, {self.tau}')
            e('s_memrealtime s[88:89]')

        vPos, vRef, vPA = 22, 23, 3

        def bal_step(i):
            if not self.bal:
                return
            if i % self.bstep == self.bstep - 2:
                e(f'v_add_u32 v{vPos}, {self.bstep}, v{vPos}')
                e(f'ds_write_b32 v{vPA}, v{vPos} offset:{L_PR}')
                e(f'ds_read_b32 v{vRef}, v{vPA} offset:{L_PR + 1024}')
            if i % self.bstep == self.bstep - 1:
                e('s_waitcnt lgkmcnt(0)')
                if self.snap:
                    e(f'v_cmp_gt_i32 vcc, 0, v{vRef}')
                    e(f'v_cmp_lt_i32 s[92:93], {self.him}, v{vRef}')
                    return
                e(f'v_cmp_gt_u32 vcc, v{vRef}, v{vPos}')
                if self.him:
                    e(f'v_sub_u32 v{vRef}, v{vPos}, v{vRef}')
                    e(f'v_add_u32 v{vRef}, {-self.him - 1}, v{vRef}')
                    e(f'v_cmp_gt_u32 s[92:93], 32, v{vRef}')

        def gate(pos, d):
            if (self.clk or self.bal) and st.get('adapt') and d == D:
                lab[0] += 1
                e(f's_cbranch_vccnz L_dg{lab[0]}')
                e(f's_waitcnt vmcnt({D-1})')
                if self.him:
                    e('s_cmp_eq_u32 s92, 0')
                    e(f's_cbranch_scc1 L_dg{lab[0]}')
                    e(f's_waitcnt vmcnt({self.dl-1})')
                e(f'L_dg{lab[0]}:')
                d = st.get('dh', self.dh)
            if self.dper and d == D and pos % self.dper == 0:
                d = D + 1
            if pos >= d:
                e(f's_waitcnt vmcnt({d-1})')
                st['landed'] = max(st['landed'], pos - d)
            st['issued'] = pos

        def kissue(n, d=None):
            gate(kpos(n), d or D)
            e(f'buffer_load_dwordx4 {rng(kslot(n))}, v{vK}, s[20:23], s28 offen offset:{(n % 4) * 1024}{self.kf}')
            if n % 4 == 3:
                e(f's_add_u32 s28, s28, {step(n):#x}')
                if self.rsh >= 0 and n % 32 == 31:
                    e('s_and_b32 s28, s28, 0x1fffff')

        def vissue(v, d=None):
            if 16 <= v < 32 and st.get('adapt'):
                bal_step(v)
            gate(vpos(v), d or D)
            e(f'buffer_load_dwordx4 {rng(vslot(v))}, v{vV}, s[24:27], s33 offen offset:{(v % 4) * 1024}{self.vf}')
            if v % 4 == 3:
                e(f's_add_u32 s33, s33, {step(v):#x}')
                if self.rsh >= 0 and v % 32 == 31:
                    e('s_and_b32 s33, s33, 0x1fffff')

        def kadds(pair, sreg):
            d = DT[pair & 1]
            i = pair & 3
            e(f'v_add_f32_dpp v{T}, v{d + (i+1) % 4}, v{d + i} row_ror:12 row_mask:0xf bank_mask:0xf')
            e(f'v_add_f32_dpp v{T}, v{d + (i+2) % 4}, v{T} row_ror:8 row_mask:0xf bank_mask:0xf')
            e(f'v_add_f32_dpp v{sreg}, v{d + (i+3) % 4}, v{T} row_ror:4 row_mask:0xf bank_mask:{1 << i:#x}')

        def kmfma(n):
            d = DT[(n >> 1) & 1]
            c = '0' if n % 2 == 0 else rng(d)
            e(f'v_mfma_f32_16x16x32_bf16 {rng(d)}, {rng(kslot(n))}, {rng(QB[n & 1])}, {c}')

        def shift4():
            for i in range(12):
                e(f'v_mov_b32 v{S+i}, v{S+i+4}')

        def vprep(pn, yreg, A=A):
            i = pn & 7
            e(f'v_mov_b32_dpp v{X}, v{yreg} row_newbcast:{2*i} row_mask:0xf bank_mask:0x3')
            e(f'v_mov_b32_dpp v{X}, v{yreg} row_newbcast:{2*i+1} row_mask:0xf bank_mask:0xc')
            for r in range(4):
                e(f'v_and_b32 v{A+r}, v{X}, v{MK+r}')

        def vmfma(v, first=False, A=A):
            c = '0' if first else rng(OA)
            e(f'v_mfma_f32_16x16x32_bf16 {rng(OA)}, {rng(A)}, {rng(vslot(v))}, {c}')

        e(f'v_lshlrev_b32 v{vV}, 4, v0')
        e('s_and_b32 s31, s32, 3')
        e(f's_mul_i32 s31, s31, {self.piece}')
        e('s_lshl_b32 s33, s3, 12')
        e('s_add_u32 s33, s33, s31')
        if self.rsh >= 0:
            e(f's_bfe_u32 s31, s32, {0x20000 | self.rsh:#x}')
            e('s_lshl_b32 s31, s31, 19')
            e('s_add_u32 s33, s33, s31')
        e('s_mov_b32 s28, s33')
        e('s_lshr_b32 s31, s32, 2')
        e('s_lshl_b32 s31, s31, 21')
        if self.prio:
            e(f's_setprio {self.prio}')
        e('s_waitcnt lgkmcnt(0)')
        self.keep_time(70)
        if self.clk:
            e('s_mov_b32 s85, s88')
        self.srd(24, 8, 0x200000, add='s31')
        for v in range(min(self.D0, 16)):
            vissue(v, d=self.D0)
        e('s_load_dword s34, s[18:19], 0')
        self.srd(20, 6, 0x200000, add='s31')
        e('v_lshrrev_b32 v3, 4, v0')
        e('v_bfe_u32 v4, v0, 2, 2')
        e('v_and_b32 v5, 3, v0')
        e('v_lshlrev_b32 v3, 6, v3')
        e('v_lshlrev_b32 v4, 8, v4')
        e('v_lshlrev_b32 v5, 4, v5')
        e(f'v_add3_u32 v{vK}, v3, v4, v5')
        e(f's_mov_b32 s30, {SCALE:#x}')
        e('v_lshrrev_b32 v3, 3, v0')
        e('v_xor_b32 v3, v3, v0')
        e('v_and_b32 v3, 1, v3')
        e('v_lshlrev_b32 v3, 4, v3')
        e('v_mov_b32 v4, 0xffff')
        e('v_lshlrev_b32 v3, v3, v4')
        e('v_bfe_u32 v4, v0, 1, 2')
        for r in range(4):
            e(f'v_cmp_eq_u32 vcc, {r}, v4')
            e('s_nop 1')
            e(f'v_cndmask_b32 v{MK+r}, 0, v3, vcc')
        e('v_and_b32 v3, 1, v0')
        e('v_lshlrev_b32 v3, 8, v3')
        e('v_lshrrev_b32 v4, 2, v0')
        e(f'v_lshl_add_u32 v{T2}, v4, 4, v3')
        e('v_and_b32 v3, 2, v0')
        e('v_cmp_ne_u32 vcc, 0, v3')
        for v in range(min(self.D0, 16), 16):
            vissue(v, d=self.D0)
            if v == self.D0:
                self.keep_time(72)
        self.keep_time(76)
        for n in range(32):
            kissue(n, d=self.D0 + max(0, n - (31 - self.pre)))
            if n == 8:
                self.keep_time(78)
        self.keep_time(60)
        if self.lay:
            e('s_branch L_stream2')
            self.others()
            self.align()
            e('L_stream2:')
        e('s_barrier')
        e(f'ds_read_b128 {rng(DT[0])}, v{T2} offset:{L_Q}')
        e('s_mov_b32 s29, 0')
        e(f's_waitcnt lgkmcnt(0) vmcnt({min(self.D0, 30)})')
        self.keep_time(62)
        self.make_tag()
        for r in range(4):
            e(f'v_cndmask_b32 v{QB[1]+r}, 0, v{DT[0]+r}, vcc')
            e(f'v_cndmask_b32 v{QB[0]+r}, v{DT[0]+r}, 0, vcc')
        e('s_nop 1')
        if self.clk:
            e('s_mov_b64 vcc, 0')
            e('s_memrealtime s[88:89]')
            e(f's_mov_b32 s87, {self.toff * 10 + 6 * self.tau}')
            st['adapt'] = True
        if self.bal:
            e('s_mov_b64 vcc, 0')
            e('s_mov_b64 s[92:93], 0')
            e(f'v_mov_b32 v{vPos}, 48')
            e(f'v_lshlrev_b32 v{vPA}, 2, v0')
            e('s_lshl_b32 s31, s3, 8')
            e(f'v_add_u32 v{vPA}, s31, v{vPA}')
            st['adapt'] = True
        self.align()
        e('L_kloop:')
        for p in range(16):
            n = 2 * p
            if self.clk and p % 4 == 3:
                clk_step()
            bal_step(n)
            kmfma(n)
            kissue(n + 32)
            bal_step(n + 1)
            kmfma(n + 1)
            kadds((p - 1) % 16, S + 12 + (((p - 1) % 16) >> 2))
            if p == 0:
                shift4()
            kissue(n + 33)
        e('s_add_u32 s29, s29, 1')
        e('s_cmp_lt_u32 s29, 3')
        e('s_cbranch_scc1 L_kloop')
        nv = 16
        st['issued'], st['landed'] = kpos(127), kpos(127) - max(D + 1, self.dh if (self.clk or self.bal) else 0)
        for p in range(16):
            n = 2 * p
            need_landed(kpos(96 + n + 1))
            kmfma(n)
            kmfma(n + 1)
            e('s_nop 0')
            kadds((p - 1) % 16, S + 12 + (((p - 1) % 16) >> 2))
            if p == 0:
                shift4()
            if p % 3 == 0:
                vissue(nv); nv += 1
            else:
                e('s_nop 1')
        e('s_nop 1')
        kadds(15, S + 15)
        e(f'v_max3_f32 v{M}, v{S}, v{S+1}, v{S+2}')
        e(f'v_max3_f32 v{T}, v{S+3}, v{S+4}, v{S+5}')
        for i in range(6, 14, 4):
            e(f'v_max3_f32 v{M}, v{M}, v{S+i}, v{S+i+1}')
            e(f'v_max3_f32 v{T}, v{T}, v{S+i+2}, v{S+i+3}')
        e(f'v_max3_f32 v{M}, v{M}, v{S+14}, v{S+15}')
        e(f'v_max_f32 v{M}, v{M}, v{T}')

        def allreduce(reg, op):
            for k in (2, 4, 8):
                e('s_nop 1')
                e(f'{op}_dpp v{reg}, v{reg}, v{reg} row_ror:{k} row_mask:0xf bank_mask:0xf')
            for sw in ('v_permlane16_swap_b32', 'v_permlane32_swap_b32'):
                e(f'v_mov_b32 v{T}, v{reg}')
                e('s_nop 1')
                e(f'{sw} v{reg}, v{T}')
                e(f'{op} v{reg}, v{reg}, v{T}')
        allreduce(M, 'v_max_f32')
        e(f'v_mul_f32 v{M}, s30, v{M}')
        vissue(nv); nv += 1
        for i in range(16):
            e(f'v_fma_f32 v{S+i}, v{S+i}, s30, -v{M}')
            e(f'v_exp_f32 v{S+i}, v{S+i}')
            if i == 10:
                vissue(nv); nv += 1
        e(f'v_add_f32 v{L}, v{S}, v{S+1}')
        for i in range(2, 16):
            e(f'v_add_f32 v{L}, v{L}, v{S+i}')
        vissue(nv); nv += 1
        for i in range(16):
            t = T2 if i & 1 else T3
            e(f'v_mov_b32_dpp v{t}, v{S+i} quad_perm:[1,0,3,2] row_mask:0xf bank_mask:0xf')
            e(f'v_cvt_pk_bf16_f32 v{S+i}, v{S+i}, v{t}')
        vissue(nv); nv += 1
        allreduce(L, 'v_add_f32')
        e(f'v_lshlrev_b32 v{T2}, 3, v0')
        e('s_lshl_b32 s31, s3, 4')
        e(f'v_add_u32 v{T2}, s31, v{T2}')
        e('s_mov_b64 exec, 3')
        e(f'ds_write_b64 v{T2}, v[{M}:{L}] offset:{L_ML}')
        e('s_mov_b64 exec, -1')
        self.keep_time(64)
        for pn in range(16):
            vprep(pn, S + (pn >> 3))
            if pn % 3 == 0 and pn < 15:
                vissue(nv); nv += 1
            else:
                e('s_nop 1')
            vmfma(pn, first=(pn == 0))
        assert nv <= 32, nv
        self.tail_setup()
        while nv < 32:
            vissue(nv); nv += 1
        e('s_mov_b32 s29, 0')
        if self.clk:
            e('s_waitcnt lgkmcnt(0)')
            e('s_memrealtime s[88:89]')
            e(f's_mov_b32 s87, {self.toff * 10 + 20 * self.tau}')
        elif not self.bal:
            e('s_mov_b64 vcc, 0')
        self.align()
        e('L_vloop:')
        sw_it, sw_i = divmod(96 - self.dfn, 32)
        for i in range(32):
            p2 = 16 + i
            if self.dfn and i == sw_i:
                e(f's_cmp_ge_u32 s29, {sw_it}')
                e('s_cselect_b32 vcc_lo, 1, 0')
            if self.clk and i % 8 == 7:
                clk_step()
            bal_step(i)
            if self.fin and i >= 32 - self.fin:
                st['dh'] = self.df
                if i == 32 - self.fin or i % self.bstep == self.bstep - 1:
                    e('s_cmp_eq_u32 s29, 2')
                    e('s_cselect_b32 vcc_lo, 1, vcc_lo')
            vprep(p2, S + (p2 >> 3))
            if self.dfn:
                e(f's_cbranch_vccnz L_g{i}')
                e(f's_waitcnt vmcnt({D-1})')
                e(f'L_g{i}:')
                vissue(32 + i, d=self.d2)
            else:
                vissue(32 + i)
            vmfma(p2)
        shift4()
        e('s_add_u32 s29, s29, 1')
        e('s_cmp_lt_u32 s29, 3')
        e('s_cbranch_scc1 L_vloop')
        e('L_tailcode:')
        self.keep_time(66)

        def wo_issue(i):
            e('s_mov_b32 m0, s46')
            e('s_add_u32 s46, s46, 1024')
            e(f'buffer_load_dwordx4 v{T_WO + ((i >> 1) & 1)}, s[36:39], s45 offen nt lds')
            e('s_add_u32 s45, s45, 9216')
        if self.pw:
            if not self.pwall:
                e('s_cbranch_vccnz L_fburst')
            nwo = 0
            for _ in range(self.pw0):
                wo_issue(nwo); nwo += 1
            for i in range(LV):
                p2 = 16 + i
                vprep(p2, S + (p2 >> 3))
                if LV - 1 - i < max(D + 1, self.dh, self.df if self.fin else 0):
                    e(f's_waitcnt vmcnt({LV - 1 - i + nwo})')
                    e('s_nop 0')
                else:
                    e('s_nop 1')
                vmfma(p2)
                if LV - 1 - i < self.pw and nwo < 8:
                    wo_issue(nwo); nwo += 1
            while nwo < 8:
                wo_issue(nwo); nwo += 1
            if not self.pwall:
                e('s_branch L_fdone')
                e('L_fburst:')
        single = self.pw and self.pwall
        for i in range(0 if single else 8):
            wo_issue(i)
        dmax = self.d2 if self.dfn else max(D + 1, self.df if self.fin else 0, self.dh if (self.clk or self.bal) else 0)
        for i in range(0 if single else LV - self.fpre):
            p2 = 16 + i
            vprep(p2, S + (p2 >> 3))
            if LV - 1 - i < dmax:
                e(f's_waitcnt vmcnt({LV - 1 - i + 8})')
                e('s_nop 0')
            else:
                e('s_nop 1')
            vmfma(p2)
        for i in range(LV - self.fpre, LV):
            vprep(16 + i, S + ((16 + i) >> 3), A=192 + 4 * (LV - 1 - i))
        for i in range(LV - self.fpre, LV):
            e(f's_waitcnt vmcnt({LV - 1 - i + 8})')
            vmfma(16 + i, A=192 + 4 * (LV - 1 - i))
        e('L_fdone:')
        e('s_cmp_ge_u32 s2, 144')
        e('s_nop 6')
        e(f'ds_write_b128 v{T_OL}, {rng(OA)} offset:{L_O}')
        e('s_waitcnt lgkmcnt(0)')
        self.keep_time(68)
        e('s_barrier')
        if self.enc >= 1000:
            e('s_cselect_b32 s84, 1, 0')
            e('s_waitcnt lgkmcnt(0)')
            e('v_mov_b32 v12, s58')
            e(f'v_mov_b32 v13, s{self.enc % 1000}')
            e('s_lshl_b32 s85, s2, 5')
            e('s_lshl_b32 s86, s3, 3')
            e('s_add_u32 s85, s85, s86')
            e('s_add_u32 s85, s85, 0x40000')
            e('v_mov_b32 v14, 0')
            e('s_mov_b64 exec, 1')
            e('buffer_store_dwordx2 v[12:13], v14, s[40:43], s85 offen sc1')
            e('s_mov_b64 exec, -1')
            e('s_cmp_eq_u32 s84, 1')
        e('s_cbranch_scc1 L_notproj')
        BW, AO, PO = 56, 88, 120
        e('s_barrier')
        for j in range(2):
            e(f'buffer_load_dwordx4 {rng(PO + 4*j)}, v{vV}, s[40:43], s44 offen offset:{1024*j} sc1')
        e('s_mov_b32 s48, 0')

        def ocheck():
            e('s_waitcnt vmcnt(1)')
            e(f'v_max3_u32 v20, v{PO}, v{PO+1}, v{PO+2}')
            e('s_waitcnt vmcnt(0)')
            e(f'v_max3_u32 v21, v{PO+4}, v{PO+5}, v{PO+6}')
            e(f'v_max3_u32 v20, v20, v{PO+3}, v{PO+7}')
            e('v_max_u32 v20, v20, v21')
            e('v_cmp_eq_u32 vcc, -1, v20')

        def ostage():
            e(f'ds_write_b128 v{T_AW}, {rng(PO)} offset:{L_A}')
            e(f'ds_write_b128 v{T_AW}, {rng(PO+4)} offset:{L_A + 2*528}')
            e('s_waitcnt lgkmcnt(0)')
        if self.early:
            ocheck()
            e('s_nop 0')
            e('s_cbranch_vccnz L_onot')
            ostage()
            e('L_onot:')
        else:
            e('s_waitcnt vmcnt(2)')
        e('s_barrier')
        self.keep_time(50)
        for kk in range(8):
            gp = kk >> 1
            for hf in range(2):
                row = 64 * (kk & 1) + 8 * hf + 4 * (gp & 1)
                r = BW + kk * 4 + 2 * hf
                e(f'ds_read_b64_tr_b16 v[{r}:{r+1}], v{T_TR + (gp >> 1)} offset:{L_WO + row * 128}')
        if self.early:
            e('s_cbranch_vccz L_ostaged')
            e('s_mov_b64 exec, vcc')
        else:
            e('s_branch L_ochk')
        self.align()
        e('L_opoll:')
        if self.pslp:
            e(f's_sleep {self.pslp}')
        for j in range(2):
            e(f'buffer_load_dwordx4 {rng(PO + 4*j)}, v{vV}, s[40:43], s44 offen offset:{1024*j} sc1')
        e('L_ochk:')
        e('s_add_u32 s48, s48, 1')
        e(f's_cmp_ge_u32 s48, {SPIN}')
        e('s_cbranch_scc1 L_ook')
        ocheck()
        e('s_and_b64 exec, exec, vcc')
        e('s_cbranch_scc1 L_opoll')
        e('L_ook:')
        e('s_mov_b64 exec, -1')
        ostage()
        e('L_ostaged:')
        e('s_barrier')
        self.keep_time(52)
        for kk in range(8):
            e(f'ds_read_b128 {rng(AO + 4*kk)}, v{T_A} offset:{L_A + 64*kk}')
        for kk in range(8):
            c = '0' if kk == 0 else 'v[12:15]'
            e(f's_waitcnt lgkmcnt({7-kk})')
            e(f'v_mfma_f32_16x16x32_bf16 v[12:15], {rng(AO + 4*kk)}, {rng(BW + 4*kk)}, {c}')
        e('v_mov_b32 v17, s34')
        e('v_mov_b32 v19, s34')
        e('s_mov_b32 s48, 0x55555555')
        e('s_nop 4')
        e('v_add_f32 v12, v12, v13')
        e('v_add_f32 v14, v14, v15')
        e('v_add_f32 v16, v12, v14')
        if self.abl & 256:
            e('s_cmp_lg_u32 s3, 0')
            e('s_cbranch_scc1 L_end')
        if self.p4:
            e('s_nop 1')
            e('v_mov_b32_dpp v18, v16 quad_perm:[1,1,3,3] row_mask:0xf bank_mask:0xf')
            e('s_mov_b32 exec_lo, s48')
            e('s_mov_b32 exec_hi, s48')
            e(f'buffer_store_dwordx4 v[16:19], v{T_P}, s[40:43], s47 offen sc1')
        else:
            e(f'buffer_store_dwordx2 v[16:17], v{T_P}, s[40:43], s47 offen sc1')
        self.keep_time(54)
        if self.stamps:
            e('s_branch L_sflush')
        e('s_endpgm')
        e('L_notproj:')
        e('s_cmp_ge_u32 s2, 180')
        e('s_cbranch_scc1 ' + ('L_sflush' if self.stamps else 'L_end'))
        if self.rb:
            e('s_barrier')
        if self.abl & 256:
            e('s_cmp_lg_u32 s3, 0')
            e('s_cbranch_scc1 L_end')
        self.keep_time(50)
        e('s_mov_b32 s48, 0')
        e(f's_mov_b32 s38, {4 * 576 * 2}')
        e('s_and_b32 s45, s35, 3')
        e('s_mul_i32 s45, s45, 1152')
        e('s_lshr_b32 s31, s35, 2')
        e('s_lshl_b32 s31, s31, 7')
        e('s_add_u32 s45, s45, s31')
        e('s_lshl_b32 s31, s3, 5')
        e('s_add_u32 s45, s45, s31')
        if self.rd:
            R = self.rd
            base = lambda k: 56 + 8 * (k % R)

            def rissue(k):
                r = base(k)
                e(f'buffer_load_dwordx4 v[{r}:{r+3}], v{T_A}, s[40:43], s44 offen sc1')
                e(f'buffer_load_dwordx4 v[{r+4}:{r+7}], v{T_A}, s[40:43], s47 offen sc1')
            for k in range(R - 1):
                rissue(k)
            self.align()
            e('L_ppoll:')
            for k in range(R):
                rissue(k + R - 1)
                if self.rsp:
                    e(f's_sleep {self.rsp}')
                r = base(k)
                e(f's_waitcnt vmcnt({2 * (R - 1)})')
                e(f'v_xor_b32 v20, s34, v{r+1}')
                e(f'v_xor_b32 v21, s34, v{r+3}')
                e(f'v_xor_b32 v22, s34, v{r+5}')
                e(f'v_xor_b32 v23, s34, v{r+7}')
                e(f'v_add_f32 v12, v{r}, v{r+4}')
                e('v_or3_b32 v20, v20, v21, v22')
                e(f'v_add_f32 v14, v{r+2}, v{r+6}')
                e('v_or_b32 v20, v20, v23')
                e('v_cmp_ne_u32 vcc, 0, v20')
                e('s_cbranch_vccz L_pok')
            e('s_add_u32 s48, s48, 1')
            e(f's_cmp_lt_u32 s48, {SPIN}')
            e('s_cbranch_scc1 L_ppoll')
            e('L_pok:')
            self.keep_time(52)
        else:
            self.align()
            e('L_ppoll:')
            if self.rslp:
                e(f's_sleep {self.rslp}')
            e(f'buffer_load_dwordx4 v[12:15], v{T_A}, s[40:43], s44 offen sc1')
            e(f'buffer_load_dwordx4 v[16:19], v{T_A}, s[40:43], s47 offen sc1')
            e('s_add_u32 s48, s48, 1')
            e(f's_cmp_ge_u32 s48, {SPIN}')
            e('s_cbranch_scc1 L_pok')
            e('s_waitcnt vmcnt(1)')
            e('v_xor_b32 v20, s34, v13')
            e('v_xor_b32 v21, s34, v15')
            e('s_waitcnt vmcnt(0)')
            e('v_xor_b32 v22, s34, v17')
            e('v_xor_b32 v23, s34, v19')
            e('v_or3_b32 v20, v20, v21, v22')
            e('v_or_b32 v20, v20, v23')
            e('v_cmp_ne_u32 vcc, 0, v20')
            e('s_and_b64 exec, exec, vcc')
            e('s_cbranch_scc1 L_ppoll')
            e('L_pok:')
            e('s_mov_b64 exec, -1')
            e('s_waitcnt vmcnt(0)')
            self.keep_time(52)
            e('v_add_f32 v12, v12, v16')
            e('v_add_f32 v14, v14, v18')
        e('s_nop 0')
        e('v_add_f32_dpp v12, v12, v12 row_ror:8 row_mask:0xf bank_mask:0xf')
        e('v_add_f32_dpp v14, v14, v14 row_ror:8 row_mask:0xf bank_mask:0xf')
        e('s_nop 1')
        e('v_permlane16_swap_b32 v12, v14')
        e('v_add_f32 v12, v12, v14')
        e('v_mov_b32 v14, v12')
        e('s_nop 1')
        e('v_permlane32_swap_b32 v12, v14')
        e('v_add_f32 v12, v12, v14')
        e('v_cvt_pk_bf16_f32 v12, v12, v12')
        e('s_mov_b64 exec, 0x00ff00ff')
        e(f'buffer_store_short v12, v{T_P}, s[36:39], s45 offen' + ['', ' sc1', ' nt', ' sc0 sc1'][self.osc])
        self.keep_time(54)
        e('s_add_u32 s48, s2, s3')
        e('s_cmp_lg_u32 s48, 144')
        e('s_cbranch_scc1 ' + ('L_sflush' if self.stamps else 'L_end'))
        e('v_mov_b32 v4, s34')
        e('v_mov_b32 v6, 0')
        e('s_mov_b64 exec, 1')
        e('buffer_store_dword v4, v6, s[40:43], 0 offen')
        if self.dbgt:
            e('s_waitcnt lgkmcnt(0)')
            e('s_mov_b32 s80, 8000')
            if self.enc >= 1000:
                e('s_mov_b64 exec, -1')
                e('s_sleep 64')
                e('v_lshlrev_b32 v14, 7, v0')
                e('s_mov_b32 s85, 0x40000')
                for i in range(4):
                    e(f'buffer_load_dwordx2 v[{20+2*i}:{21+2*i}], v14, s[40:43], s85 offen offset:{32*i} sc1')
                e('s_waitcnt vmcnt(0)')
                op = 'v_max_u32' if self.enc < 2000 else 'v_min_u32'
                for i in range(1, 4):
                    e(f'v_min_u32 v20, v20, v{20+2*i}')
                    e(f'{op} v21, v21, v{21+2*i}')
                e('s_nop 1')
                e('v_readlane_b32 s81, v21, 0')
                e('v_readlane_b32 s85, v20, 0')
                for l in range(1, 64):
                    e(f'v_readlane_b32 s86, v21, {l}')
                    e(f'v_readlane_b32 s87, v20, {l}')
                    e(('s_max_u32' if self.enc < 2000 else 's_min_u32') + ' s81, s81, s86')
                    e('s_min_u32 s85, s85, s87')
                e('s_sub_u32 s81, s81, s85')
                e(f's_mul_i32 s81, s81, {self.encm}')
                e('s_add_u32 s80, s80, s81')
            elif self.enc > 0:
                e(f's_sub_u32 s81, s{self.enc}, s58')
                e(f's_mul_i32 s81, s81, {self.encm}')
                e('s_add_u32 s80, s80, s81')
            e('L_enc:')
            e('s_memrealtime s[82:83]')
            e('s_waitcnt lgkmcnt(0)')
            e('s_sub_u32 s82, s82, s58')
            e('s_cmp_lt_u32 s82, s80')
            e('s_cbranch_scc1 L_enc')
        if self.stamps:
            e('L_sflush:')
            e('s_mov_b64 exec, -1')
            e('s_cmp_lg_u32 s3, 0')
            e('s_cbranch_scc1 L_end')
            for k, sr in enumerate((58, 60, 62, 64, 66, 68)):
                self.flush_time(k, sr)
            for k, sr in ((12, 50), (13, 52), (14, 54), (16, 70), (17, 72), (15, 76), (19, 78)):
                self.flush_time(k, sr)
        e('s_endpgm')

    def proj_role(self, shkv, stg):
        e = self.e
        if self.xm:
            e(f's_lshr_b32 s{stg}, s2, 3')
            e(f's_and_b32 s{shkv}, s2, 7')
            e(f's_cmp_ge_u32 s{stg}, 9')
            e(f's_cselect_b32 s95, 8, 0')
            e(f's_add_u32 s{shkv}, s{shkv}, s95')
            e(f's_cmp_ge_u32 s{stg}, 9')
            e(f's_cselect_b32 s95, 9, 0')
            e(f's_sub_u32 s{stg}, s{stg}, s95')
        else:
            e(f's_mul_i32 s{shkv}, s2, 57')
            e(f's_lshr_b32 s{shkv}, s{shkv}, 9')
            e(f's_mul_i32 s{stg}, s{shkv}, 9')
            e(f's_sub_u32 s{stg}, s2, s{stg}')

    def tail_setup(self):
        e = self.e
        t0, t1, t2, t3 = 200, 201, 202, 203
        self.srd(40, 18, WSWIN)
        e(f'v_lshlrev_b32 v{T_OL}, 4, v0')
        e('s_lshl_b32 s31, s3, 10')
        e(f'v_add_u32 v{T_OL}, s31, v{T_OL}')
        e('s_lshl_b32 s46, s3, 13')
        e(f's_add_u32 s46, s46, {L_WO}')
        e('s_cmp_ge_u32 s2, 144')
        e('s_cbranch_scc1 L_ts_red')
        self.proj_role(35, 31)
        e('s_mul_i32 s47, s35, 9')
        e('s_add_u32 s47, s47, s31')
        self.srd(36, 12, 0 if self.abl & 4 else 4096 * 576 * 2)
        e('s_lshl_b32 s45, s35, 2')
        e('s_add_u32 s45, s45, s3')
        e(f's_mul_i32 s45, s45, {64 * 1152}')
        e('s_lshl_b32 s31, s31, 7')
        e('s_add_u32 s45, s45, s31')
        e(f'v_lshrrev_b32 v{t0}, 3, v0')
        e(f'v_mul_u32_u24 v{t1}, 1152, v{t0}')
        e(f'v_and_b32 v{t0}, 2, v{t0}')
        e(f'v_and_b32 v{t2}, 7, v0')
        e(f'v_xor_b32 v{t2}, v{t2}, v{t0}')
        e(f'v_lshl_add_u32 v{T_WO}, v{t2}, 4, v{t1}')
        e(f'v_xor_b32 v{t2}, 4, v{t2}')
        e(f'v_lshl_add_u32 v{T_WO+1}, v{t2}, 4, v{t1}')
        e(f'v_bfe_u32 v{t0}, v0, 3, 1')
        e(f'v_bfe_u32 v{t1}, v0, 2, 1')
        e(f'v_lshl_add_u32 v{t2}, v{t1}, 1, v{t0}')
        e(f'v_and_b32 v{t3}, 0x30, v0')
        e(f'v_lshl_add_u32 v{t3}, v{t0}, 7, v{t3}')
        e(f'v_add_u32 v{T_TR}, v{t3}, v{t2}')
        e(f'v_xor_b32 v{T_TR+1}, 1, v{T_TR}')
        e(f'v_bfe_u32 v{t0}, v0, 4, 1')
        e(f'v_lshl_add_u32 v{t0}, v{t0}, 1, v{t1}')
        e(f'v_xor_b32 v{t0}, s3, v{t0}')
        e(f'v_lshlrev_b32 v{t0}, 5, v{t0}')
        e(f'v_and_b32 v{t1}, 3, v0')
        e(f'v_lshl_add_u32 v{t0}, v{t1}, 3, v{t0}')
        e(f'v_lshl_add_u32 v{T_TR}, v{T_TR}, 7, v{t0}')
        e(f'v_lshl_add_u32 v{T_TR+1}, v{T_TR+1}, 7, v{t0}')
        e('s_lshl_b32 s44, s3, 4')
        e('s_add_u32 s44, s44, s35')
        e(f's_mul_i32 s44, s44, {self.PS}')
        e(f's_add_u32 s44, s44, {PBASE}')
        e(f'v_lshrrev_b32 v{t0}, 5, v0')
        e(f'v_lshl_add_u32 v{t0}, s3, 2, v{t0}')
        e(f'v_mul_u32_u24 v{t0}, 528, v{t0}')
        e(f'v_and_b32 v{t1}, 31, v0')
        e(f'v_lshl_add_u32 v{T_AW}, v{t1}, 4, v{t0}')
        e(f'v_and_b32 v{t0}, 15, v0')
        e(f'v_mul_u32_u24 v{t0}, 528, v{t0}')
        e(f'v_and_b32 v{t1}, 0x30, v0')
        e(f'v_add_u32 v{T_A}, v{t0}, v{t1}')
        e(f'v_and_b32 v{t0}, 15, v0')
        e(f'v_lshlrev_b32 v{t0}, 3, v{t0}')
        e(f'v_lshl_add_u32 v{T_P}, v{t1}, 5, v{t0}')
        e('s_lshl_b32 s47, s47, 11')
        e('s_lshl_b32 s31, s3, 7')
        e('s_add_u32 s47, s47, s31')
        e(f's_add_u32 s47, s47, {POFF}')
        e('s_branch L_ts_done')
        e('L_ts_red:')
        self.srd(36, 14, 0)
        e('s_mov_b32 s45, 0')
        e(f'v_mov_b32 v{T_WO}, 0')
        e(f'v_mov_b32 v{T_WO+1}, 0')
        e(f'v_mov_b32 v{T_TR}, 0')
        e(f'v_mov_b32 v{T_TR+1}, 0')
        e('s_sub_u32 s35, s2, 144')
        e(f'v_lshrrev_b32 v{t0}, 3, v0')
        e(f'v_mul_u32_u24 v{t0}, 18432, v{t0}')
        e(f'v_and_b32 v{t1}, 7, v0')
        e(f'v_lshl_add_u32 v{T_A}, v{t1}, 4, v{t0}')
        e('s_lshl_b32 s44, s35, 9')
        e('s_lshl_b32 s31, s3, 7')
        e('s_add_u32 s44, s44, s31')
        e(f's_add_u32 s44, s44, {POFF}')
        e(f's_add_u32 s47, s44, {8 * 18432}')
        e(f'v_lshrrev_b32 v{t0}, 4, v0')
        e(f'v_lshl_add_u32 v{t0}, v{t1}, 1, v{t0}')
        e(f'v_lshlrev_b32 v{T_P}, 1, v{t0}')
        e('L_ts_done:')

    def align(self):
        self.e('.p2align 3')

    def make_tag(self):
        self.e('s_add_u32 s34, s34, 0x7f4a7c15')

    def pack4(self, dst, z, vtag):
        e = self.e
        e(f'v_perm_b32 v{dst}, v{z[0]}, v{z[1]}, s90')
        e(f'v_perm_b32 v{dst+1}, v{z[1]}, v{vtag}, s91')
        e(f'v_perm_b32 v{dst+2}, v{z[2]}, v{z[3]}, s90')
        e(f'v_perm_b32 v{dst+3}, v{z[3]}, v{vtag}, s92')

    def pack_consts(self):
        e = self.e
        e('s_mov_b32 s90, 0x07060501')
        e('s_mov_b32 s91, 0x07060100')
        e('s_mov_b32 s92, 0x07060302')
        e('s_mov_b32 s93, 0x05040100')
        e('s_mov_b32 s94, 0x0706000c')

    def check4(self, pieces, tmp):
        e = self.e
        for i, p in enumerate(pieces):
            e(f'v_perm_b32 v{tmp+i}, v{p+3}, v{p+1}, s93')
        for i, p in enumerate(pieces):
            e(f'v_xor_b32 v{tmp+i}, s34, v{tmp+i}')
        e(f'v_or3_b32 v{tmp}, v{tmp}, v{tmp+1}, v{tmp+2}')
        e(f'v_or_b32 v{tmp}, v{tmp}, v{tmp+3}')
        e(f'v_cmp_ne_u32 vcc, 0, v{tmp}')

    def unpack_sum4(self, pieces):
        e = self.e
        for p in pieces:
            e(f'v_perm_b32 v{p+1}, v{p+1}, v{p}, s94')
            e(f'v_perm_b32 v{p+3}, v{p+3}, v{p+2}, s94')
            e(f'v_and_b32 v{p}, 0xffffff00, v{p}')
            e(f'v_and_b32 v{p+2}, 0xffffff00, v{p+2}')
        p0, p1, p2, p3 = pieces
        for t in range(4):
            e(f'v_add_f32 v{p0+t}, v{p0+t}, v{p1+t}')
            e(f'v_add_f32 v{p2+t}, v{p2+t}, v{p3+t}')
        for t in range(4):
            e(f'v_add_f32 v{p0+t}, v{p0+t}, v{p2+t}')

    def publish(self, stores):
        e = self.e
        self.npub = getattr(self, 'npub', 0) + 1
        n = self.npub
        if self.loc:
            e('s_cmp_lg_u32 s49, 0')
            e(f's_cbranch_scc1 L_pubL{n}')
        for st in stores:
            e(st + (' sc1' if st.startswith('buffer_store') else ''))
        if self.loc:
            e(f's_branch L_pubE{n}')
            e(f'L_pubL{n}:')
            for st in stores:
                e(st + (' nt' if st.startswith('buffer_store') and self.lnt >> (n - 1) & 1 else ''))
            e(f'L_pubE{n}:')

    def read_loc(self):
        e = self.e
        if not self.loc:
            return
        e('s_mov_b32 s48, 0')
        e('s_mov_b32 s49, 1')
        e('L_rz:')
        e('s_waitcnt vmcnt(0)')
        e('v_cmp_ne_u32 vcc, s37, v14')
        e('s_add_u32 s48, s48, 1')
        e('s_cbranch_vccz L_rzdone')
        e('buffer_load_dword v14, v15, s[28:31], s36 offen sc1')
        e('s_cmp_lt_u32 s48, 4')
        e('s_cbranch_scc1 L_rz')
        e('s_mov_b32 s49, 0')
        e('L_rzdone:')

    def wait_mid(self, lab, vzero, scnt):
        e = self.e
        e(f's_mov_b32 s{scnt}, 0')
        e(f'{lab}:')
        e(f's_sleep {self.slp}')
        for w in range(4):
            e(f'ds_read_b128 v[{16 + 4*w}:{19 + 4*w}], v{vzero} offset:{L_ML + 16*w}')
        e(f's_add_u32 s{scnt}, s{scnt}, 1')
        e('s_waitcnt lgkmcnt(0)')
        self.maxu(32, range(16, 32))
        e('v_cmp_eq_u32 vcc, -1, v32')
        e('s_nop 0')
        e(f's_cbranch_vccz {lab}_ok')
        e(f's_cmp_lt_u32 s{scnt}, {SPIN}')
        e(f's_cbranch_scc1 {lab}')
        e(f'{lab}_ok:')

    def maxu(self, dst, regs):
        e = self.e
        regs = list(regs)
        e(f'v_max3_u32 v{dst}, v{regs[0]}, v{regs[1]}, v{regs[2]}')
        regs = regs[3:]
        while len(regs) >= 2:
            e(f'v_max3_u32 v{dst}, v{dst}, v{regs[0]}, v{regs[1]}')
            regs = regs[2:]
        if regs:
            e(f'v_max_u32 v{dst}, v{dst}, v{regs[0]}')

    def helper(self):
        e = self.e
        rng = lambda r: f'v[{r}:{r+3}]'
        XA = 16
        WB = 64
        DQ = 40
        e('s_and_b32 s40, s32, 63')
        e('s_lshr_b32 s35, s32, 6')
        e('v_lshrrev_b32 v1, 3, v0')
        e('v_lshlrev_b32 v1, 13, v1')
        e('v_and_b32 v2, 7, v0')
        e('v_lshl_add_u32 v1, v2, 4, v1')
        e(f's_mul_i32 s42, s35, {144 * 8192}')
        e('s_lshl_b32 s41, s40, 7')
        e('s_add_u32 s42, s42, s41')
        e('v_and_b32 v2, 3, v0')
        e('v_mul_u32_u24 v2, 1152, v2')
        e('v_lshrrev_b32 v3, 4, v0')
        e('v_lshl_add_u32 v7, v3, 3, v2')
        e('v_lshl_add_u32 v2, v3, 4, v2')
        e('s_mul_i32 s43, s35, 288')
        e('s_waitcnt lgkmcnt(0)')
        e('s_load_dword s34, s[18:19], 0')
        self.srd(24, 4, 4 * 576 * 2)
        for kk in range(4):
            e(f'buffer_load_dwordx4 {rng(XA + 4*kk)}, v2, s[24:27], s43 offen offset:{kk*64}')
        e(f'buffer_load_dwordx2 v[{XA+16}:{XA+17}], v7, s[24:27], s43 offen offset:256')
        self.srd(20, 10, 576 * 4096 * 2)
        for i in range(18):
            e(f's_mov_b32 m0, {L_WQ + 1024 * i}')
            if i:
                e('s_add_u32 s42, s42, 0x10000')
            else:
                e('s_nop 0')
            if self.wqp and i >= self.wqp:
                e(f's_waitcnt vmcnt({self.wqp - 1})')
            if not self.abl & 1:
                e('buffer_load_dwordx4 v1, s[20:23], s42 offen nt lds')
        if self.pf:
            e('s_getpc_b64 s[54:55]')
            e('L_pc:')
            e(f's_sub_u32 s54, s54, L_pc-{NAME}')
            e('s_subb_u32 s55, s55, 0')
            e('v_lshlrev_b32 v14, 7, v0')
            e('global_load_dword v60, v14, s[54:55]')
            e('v_add_u32 v14, 0x2000, v14')
            e(f'v_cmp_gt_u32 vcc, L_codeend-{NAME}, v14')
            e('s_and_saveexec_b64 s[56:57], vcc')
            e('global_load_dword v61, v14, s[54:55]')
            e('s_mov_b64 exec, s[56:57]')
        self.srd(28, 18, WSWIN)
        for r in range(4):
            e(f'v_mov_b32 v{8+r}, -1')
        e('v_lshlrev_b32 v4, 4, v0')
        e('s_lshr_b32 s44, s32, 2')
        e(f's_mul_i32 s44, s44, {self.PS}')
        e(f's_add_u32 s44, s44, {PBASE}')
        e('s_and_b32 s43, s32, 3')
        e('s_lshl_b32 s45, s43, 9')
        e('s_add_u32 s45, s45, s44')
        e('s_lshl_b32 s47, s43, 8')
        e('s_add_u32 s47, s47, s44')
        e('s_mov_b64 exec, 15')
        e(f'ds_write_b128 v4, v[8:11] offset:{L_ML}')
        e('s_mov_b64 exec, -1')
        self.pack_consts()
        e('v_bfe_u32 v5, v0, 2, 2')
        e('v_lshlrev_b32 v5, 7, v5')
        e('v_and_b32 v6, 3, v0')
        e('v_lshl_add_u32 v5, v6, 3, v5')
        e('v_lshl_add_u32 v6, v3, 9, v5')
        e('v_lshl_add_u32 v5, v3, 10, v5')
        e(f's_mov_b32 s41, {16 * self.PS}')
        e('v_mul_lo_u32 v7, s41, v3')
        e('v_and_b32 v12, 15, v0')
        e('v_lshl_add_u32 v7, v12, 4, v7')
        e('s_lshr_b32 s46, s40, 2')
        e(f's_mul_i32 s46, s46, {self.PS}')
        e('s_lshl_b32 s41, s35, 10')
        e('s_add_u32 s46, s46, s41')
        e('s_and_b32 s41, s40, 3')
        e('s_lshl_b32 s41, s41, 8')
        e('s_add_u32 s46, s46, s41')
        e(f's_add_u32 s46, s46, {PBASE + 4096}')
        e('s_add_u32 s50, s44, 4096')
        e('v_and_b32 v12, 15, v0')
        e('v_lshlrev_b32 v12, 1, v12')
        e('v_lshl_add_u32 v12, v3, 7, v12')
        e('s_waitcnt lgkmcnt(0)')
        self.make_tag()
        e('v_mov_b32 v13, s34')
        if self.loc:
            e('s_getreg_b32 s36, hwreg(HW_REG_XCC_ID, 0, 4)')
            e('s_lshl_b32 s36, s36, 12')
            e(f's_add_u32 s36, s36, {BOFF + 256}')
            e('s_and_b32 s37, s2, 7')
            e('s_add_u32 s37, s37, s34')
            e('v_and_b32 v15, 31, v0')
            e('v_lshlrev_b32 v15, 2, v15')
        self.keep_time(74)
        e('s_waitcnt vmcnt(0)')
        if self.loc:
            e('buffer_load_dword v14, v15, s[28:31], s36 offen sc1')
        self.keep_time(60)
        for t in range(4):
            for kk in range(4):
                for hf in range(2):
                    r = WB + 20*t + 4*kk + 2*hf
                    e(f'ds_read_b64_tr_b16 v[{r}:{r+1}], v5 offset:{L_WQ + (32*kk + 4*hf)*128 + 32*t}')
            r = WB + 20*t + 16
            e(f'ds_read_b64_tr_b16 v[{r}:{r+1}], v6 offset:{L_WQ + 128*128 + 32*t}')
        for t in range(4):
            e(f's_waitcnt lgkmcnt({min(15, 9*(3-t))})')
            for kk in range(4):
                c = '0' if kk == 0 else rng(DQ + 4*t)
                e(f'v_mfma_f32_16x16x32_bf16 {rng(DQ + 4*t)}, {rng(XA + 4*kk)}, {rng(WB + 20*t + 4*kk)}, {c}')
        e('s_nop 3')
        for t in range(4):
            r = WB + 20*t + 16
            e(f'v_mfma_f32_16x16x16_bf16 {rng(DQ + 4*t)}, v[{XA+16}:{XA+17}], v[{r}:{r+1}], {rng(DQ + 4*t)}')
        e('s_nop 4')
        for t in range(4):
            for b in range(1, 4):
                e(f'v_mov_b32_dpp v{DQ+4*t}, v{DQ+4*t+b} quad_perm:[0,1,2,3] row_mask:{1 << b:#x} bank_mask:0xf')
        self.pack4(36, [DQ + 4*t for t in range(4)], 13)
        e('v_mov_b32 v5, 0')
        self.read_loc()
        self.publish(['buffer_store_dwordx4 v[36:39], v7, s[28:31], s46 offen',
                      's_mov_b32 exec_hi, 0',
                      'buffer_store_dwordx4 v[8:11], v4, s[28:31], s45 offen',
                      's_mov_b32 exec_hi, -1'])
        self.keep_time(62)
        e('s_mov_b32 s48, 0')
        if self.qd:
            e(f's_sleep {self.qd}')
        if self.abl & 10:
            e('s_branch L_qok')
        e('L_qpoll:')
        for k in range(4):
            e(f'buffer_load_dwordx4 {rng(16 + 4*k)}, v4, s[28:31], s50 offen offset:{1024*k} sc1')
        e('s_add_u32 s48, s48, 1')
        e('s_waitcnt vmcnt(0)')
        self.check4([16, 20, 24, 28], 32)
        e('s_nop 0')
        e('s_cbranch_vccz L_qok')
        e(f's_sleep {self.qslp}')
        e(f's_cmp_lt_u32 s48, {SPIN}')
        e('s_cbranch_scc1 L_qpoll')
        e('L_qok:')
        self.unpack_sum4([16, 20, 24, 28])
        e('v_cvt_pk_bf16_f32 v20, v16, v17')
        e('v_cvt_pk_bf16_f32 v21, v18, v19')
        e(f'ds_write_b16 v12, v20 offset:{L_Q}')
        e(f'ds_write_b16_d16_hi v12, v20 offset:{L_Q + 32}')
        e(f'ds_write_b16 v12, v21 offset:{L_Q + 64}')
        e(f'ds_write_b16_d16_hi v12, v21 offset:{L_Q + 96}')
        e('s_waitcnt lgkmcnt(0)')
        self.keep_time(64)
        e('s_barrier')
        self.wait_mid('L_mlwait', 5, 48)
        e('s_waitcnt vmcnt(0)')
        for h in range(2):
            m = [16 + 4*w + 2*h for w in range(4)]
            d = 36 + 4*h
            e(f'v_max3_f32 v{d}, v{m[0]}, v{m[1]}, v{m[2]}')
            e(f'v_max_f32 v{d}, v{d}, v{m[3]}')
            for w in range(4):
                e(f'v_sub_f32 v{44+w}, v{m[w]}, v{d}')
                e(f'v_exp_f32 v{44+w}, v{44+w}')
            e(f'v_mov_b32 v{d+1}, s34')
            e(f'v_mul_f32 v{d+2}, v44, v{m[0]+1}')
            for w in range(1, 4):
                e(f'v_fmac_f32 v{d+2}, v{44+w}, v{m[w]+1}')
            e(f'v_mov_b32 v{d+3}, s34')
        e('s_mov_b64 exec, 1')
        if self.abl & 64:
            e('s_branch L_wrdy_ok')
        self.publish(['buffer_store_dwordx4 v[36:39], v5, s[28:31], s47 offen offset:2048',
                      'buffer_store_dwordx4 v[40:43], v5, s[28:31], s47 offen offset:2064'])
        e('s_mov_b32 s48, 0')
        for _ in range(self.mld):
            e('s_sleep 127')
        e('L_gml:')
        e(f's_sleep {self.slp}')
        for s_ in range(4):
            for h in range(2):
                e(f'buffer_load_dwordx4 {rng(64 + 8*s_ + 4*h)}, v5, s[28:31], s44 offen offset:{2048 + 256*s_ + 16*h} sc1')
        e('s_add_u32 s48, s48, 1')
        e('s_waitcnt vmcnt(0)')
        e('v_mov_b32 v32, 0')
        for i in range(8):
            e(f'v_xor_b32 v33, s34, v{65 + 4*i}')
            e(f'v_xor_b32 v34, s34, v{67 + 4*i}')
            e('v_or3_b32 v32, v32, v33, v34')
        e('v_cmp_ne_u32 vcc, 0, v32')
        e('s_nop 0')
        e('s_cbranch_vccz L_gmlok')
        e(f's_cmp_lt_u32 s48, {SPIN}')
        e('s_cbranch_scc1 L_gml')
        e('L_gmlok:')
        for h in range(2):
            m = [64 + 8*s_ + 4*h for s_ in range(4)]
            e(f'v_max3_f32 v36, v{m[0]}, v{m[1]}, v{m[2]}')
            e(f'v_max_f32 v36, v36, v{m[3]}')
            for s_ in range(4):
                e(f'v_sub_f32 v{44+s_}, v{m[s_]}, v36')
                e(f'v_exp_f32 v{44+s_}, v{44+s_}')
            e('s_nop 0')
            e(f'v_mul_f32 v37, v44, v{m[0]+2}')
            for s_ in range(1, 4):
                e(f'v_fmac_f32 v37, v{44+s_}, v{m[s_]+2}')
            e('v_rcp_f32 v37, v37')
            for w in range(4):
                e(f'v_sub_f32 v{44+w}, v{16 + 4*w + 2*h}, v36')
                e(f'v_exp_f32 v{44+w}, v{44+w}')
            e('s_nop 0')
            for w in range(4):
                e(f'v_mul_f32 v{44+w}, v{44+w}, v37')
            e('s_nop 0')
            for w in range(4):
                e(f'v_readfirstlane_b32 s{50 + 2*w + h}, v{44+w}')
        e('s_cmp_ge_u32 s2, 144')
        e('s_cbranch_scc1 L_wrdy_ok')
        e('s_mov_b64 exec, 0xffff')
        self.proj_role(40, 41)
        e(f's_mul_i32 s40, s40, {self.PS}')
        e(f's_add_u32 s40, s40, {PBASE + 2052}')
        e(f's_mov_b32 s41, {16 * self.PS}')
        e('v_lshrrev_b32 v6, 2, v0')
        e('v_mul_lo_u32 v6, s41, v6')
        e('v_and_b32 v7, 3, v0')
        e('v_lshl_add_u32 v6, v7, 8, v6')
        e('s_mov_b32 s48, 0')
        e('L_wrdy:')
        e(f's_sleep {self.slp}')
        e('buffer_load_dword v8, v6, s[28:31], s40 offen sc1')
        e('s_add_u32 s48, s48, 1')
        e('s_waitcnt vmcnt(0)')
        e('v_cmp_ne_u32 vcc, s34, v8')
        e('s_nop 0')
        e('s_cbranch_vccz L_wrdy_ok')
        e(f's_cmp_lt_u32 s48, {SPIN}')
        e('s_cbranch_scc1 L_wrdy')
        e('L_wrdy_ok:')
        e('s_mov_b64 exec, -1')
        e('v_lshlrev_b32 v5, 3, v0')
        if self.pf2:
            e('s_getpc_b64 s[60:61]')
            e('L_pc2:')
            e(f's_sub_u32 s60, s60, L_pc2-L_tailcode')
            e('s_subb_u32 s61, s61, 0')
            e('v_lshlrev_b32 v14, 7, v0')
            e(f'v_cmp_gt_u32 vcc, L_codeend-L_tailcode, v14')
            e('s_and_saveexec_b64 s[62:63], vcc')
            e('global_load_dword v61, v14, s[60:61]')
            e('s_mov_b64 exec, s[62:63]')
        e('s_mov_b32 s48, 0x55555555')
        e('s_setprio 3')
        self.keep_time(66)
        e('s_barrier')
        self.keep_time(68)
        for w in range(4):
            e(f'ds_read_b128 {rng(16 + 4*w)}, v4 offset:{L_O + 1024*w}')
        for w in range(4):
            e(f's_waitcnt lgkmcnt({3-w})')
            for r in range(4):
                if w == 0:
                    e(f'v_mul_f32 v{32+r}, s{50 + (r & 1)}, v{16+r}')
                else:
                    e(f'v_fmac_f32 v{32+r}, s{50 + 2*w + (r & 1)}, v{16 + 4*w + r}')
        e('v_cvt_pk_bf16_f32 v36, v32, v34')
        e('v_cvt_pk_bf16_f32 v37, v33, v35')
        e('v_min_u32 v36, 0xfffffffe, v36')
        e('v_min_u32 v37, 0xfffffffe, v37')
        e('s_nop 0')
        e('v_mov_b32_dpp v38, v36 quad_perm:[1,1,3,3] row_mask:0xf bank_mask:0xf')
        e('v_mov_b32_dpp v39, v37 quad_perm:[1,1,3,3] row_mask:0xf bank_mask:0xf')
        e('s_mov_b32 exec_lo, s48')
        e('s_mov_b32 exec_hi, s48')
        self.publish(['buffer_store_dwordx4 v[36:39], v5, s[28:31], s45 offen'])
        self.keep_time(70)
        if self.rb:
            e('s_barrier')
        e('s_cmp_ge_u32 s2, 144')
        e('s_cbranch_scc1 L_hdone')
        if not self.rb:
            e('s_barrier')
        e('s_barrier')
        e('s_barrier')
        e('L_hdone:')
        if self.stamps:
            e('s_mov_b64 exec, -1')
            for k, sr in enumerate((60, 62, 64, 66, 68, 70)):
                self.flush_time(6 + k, sr)
            self.flush_time(18, 74)
        e('s_endpgm')

    def balancer(self):
        e = self.e
        e('s_getreg_b32 s40, hwreg(HW_REG_XCC_ID, 0, 4)')
        e('v_lshlrev_b32 v1, 2, v0')
        e('v_lshlrev_b32 v2, 4, v0')
        for r in range(4):
            e(f'v_mov_b32 v{4+r}, 0')
        e(f'ds_write_b128 v2, v[4:7] offset:{L_PR + 1024}')
        if self.snap:
            for r in range(4):
                e(f'v_mov_b32 v{8+r}, 48')
            e(f'ds_write_b128 v2, v[8:11] offset:{L_PR}')
            e('v_and_b32 v18, 0x300, v2')
        else:
            e(f'ds_write_b128 v2, v[4:7] offset:{L_PR}')
        e('s_waitcnt lgkmcnt(0)')
        e('s_load_dword s34, s[18:19], 0')
        if self.kfirst:
            e('s_lshr_b32 s31, s32, 2')
            e('s_lshl_b32 s31, s31, 21')
            e('s_add_u32 s20, s6, s31')
            e('s_addc_u32 s21, s7, 0')
            e('s_mov_b64 exec, 1')
            e('global_load_dword v30, v4, s[20:21] nt')
            e('s_mov_b64 exec, -1')
        self.srd(28, 18, WSWIN)
        e('s_mul_i32 s46, s40, 4352')
        e(f's_add_u32 s46, s46, {XOFF}')
        e('s_lshl_b32 s40, s40, 12')
        e(f's_add_u32 s40, s40, {BOFF}')
        e('s_lshr_b32 s41, s2, 3')
        e('s_lshl_b32 s41, s41, 2')
        e('v_mov_b32 v3, s41')
        e('s_mov_b32 s48, 0')
        e('s_waitcnt lgkmcnt(0)')
        self.make_tag()
        if self.loc:
            e('; announce this workgroup on the line of the XCD it runs on: slot wg>>3 = tag + wg%8')
            e('s_and_b32 s41, s2, 7')
            e('s_add_u32 s41, s41, s34')
            e('v_mov_b32 v8, s41')
            e('s_mov_b64 exec, 1')
            e('buffer_store_dword v8, v3, s[28:31], s40 offen offset:256')
            e('s_mov_b64 exec, -1')
        if self.hot:
            e('s_lshr_b32 s50, s32, 2')
            e(f's_mul_i32 s50, s50, {self.PS}')
            e(f's_add_u32 s50, s50, {PBASE}')
            e('s_and_b32 s51, s32, 3')
            e('s_lshl_b32 s52, s51, 10')
            e('s_add_u32 s52, s52, 4096')
            e('s_lshl_b32 s51, s51, 9')
            e('s_sub_u32 s51, s51, 1024')
            e('v_mov_b32 v20, s52')
            e('v_mov_b32 v21, s51')
            e('v_cmp_gt_u32 vcc, 8, v0')
            e('s_nop 1')
            e('v_cndmask_b32 v20, v21, v20, vcc')
            e('v_lshl_add_u32 v20, v0, 7, v20')
        if self.xb:
            e(f's_mov_b32 s60, {self.ck0}')
            for j in range(8):
                e(f's_mov_b32 s{72+j}, -1')
                e(f's_mov_b32 s{80+j}, 0')
        e('s_cmp_lt_u32 s2, 144')
        e(f's_cselect_b32 s61, {self.bias + (self.sb + 1) // 2}, {self.bias - self.sb // 2}')
        e('s_lshl_b32 s34, s34, 16')
        e('s_barrier')
        e('L_bal:')
        e(f's_sleep {self.bslp}')
        e(f'ds_read2st64_b32 v[8:9], v4 offset0:{L_PR // 256} offset1:{L_PR // 256 + 1}')
        e(f'ds_read2st64_b32 v[10:11], v4 offset0:{L_PR // 256 + 2} offset1:{L_PR // 256 + 3}')
        if self.snap:
            e(f'ds_read_b32 v19, v18 offset:{L_PR}')
        e('s_add_u32 s48, s48, 1')
        e('s_waitcnt lgkmcnt(0)')
        e('v_add3_u32 v8, v8, v9, v10')
        e('v_add_u32 v8, v8, v11')
        e('v_or_b32 v9, s34, v8')
        e('v_readfirstlane_b32 s42, v8')
        e('s_mov_b64 exec, 1')
        e('buffer_store_dword v9, v3, s[28:31], s40 offen')
        e('s_mov_b64 exec, -1')
        e(f's_cmp_ge_u32 s42, {4 * 248}')
        e('s_cbranch_scc1 L_end')
        if self.xb:
            e('s_cmp_ge_u32 s2, 8')
            e('s_cbranch_scc1 L_nosl')
            for j in range(8):
                e(f's_load_dword s{64+j}, s[18:19], {XOFF + 4352*j} glc')
            e('L_nosl:')
        e('v_mov_b32 v10, 0')
        e(f's_mov_b32 exec_hi, {1 if self.xb else 0}')
        e('buffer_load_dword v10, v1, s[28:31], s40 offen sc1')
        if self.hot:
            e('s_mov_b64 exec, 0xfff')
            e('buffer_load_dword v21, v20, s[28:31], s50 offen sc1')
            e('s_mov_b32 exec_lo, -1')
        e('s_mov_b32 exec_hi, -1')
        e('s_waitcnt vmcnt(0)')
        e('v_xor_b32 v10, s34, v10')
        e('v_add_u32 v11, -1, v10')
        e('v_cmp_gt_u32 vcc, 0xffff, v11')
        e('s_nop 1')
        e('v_cndmask_b32 v10, 0, v10, vcc')
        e('s_bcnt1_i32_b32 s43, vcc_lo')
        for k in (1, 2, 4, 8):
            e('s_nop 1')
            e(f'v_add_u32_dpp v10, v10, v10 row_ror:{k} row_mask:0xf bank_mask:0xf')
        e('s_lshl_b32 s43, s43, 2')
        e('v_cvt_f32_u32 v12, s43')
        e('v_readlane_b32 s44, v10, 0')
        e('v_readlane_b32 s45, v10, 16')
        e('v_rcp_f32 v12, v12')
        e('s_add_u32 s44, s44, s45')
        e('v_cvt_f32_u32 v13, s44')
        e('v_mul_f32 v13, v13, v12')
        e('v_cvt_u32_f32 v16, v13')
        e('v_add_u32 v12, s61, v16')
        if self.xb:
            e('v_readlane_b32 s45, v10, 32')
            e('s_cmp_eq_u32 s45, 0')
            e('s_cselect_b32 s45, 32, s45')
            e('s_sub_u32 s45, s45, 32')
            e('v_add_u32 v12, s45, v12')
        if self.snap:
            e('v_sub_u32 v12, v19, v12')
        e('v_mov_b32 v13, v12')
        e('v_mov_b32 v14, v12')
        e('v_mov_b32 v15, v12')
        e(f'ds_write_b128 v2, v[12:15] offset:{L_PR + 1024}')
        if self.xb:
            e('s_cmp_ge_u32 s2, 8')
            e('s_cbranch_scc1 L_balnext')
            e('v_readfirstlane_b32 s47, v16')
            e('v_or_b32 v17, s34, v16')
            e('s_mov_b64 exec, 1')
            e('s_cmp_lt_u32 s47, s60')
            e('s_cbranch_scc1 L_nopub')
            e('buffer_store_dword v17, v4, s[28:31], s46 offen sc1')
            e(f's_add_u32 s60, s60, {self.ck}')
            e('L_nopub:')
            e('s_mov_b32 s43, 0')
            e('s_mov_b32 s44, 0')
            e('s_waitcnt lgkmcnt(0)')
            for j in range(8):
                e(f's_xor_b32 s{64+j}, s{64+j}, s34')
                e(f's_or_b32 s43, s43, s{64+j}')
                e(f's_sub_i32 s45, s{64+j}, s47')
                e(f's_cmp_lg_u32 s{64+j}, s{72+j}')
                e(f's_cselect_b32 s{80+j}, s45, s{80+j}')
                e(f's_mov_b32 s{72+j}, s{64+j}')
                e(f's_add_i32 s44, s44, s{80+j}')
            e('s_ashr_i32 s44, s44, 3')
            e(f's_add_i32 s44, s44, {self.lagc}')
            e(f's_max_i32 s44, s44, {-self.xmin}')
            e(f's_min_i32 s44, s44, {self.xmax}')
            e('s_add_i32 s44, s44, 32')
            e('s_cmp_lt_u32 s43, 0x10000')
            e('s_cselect_b32 s44, s44, 0')
            e('s_or_b32 s44, s44, s34')
            e('v_mov_b32 v17, s44')
            e('buffer_store_dword v17, v4, s[28:31], s40 offen offset:128')
            e('s_mov_b64 exec, -1')
            e('L_balnext:')
        e(f's_cmp_lt_u32 s48, {SPIN}')
        e('s_cbranch_scc1 L_bal')
        e('s_endpgm')

    def others(self):
        e = self.e
        e('L_helper:')
        self.helper()
        if self.bal:
            e('L_balancer:')
            self.balancer()

    def build(self):
        e = self.e
        e('.amdgcn_target "amdgcn-amd-amdhsa--gfx950"')
        e('.text')
        if self.padt:
            e(f'.fill {self.padt // 4}, 4, 0xbf810000')
        e(f'.globl {NAME}')
        e('.p2align 8')
        e(f'.type {NAME},@function')
        e(f'{NAME}:')
        e('s_cmp_ge_u32 s2, 256')
        e('s_cbranch_scc1 L_end')
        self.keep_time(58)
        if self.clk:
            e('s_memrealtime s[88:89]')
        e('s_load_dwordx16 s[4:19], s[0:1], 0')
        e('v_lshrrev_b32 v1, 6, v0')
        e('v_and_b32 v0, 63, v0')
        e('v_readfirstlane_b32 s3, v1')
        e('s_and_b32 s32, s2, 15')
        e('s_lshl_b32 s32, s32, 2')
        e('s_bfe_u32 s31, s2, 0x20004')
        e('s_or_b32 s32, s32, s31')
        e('s_and_b32 s31, s2, 0xc0')
        e('s_or_b32 s32, s32, s31')
        e('s_cmp_eq_u32 s3, 4')
        e('s_cbranch_scc1 L_helper')
        if self.bal:
            e('s_cmp_eq_u32 s3, 5')
            e('s_cbranch_scc1 L_balancer')
        self.stream()
        if not self.lay:
            self.others()
        e('L_end:')
        e('s_endpgm')
        e('L_codeend:')
        nv = 256 if self.stamps else 248
        e('.section .rodata,"a"')
        if self.padr:
            e(f'.fill {self.padr // 4}, 4, 0')
        e('.p2align 6')
        e(f'.amdhsa_kernel {NAME}')
        e(f'  .amdhsa_next_free_vgpr {nv}')
        e('  .amdhsa_next_free_sgpr 96')
        e(f'  .amdhsa_accum_offset {nv}')
        e('  .amdhsa_group_segment_fixed_size 0')
        e('  .amdhsa_kernarg_size 64')
        e('  .amdhsa_user_sgpr_count 2')
        e('  .amdhsa_user_sgpr_kernarg_segment_ptr 1')
        e('  .amdhsa_system_sgpr_workgroup_id_x 1')
        e('.end_amdhsa_kernel')
        errs = check([l.lstrip() if l.lstrip().startswith('.') else l for l in self.o])
        for x in errs:
            print('HAZARD', x, file=sys.stderr)
        txt = HEADER + DOC + f'; @launch grid=(256,1,1) block=({384 if self.bal else 320},1,1) lds={LDS_BYTES}\n' + '\n'.join(self.o) + '\n'
        return txt, errs


if __name__ == '__main__':
    kw = {}
    out = sys.argv[1]
    for a in sys.argv[2:]:
        k, v = a.split('=')
        kw[k] = int(v)
    txt, errs = G(**kw).build()
    open(out, 'w').write(txt)
    sys.exit(1 if errs else 0)
```

```python
import sys, struct
from hazard import check

NAME = "standalone__gqa_block_cached__decode_kernel"

HEADER = """; Kernarg layout for this problem (64 bytes, ptrs only, base s[0:1]):
"""

DOC = """;
"""

PBASE = 0x100000
POFF = 0x80000
WSWIN = 0x10000000
BOFF = 0x10000
XOFF = 0x20000
STAMP0 = 0x10000000
STAMP1 = 0x10100000

L_WQ = 0x0000
L_WO = 0x5000
L_A = 0x0000
L_Q = 0xD000
L_ML = 0xD200
L_O = 0xD400
L_PR = 0xE400
LDS_BYTES = 0xEC00

def f2u(x):
    return struct.unpack('<I', struct.pack('<f', x))[0]

SCALE = f2u(128 ** -0.5 * 1.4426950408889634)
SPIN = 1 << 20
T_WO, T_TR, T_A, T_P, T_OL, T_AW = 184, 186, 188, 189, 190, 191


class G:
    def __init__(self, D=5, LV=16, stamps=False, D0=None, dbgt=0, kf=1, vf=1, pf=1, enc=-1, prio=3, slp=64, qslp=2, pre=2, dfn=0, d2=16, qd=0, clr=0, abl=0, kfirst=0, wqp=0, mld=0, wod=1, dper=0, il=0, pslp=0, rslp=0, PS=8192, clk=0, tau=1094, toff=200, dh=10, bal=1, bias=9, bslp=1, bstep=4, xm=1, p4=1, osc=0, xb=1, lagc=11, lper=2, xmax=12, loc=1, hot=0, ck=40, ck0=72, him=8, xmin=12, dl=4, encm=1, piece=16384, rd=0, rsp=2, rb=1, sb=0, snap=0, fin=0, df=12, fpre=0, pw=5, pw0=2, pwall=1, pf2=0, rsh=-1, lay=0, early=0, lnt=0, padt=0, padr=0, al12=0, cop=0, tch=0):
        self.o = []
        self.D = D
        self.D0 = D0 or D
        self.LV = LV
        self.stamps = stamps
        self.dbgt = dbgt
        FL = ['', ' nt', ' sc1', ' sc1 nt', ' sc0 sc1', ' sc0 sc1 nt', ' sc0', ' sc0 nt']
        self.kf, self.vf = FL[kf], FL[vf]
        self.pf = pf
        self.enc = enc
        self.prio = prio
        self.slp = slp
        self.qslp = qslp
        self.pre = pre
        self.qd = qd
        self.abl = abl
        self.mld = mld
        self.dper = dper
        self.il = il
        self.PS = PS
        self.tch = tch
        self.cop = cop
        self.al12 = al12
        self.padt, self.padr = padt, padr
        self.lnt = lnt
        self.early = early
        self.lay = lay
        self.rsh = rsh
        self.pf2 = pf2
        self.pw, self.pw0, self.pwall = pw, pw0, pwall
        self.fpre = fpre
        self.fin, self.df = fin, df
        self.snap = snap
        self.sb = sb
        self.rb = rb
        self.rd, self.rsp = rd, rsp
        self.piece = piece
        self.encm = encm
        self.him, self.xmin, self.dl = him, xmin, dl
        self.ck, self.ck0 = ck, ck0
        self.hot = hot
        self.loc = loc
        self.xb, self.lagc, self.lper, self.xmax = xb, lagc, lper, xmax
        self.osc = osc
        self.xm, self.p4 = xm, p4
        self.bal, self.bias, self.bslp, self.bstep = bal, bias, bslp, bstep
        self.clk, self.tau, self.toff, self.dh = clk, tau, toff, dh
        self.pslp = pslp
        self.rslp = rslp
        self.wod = wod
        self.kfirst = kfirst
        self.wqp = wqp
        self.clr = clr
        self.dfn = dfn
        self.d2 = d2

    def e(self, s):
        self.o.append(s if s.endswith(':') or s.startswith('.') or s.startswith(';') else '    ' + s)

    def stamp(self, idx, sbase=80):
        if not self.stamps:
            return
        e = self.e
        e('s_memrealtime s[80:81]')
        e(f's_add_u32 s82, s18, {STAMP1 + idx * 8}')
        e('s_addc_u32 s83, s19, 0')
        e('s_lshl_b32 s84, s2, 8')
        e('s_waitcnt lgkmcnt(0)')
        e('v_mov_b32 v250, s84')
        e('v_mov_b32 v252, s80')
        e('v_mov_b32 v253, s81')
        e('s_mov_b64 s[56:57], exec')
        e('s_mov_b64 exec, 1')
        e('global_store_dwordx2 v250, v[252:253], s[82:83]')
        e('s_mov_b64 exec, s[56:57]')

    def keep_time(self, sreg):
        if self.stamps or self.dbgt:
            self.e(f's_memrealtime s[{sreg}:{sreg+1}]')

    def flush_time(self, idx, sreg):
        if not self.stamps:
            return
        e = self.e
        e(f's_add_u32 s82, s18, {STAMP1 + idx * 8}')
        e('s_addc_u32 s83, s19, 0')
        e('s_lshl_b32 s84, s2, 8')
        e('s_waitcnt lgkmcnt(0)')
        e('v_mov_b32 v250, s84')
        e(f'v_mov_b32 v252, s{sreg}')
        e(f'v_mov_b32 v253, s{sreg+1}')
        e('s_mov_b64 s[56:57], exec')
        e('s_mov_b64 exec, 1')
        e('global_store_dwordx2 v250, v[252:253], s[82:83]')
        e('s_mov_b64 exec, s[56:57]')

    def srd(self, d, base, size, add=None):
        e = self.e
        if add is None:
            e(f's_mov_b32 s{d}, s{base}')
            e(f's_mov_b32 s{d+1}, s{base+1}')
        else:
            e(f's_add_u32 s{d}, s{base}, {add}')
            e(f's_addc_u32 s{d+1}, s{base+1}, 0')
        e(f's_mov_b32 s{d+2}, {size:#x}')
        e(f's_mov_b32 s{d+3}, 0x20000')

    def stream(self):
        e, D, LV = self.e, self.D, 16
        vK, vV = 1, 2
        QB = [4, 8]
        DT = [12, 16]
        T, X = 20, 21
        A = 24
        MK = 28
        OA = 32
        M, L, T2, T3 = 36, 37, 38, 39
        S = 40
        RING = 56
        VP = 184
        rng = lambda r: f'v[{r}:{r+3}]'
        kslot = lambda n: RING + 4 * (n % 32)
        vslot = lambda v: VP + 4 * v if v < 16 else RING + 4 * ((v - 16) % 32)
        kpos = lambda n: 16 + n
        vpos = lambda v: v if v < 16 else 128 + v
        st = {'issued': -1, 'landed': -1}
        rpp = self.piece // 16384
        step = lambda n: 0x4000 + (3 * self.piece if self.piece < 0x80000 and (n // 4) % rpp == rpp - 1 else 0)

        def need_landed(x):
            if x > st['landed']:
                e(f's_waitcnt vmcnt({st["issued"] - x})')
                st['landed'] = x

        lab = [0]

        def clk_step():
            e('s_waitcnt lgkmcnt(0)')
            e('s_sub_u32 s86, s88, s85')
            e('s_mul_i32 s86, s86, 10')
            e('s_cmp_gt_u32 s86, s87')
            e('s_cselect_b32 vcc_lo, 1, 0')
            e(f's_add_u32 s87, s87, {self.tau}')
            e('s_memrealtime s[88:89]')

        vPos, vRef, vPA = 22, 23, 3

        def bal_step(i):
            if not self.bal:
                return
            if i % self.bstep == self.bstep - 2:
                e(f'v_add_u32 v{vPos}, {self.bstep}, v{vPos}')
                e(f'ds_write_b32 v{vPA}, v{vPos} offset:{L_PR}')
                e(f'ds_read_b32 v{vRef}, v{vPA} offset:{L_PR + 1024}')
            if i % self.bstep == self.bstep - 1:
                e('s_waitcnt lgkmcnt(0)')
                if self.snap:
                    e(f'v_cmp_gt_i32 vcc, 0, v{vRef}')
                    e(f'v_cmp_lt_i32 s[92:93], {self.him}, v{vRef}')
                    return
                e(f'v_cmp_gt_u32 vcc, v{vRef}, v{vPos}')
                if self.him:
                    e(f'v_sub_u32 v{vRef}, v{vPos}, v{vRef}')
                    e(f'v_add_u32 v{vRef}, {-self.him - 1}, v{vRef}')
                    e(f'v_cmp_gt_u32 s[92:93], 32, v{vRef}')

        def gate(pos, d):
            if (self.clk or self.bal) and st.get('adapt') and d == D:
                lab[0] += 1
                e(f's_cbranch_vccnz L_dg{lab[0]}')
                e(f's_waitcnt vmcnt({D-1})')
                if self.him:
                    e('s_cmp_eq_u32 s92, 0')
                    e(f's_cbranch_scc1 L_dg{lab[0]}')
                    e(f's_waitcnt vmcnt({self.dl-1})')
                e(f'L_dg{lab[0]}:')
                d = st.get('dh', self.dh)
            if self.dper and d == D and pos % self.dper == 0:
                d = D + 1
            if pos >= d:
                e(f's_waitcnt vmcnt({d-1})')
                st['landed'] = max(st['landed'], pos - d)
            st['issued'] = pos

        def kissue(n, d=None):
            gate(kpos(n), d or D)
            e(f'buffer_load_dwordx4 {rng(kslot(n))}, v{vK}, s[20:23], s28 offen offset:{(n % 4) * 1024}{self.kf}')
            if n % 4 == 3:
                e(f's_add_u32 s28, s28, {step(n):#x}')
                if self.rsh >= 0 and n % 32 == 31:
                    e('s_and_b32 s28, s28, 0x1fffff')

        def vissue(v, d=None):
            if 16 <= v < 32 and st.get('adapt'):
                bal_step(v)
            gate(vpos(v), d or D)
            e(f'buffer_load_dwordx4 {rng(vslot(v))}, v{vV}, s[24:27], s33 offen offset:{(v % 4) * 1024}{self.vf}')
            if v % 4 == 3:
                e(f's_add_u32 s33, s33, {step(v):#x}')
                if self.rsh >= 0 and v % 32 == 31:
                    e('s_and_b32 s33, s33, 0x1fffff')

        def kadds(pair, sreg):
            d = DT[pair & 1]
            i = pair & 3
            e(f'v_add_f32_dpp v{T}, v{d + (i+1) % 4}, v{d + i} row_ror:12 row_mask:0xf bank_mask:0xf')
            e(f'v_add_f32_dpp v{T}, v{d + (i+2) % 4}, v{T} row_ror:8 row_mask:0xf bank_mask:0xf')
            e(f'v_add_f32_dpp v{sreg}, v{d + (i+3) % 4}, v{T} row_ror:4 row_mask:0xf bank_mask:{1 << i:#x}')

        def kmfma(n):
            d = DT[(n >> 1) & 1]
            c = '0' if n % 2 == 0 else rng(d)
            e(f'v_mfma_f32_16x16x32_bf16 {rng(d)}, {rng(kslot(n))}, {rng(QB[n & 1])}, {c}')

        def shift4():
            for i in range(12):
                e(f'v_mov_b32 v{S+i}, v{S+i+4}')

        def vprep(pn, yreg, A=A):
            i = pn & 7
            e(f'v_mov_b32_dpp v{X}, v{yreg} row_newbcast:{2*i} row_mask:0xf bank_mask:0x3')
            e(f'v_mov_b32_dpp v{X}, v{yreg} row_newbcast:{2*i+1} row_mask:0xf bank_mask:0xc')
            for r in range(4):
                e(f'v_and_b32 v{A+r}, v{X}, v{MK+r}')

        def vmfma(v, first=False, A=A):
            c = '0' if first else rng(OA)
            e(f'v_mfma_f32_16x16x32_bf16 {rng(OA)}, {rng(A)}, {rng(vslot(v))}, {c}')

        e(f'v_lshlrev_b32 v{vV}, 4, v0')
        e('s_and_b32 s31, s32, 3')
        e(f's_mul_i32 s31, s31, {self.piece}')
        e('s_lshl_b32 s33, s3, 12')
        e('s_add_u32 s33, s33, s31')
        if self.rsh >= 0:
            e(f's_bfe_u32 s31, s32, {0x20000 | self.rsh:#x}')
            e('s_lshl_b32 s31, s31, 19')
            e('s_add_u32 s33, s33, s31')
        e('s_mov_b32 s28, s33')
        e('s_lshr_b32 s31, s32, 2')
        e('s_lshl_b32 s31, s31, 21')
        if self.prio:
            e(f's_setprio {self.prio}')
        e('s_waitcnt lgkmcnt(0)')
        self.keep_time(70)
        if self.clk:
            e('s_mov_b32 s85, s88')
        self.srd(24, 8, 0x200000, add='s31')
        for v in range(min(self.D0, 16)):
            vissue(v, d=self.D0)
        e('s_load_dword s34, s[18:19], 0')
        self.srd(20, 6, 0x200000, add='s31')
        e('v_lshrrev_b32 v3, 4, v0')
        e('v_bfe_u32 v4, v0, 2, 2')
        e('v_and_b32 v5, 3, v0')
        e('v_lshlrev_b32 v3, 6, v3')
        e('v_lshlrev_b32 v4, 8, v4')
        e('v_lshlrev_b32 v5, 4, v5')
        e(f'v_add3_u32 v{vK}, v3, v4, v5')
        e(f's_mov_b32 s30, {SCALE:#x}')
        e('v_lshrrev_b32 v3, 3, v0')
        e('v_xor_b32 v3, v3, v0')
        e('v_and_b32 v3, 1, v3')
        e('v_lshlrev_b32 v3, 4, v3')
        e('v_mov_b32 v4, 0xffff')
        e('v_lshlrev_b32 v3, v3, v4')
        e('v_bfe_u32 v4, v0, 1, 2')
        for r in range(4):
            e(f'v_cmp_eq_u32 vcc, {r}, v4')
            e('s_nop 1')
            e(f'v_cndmask_b32 v{MK+r}, 0, v3, vcc')
        e('v_and_b32 v3, 1, v0')
        e('v_lshlrev_b32 v3, 8, v3')
        e('v_lshrrev_b32 v4, 2, v0')
        e(f'v_lshl_add_u32 v{T2}, v4, 4, v3')
        e('v_and_b32 v3, 2, v0')
        e('v_cmp_ne_u32 vcc, 0, v3')
        for v in range(min(self.D0, 16), 16):
            vissue(v, d=self.D0)
            if v == self.D0:
                self.keep_time(72)
        self.keep_time(76)
        for n in range(32):
            kissue(n, d=self.D0 + max(0, n - (31 - self.pre)))
            if n == 8:
                self.keep_time(78)
        self.keep_time(60)
        if self.lay:
            e('s_branch L_stream2')
            self.others()
            self.align()
            e('L_stream2:')
        e('s_barrier')
        e(f'ds_read_b128 {rng(DT[0])}, v{T2} offset:{L_Q}')
        e('s_mov_b32 s29, 0')
        e(f's_waitcnt lgkmcnt(0) vmcnt({min(self.D0, 30)})')
        self.keep_time(62)
        self.make_tag()
        for r in range(4):
            e(f'v_cndmask_b32 v{QB[1]+r}, 0, v{DT[0]+r}, vcc')
            e(f'v_cndmask_b32 v{QB[0]+r}, v{DT[0]+r}, 0, vcc')
        e('s_nop 1')
        if self.clk:
            e('s_mov_b64 vcc, 0')
            e('s_memrealtime s[88:89]')
            e(f's_mov_b32 s87, {self.toff * 10 + 6 * self.tau}')
            st['adapt'] = True
        if self.bal:
            e('s_mov_b64 vcc, 0')
            e('s_mov_b64 s[92:93], 0')
            e(f'v_mov_b32 v{vPos}, 48')
            e(f'v_lshlrev_b32 v{vPA}, 2, v0')
            e('s_lshl_b32 s31, s3, 8')
            e(f'v_add_u32 v{vPA}, s31, v{vPA}')
            st['adapt'] = True
        self.align()
        e('L_kloop:')
        for p in range(16):
            n = 2 * p
            if self.clk and p % 4 == 3:
                clk_step()
            bal_step(n)
            kmfma(n)
            kissue(n + 32)
            bal_step(n + 1)
            kmfma(n + 1)
            kadds((p - 1) % 16, S + 12 + (((p - 1) % 16) >> 2))
            if p == 0:
                shift4()
            kissue(n + 33)
        e('s_add_u32 s29, s29, 1')
        e('s_cmp_lt_u32 s29, 3')
        e('s_cbranch_scc1 L_kloop')
        nv = 16
        st['issued'], st['landed'] = kpos(127), kpos(127) - max(D + 1, self.dh if (self.clk or self.bal) else 0)
        for p in range(16):
            n = 2 * p
            need_landed(kpos(96 + n + 1))
            kmfma(n)
            kmfma(n + 1)
            e('s_nop 0')
            kadds((p - 1) % 16, S + 12 + (((p - 1) % 16) >> 2))
            if p == 0:
                shift4()
            if p % 3 == 0:
                vissue(nv); nv += 1
            else:
                e('s_nop 1')
        e('s_nop 1')
        kadds(15, S + 15)
        e(f'v_max3_f32 v{M}, v{S}, v{S+1}, v{S+2}')
        e(f'v_max3_f32 v{T}, v{S+3}, v{S+4}, v{S+5}')
        for i in range(6, 14, 4):
            e(f'v_max3_f32 v{M}, v{M}, v{S+i}, v{S+i+1}')
            e(f'v_max3_f32 v{T}, v{T}, v{S+i+2}, v{S+i+3}')
        e(f'v_max3_f32 v{M}, v{M}, v{S+14}, v{S+15}')
        e(f'v_max_f32 v{M}, v{M}, v{T}')

        def allreduce(reg, op):
            for k in (2, 4, 8):
                e('s_nop 1')
                e(f'{op}_dpp v{reg}, v{reg}, v{reg} row_ror:{k} row_mask:0xf bank_mask:0xf')
            for sw in ('v_permlane16_swap_b32', 'v_permlane32_swap_b32'):
                e(f'v_mov_b32 v{T}, v{reg}')
                e('s_nop 1')
                e(f'{sw} v{reg}, v{T}')
                e(f'{op} v{reg}, v{reg}, v{T}')
        allreduce(M, 'v_max_f32')
        e(f'v_mul_f32 v{M}, s30, v{M}')
        vissue(nv); nv += 1
        for i in range(16):
            e(f'v_fma_f32 v{S+i}, v{S+i}, s30, -v{M}')
            e(f'v_exp_f32 v{S+i}, v{S+i}')
            if i == 10:
                vissue(nv); nv += 1
        e(f'v_add_f32 v{L}, v{S}, v{S+1}')
        for i in range(2, 16):
            e(f'v_add_f32 v{L}, v{L}, v{S+i}')
        vissue(nv); nv += 1
        for i in range(16):
            t = T2 if i & 1 else T3
            e(f'v_mov_b32_dpp v{t}, v{S+i} quad_perm:[1,0,3,2] row_mask:0xf bank_mask:0xf')
            e(f'v_cvt_pk_bf16_f32 v{S+i}, v{S+i}, v{t}')
        vissue(nv); nv += 1
        allreduce(L, 'v_add_f32')
        e(f'v_lshlrev_b32 v{T2}, 3, v0')
        e('s_lshl_b32 s31, s3, 4')
        e(f'v_add_u32 v{T2}, s31, v{T2}')
        e('s_mov_b64 exec, 3')
        e(f'ds_write_b64 v{T2}, v[{M}:{L}] offset:{L_ML}')
        e('s_mov_b64 exec, -1')
        self.keep_time(64)
        for pn in range(16):
            vprep(pn, S + (pn >> 3))
            if pn % 3 == 0 and pn < 15:
                vissue(nv); nv += 1
            else:
                e('s_nop 1')
            vmfma(pn, first=(pn == 0))
        assert nv <= 32, nv
        self.tail_setup()
        while nv < 32:
            vissue(nv); nv += 1
        e('s_mov_b32 s29, 0')
        if self.clk:
            e('s_waitcnt lgkmcnt(0)')
            e('s_memrealtime s[88:89]')
            e(f's_mov_b32 s87, {self.toff * 10 + 20 * self.tau}')
        elif not self.bal:
            e('s_mov_b64 vcc, 0')
        self.align()
        e('L_vloop:')
        sw_it, sw_i = divmod(96 - self.dfn, 32)
        for i in range(32):
            p2 = 16 + i
            if self.dfn and i == sw_i:
                e(f's_cmp_ge_u32 s29, {sw_it}')
                e('s_cselect_b32 vcc_lo, 1, 0')
            if self.clk and i % 8 == 7:
                clk_step()
            bal_step(i)
            if self.fin and i >= 32 - self.fin:
                st['dh'] = self.df
                if i == 32 - self.fin or i % self.bstep == self.bstep - 1:
                    e('s_cmp_eq_u32 s29, 2')
                    e('s_cselect_b32 vcc_lo, 1, vcc_lo')
            vprep(p2, S + (p2 >> 3))
            if self.dfn:
                e(f's_cbranch_vccnz L_g{i}')
                e(f's_waitcnt vmcnt({D-1})')
                e(f'L_g{i}:')
                vissue(32 + i, d=self.d2)
            else:
                vissue(32 + i)
            vmfma(p2)
        shift4()
        e('s_add_u32 s29, s29, 1')
        e('s_cmp_lt_u32 s29, 3')
        e('s_cbranch_scc1 L_vloop')
        e('L_tailcode:')
        self.keep_time(66)

        def wo_issue(i):
            e('s_mov_b32 m0, s46')
            e('s_add_u32 s46, s46, 1024')
            e(f'buffer_load_dwordx4 v{T_WO + ((i >> 1) & 1)}, s[36:39], s45 offen nt lds')
            e('s_add_u32 s45, s45, s94')
        if self.pw:
            if not self.pwall:
                e('s_cbranch_vccnz L_fburst')
            nwo = 0
            for _ in range(self.pw0):
                wo_issue(nwo); nwo += 1
            for i in range(LV):
                p2 = 16 + i
                vprep(p2, S + (p2 >> 3))
                if LV - 1 - i < max(D + 1, self.dh, self.df if self.fin else 0):
                    e(f's_waitcnt vmcnt({LV - 1 - i + nwo})')
                    e('s_nop 0')
                else:
                    e('s_nop 1')
                vmfma(p2)
                if LV - 1 - i < self.pw and nwo < 8:
                    wo_issue(nwo); nwo += 1
            while nwo < 8:
                wo_issue(nwo); nwo += 1
            if not self.pwall:
                e('s_branch L_fdone')
                e('L_fburst:')
        single = self.pw and self.pwall
        for i in range(0 if single else 8):
            wo_issue(i)
        dmax = self.d2 if self.dfn else max(D + 1, self.df if self.fin else 0, self.dh if (self.clk or self.bal) else 0)
        for i in range(0 if single else LV - self.fpre):
            p2 = 16 + i
            vprep(p2, S + (p2 >> 3))
            if LV - 1 - i < dmax:
                e(f's_waitcnt vmcnt({LV - 1 - i + 8})')
                e('s_nop 0')
            else:
                e('s_nop 1')
            vmfma(p2)
        for i in range(LV - self.fpre, LV):
            vprep(16 + i, S + ((16 + i) >> 3), A=192 + 4 * (LV - 1 - i))
        for i in range(LV - self.fpre, LV):
            e(f's_waitcnt vmcnt({LV - 1 - i + 8})')
            vmfma(16 + i, A=192 + 4 * (LV - 1 - i))
        e('L_fdone:')
        e('s_cmp_ge_u32 s2, 144')
        e('s_nop 6')
        e(f'ds_write_b128 v{T_OL}, {rng(OA)} offset:{L_O}')
        e('s_waitcnt lgkmcnt(0)')
        self.keep_time(68)
        e('s_barrier')
        if self.enc >= 1000:
            e('s_cselect_b32 s84, 1, 0')
            e('s_waitcnt lgkmcnt(0)')
            e('v_mov_b32 v12, s58')
            e(f'v_mov_b32 v13, s{self.enc % 1000}')
            e('s_lshl_b32 s85, s2, 5')
            e('s_lshl_b32 s86, s3, 3')
            e('s_add_u32 s85, s85, s86')
            e('s_add_u32 s85, s85, 0x40000')
            e('v_mov_b32 v14, 0')
            e('s_mov_b64 exec, 1')
            e('buffer_store_dwordx2 v[12:13], v14, s[40:43], s85 offen sc1')
            e('s_mov_b64 exec, -1')
            e('s_cmp_eq_u32 s84, 1')
        e('s_cbranch_scc1 L_notproj')
        BW, AO, PO = 56, 88, 120
        e('s_barrier')
        for j in range(2):
            e(f'buffer_load_dwordx4 {rng(PO + 4*j)}, v{vV}, s[40:43], s44 offen offset:{1024*j} sc1')
        e('s_mov_b32 s48, 0')

        def ocheck():
            e('s_waitcnt vmcnt(1)')
            e(f'v_max3_u32 v20, v{PO}, v{PO+1}, v{PO+2}')
            e('s_waitcnt vmcnt(0)')
            e(f'v_max3_u32 v21, v{PO+4}, v{PO+5}, v{PO+6}')
            e(f'v_max3_u32 v20, v20, v{PO+3}, v{PO+7}')
            e('v_max_u32 v20, v20, v21')
            e('v_cmp_eq_u32 vcc, -1, v20')

        def ostage():
            e(f'ds_write_b128 v{T_AW}, {rng(PO)} offset:{L_A}')
            e(f'ds_write_b128 v{T_AW}, {rng(PO+4)} offset:{L_A + 2*528}')
            e('s_waitcnt lgkmcnt(0)')
        if self.early:
            ocheck()
            e('s_nop 0')
            e('s_cbranch_vccnz L_onot')
            ostage()
            e('L_onot:')
        else:
            e('s_waitcnt vmcnt(2)')
        e('s_barrier')
        self.keep_time(50)
        for kk in range(8):
            gp = kk >> 1
            for hf in range(2):
                row = 64 * (kk & 1) + 8 * hf + 4 * (gp & 1)
                r = BW + kk * 4 + 2 * hf
                e(f'ds_read_b64_tr_b16 v[{r}:{r+1}], v{T_TR + (gp >> 1)} offset:{L_WO + row * 128}')
        if self.early:
            e('s_cbranch_vccz L_ostaged')
            e('s_mov_b64 exec, vcc')
        else:
            e('s_branch L_ochk')
        self.align()
        e('L_opoll:')
        if self.pslp:
            e(f's_sleep {self.pslp}')
        for j in range(2):
            e(f'buffer_load_dwordx4 {rng(PO + 4*j)}, v{vV}, s[40:43], s44 offen offset:{1024*j} sc1')
        e('L_ochk:')
        e('s_add_u32 s48, s48, 1')
        e(f's_cmp_ge_u32 s48, {SPIN}')
        e('s_cbranch_scc1 L_ook')
        ocheck()
        e('s_and_b64 exec, exec, vcc')
        e('s_cbranch_scc1 L_opoll')
        e('L_ook:')
        e('s_mov_b64 exec, -1')
        ostage()
        e('L_ostaged:')
        e('s_barrier')
        self.keep_time(52)
        for kk in range(8):
            e(f'ds_read_b128 {rng(AO + 4*kk)}, v{T_A} offset:{L_A + 64*kk}')
        for kk in range(8):
            c = '0' if kk == 0 else 'v[12:15]'
            e(f's_waitcnt lgkmcnt({7-kk})')
            e(f'v_mfma_f32_16x16x32_bf16 v[12:15], {rng(AO + 4*kk)}, {rng(BW + 4*kk)}, {c}')
        e('v_mov_b32 v17, s34')
        e('v_mov_b32 v19, s34')
        e('s_mov_b32 s48, 0x55555555')
        e('s_nop 4')
        e('v_add_f32 v12, v12, v13')
        e('v_add_f32 v14, v14, v15')
        e('v_add_f32 v16, v12, v14')
        if self.abl & 256:
            e('s_cmp_lg_u32 s3, 0')
            e('s_cbranch_scc1 L_end')
        if self.p4:
            e('s_nop 1')
            e('v_mov_b32_dpp v18, v16 quad_perm:[1,1,3,3] row_mask:0xf bank_mask:0xf')
            e('s_mov_b32 exec_lo, s48')
            e('s_mov_b32 exec_hi, s48')
            e(f'buffer_store_dwordx4 v[16:19], v{T_P}, s[40:43], s47 offen sc1')
        else:
            e(f'buffer_store_dwordx2 v[16:17], v{T_P}, s[40:43], s47 offen sc1')
        self.keep_time(54)
        if self.stamps:
            e('s_branch L_sflush')
        e('s_endpgm')
        e('L_notproj:')
        e('s_cmp_ge_u32 s2, 180')
        e('s_cbranch_scc1 ' + ('L_sflush' if self.stamps else 'L_end'))
        if self.rb:
            e('s_barrier')
        if self.abl & 256:
            e('s_cmp_lg_u32 s3, 0')
            e('s_cbranch_scc1 L_end')
        self.keep_time(50)
        e('s_mov_b32 s48, 0')
        e('s_mov_b32 s36, s14')
        e('s_mov_b32 s37, s15')
        e(f's_mov_b32 s38, {4 * 576 * 2}')
        e('s_and_b32 s45, s35, 3')
        e('s_mul_i32 s45, s45, 1152')
        e('s_lshr_b32 s31, s35, 2')
        e('s_lshl_b32 s31, s31, 7')
        e('s_add_u32 s45, s45, s31')
        e('s_lshl_b32 s31, s3, 5')
        e('s_add_u32 s45, s45, s31')
        if self.rd:
            R = self.rd
            base = lambda k: 56 + 8 * (k % R)

            def rissue(k):
                r = base(k)
                e(f'buffer_load_dwordx4 v[{r}:{r+3}], v{T_A}, s[40:43], s44 offen sc1')
                e(f'buffer_load_dwordx4 v[{r+4}:{r+7}], v{T_A}, s[40:43], s47 offen sc1')
            for k in range(R - 1):
                rissue(k)
            self.align()
            e('L_ppoll:')
            for k in range(R):
                rissue(k + R - 1)
                if self.rsp:
                    e(f's_sleep {self.rsp}')
                r = base(k)
                e(f's_waitcnt vmcnt({2 * (R - 1)})')
                e(f'v_xor_b32 v20, s34, v{r+1}')
                e(f'v_xor_b32 v21, s34, v{r+3}')
                e(f'v_xor_b32 v22, s34, v{r+5}')
                e(f'v_xor_b32 v23, s34, v{r+7}')
                e(f'v_add_f32 v12, v{r}, v{r+4}')
                e('v_or3_b32 v20, v20, v21, v22')
                e(f'v_add_f32 v14, v{r+2}, v{r+6}')
                e('v_or_b32 v20, v20, v23')
                e('v_cmp_ne_u32 vcc, 0, v20')
                e('s_cbranch_vccz L_pok')
            e('s_add_u32 s48, s48, 1')
            e(f's_cmp_lt_u32 s48, {SPIN}')
            e('s_cbranch_scc1 L_ppoll')
            e('L_pok:')
            self.keep_time(52)
        else:
            self.align()
            e('L_ppoll:')
            if self.rslp:
                e(f's_sleep {self.rslp}')
            e(f'buffer_load_dwordx4 v[12:15], v{T_A}, s[40:43], s44 offen sc1')
            e(f'buffer_load_dwordx4 v[16:19], v{T_A}, s[40:43], s47 offen sc1')
            e('s_add_u32 s48, s48, 1')
            e(f's_cmp_ge_u32 s48, {SPIN}')
            e('s_cbranch_scc1 L_pok')
            e('s_waitcnt vmcnt(1)')
            e('v_xor_b32 v20, s34, v13')
            e('v_xor_b32 v21, s34, v15')
            e('s_waitcnt vmcnt(0)')
            e('v_xor_b32 v22, s34, v17')
            e('v_xor_b32 v23, s34, v19')
            e('v_or3_b32 v20, v20, v21, v22')
            e('v_or_b32 v20, v20, v23')
            e('v_cmp_ne_u32 vcc, 0, v20')
            e('s_and_b64 exec, exec, vcc')
            e('s_cbranch_scc1 L_ppoll')
            e('L_pok:')
            e('s_mov_b64 exec, -1')
            e('s_waitcnt vmcnt(0)')
            self.keep_time(52)
            e('v_add_f32 v12, v12, v16')
            e('v_add_f32 v14, v14, v18')
        e('s_nop 0')
        e('v_add_f32_dpp v12, v12, v12 row_ror:8 row_mask:0xf bank_mask:0xf')
        e('v_add_f32_dpp v14, v14, v14 row_ror:8 row_mask:0xf bank_mask:0xf')
        e('s_nop 1')
        e('v_permlane16_swap_b32 v12, v14')
        e('v_add_f32 v12, v12, v14')
        e('v_mov_b32 v14, v12')
        e('s_nop 1')
        e('v_permlane32_swap_b32 v12, v14')
        e('v_add_f32 v12, v12, v14')
        e('v_cvt_pk_bf16_f32 v12, v12, v12')
        e('s_mov_b64 exec, 0x00ff00ff')
        e(f'buffer_store_short v12, v{T_P}, s[36:39], s45 offen' + ['', ' sc1', ' nt', ' sc0 sc1'][self.osc])
        self.keep_time(54)
        e('s_add_u32 s48, s2, s3')
        e('s_cmp_lg_u32 s48, 144')
        e('s_cbranch_scc1 ' + ('L_sflush' if self.stamps else 'L_end'))
        e('v_mov_b32 v4, s34')
        e('v_mov_b32 v6, 0')
        e('s_mov_b64 exec, 1')
        e('buffer_store_dword v4, v6, s[40:43], 0 offen')
        if self.dbgt:
            e('s_waitcnt lgkmcnt(0)')
            e('s_mov_b32 s80, 8000')
            if self.enc >= 1000:
                e('s_mov_b64 exec, -1')
                e('s_sleep 64')
                e('v_lshlrev_b32 v14, 7, v0')
                e('s_mov_b32 s85, 0x40000')
                for i in range(4):
                    e(f'buffer_load_dwordx2 v[{20+2*i}:{21+2*i}], v14, s[40:43], s85 offen offset:{32*i} sc1')
                e('s_waitcnt vmcnt(0)')
                op = 'v_max_u32' if self.enc < 2000 else 'v_min_u32'
                for i in range(1, 4):
                    e(f'v_min_u32 v20, v20, v{20+2*i}')
                    e(f'{op} v21, v21, v{21+2*i}')
                e('s_nop 1')
                e('v_readlane_b32 s81, v21, 0')
                e('v_readlane_b32 s85, v20, 0')
                for l in range(1, 64):
                    e(f'v_readlane_b32 s86, v21, {l}')
                    e(f'v_readlane_b32 s87, v20, {l}')
                    e(('s_max_u32' if self.enc < 2000 else 's_min_u32') + ' s81, s81, s86')
                    e('s_min_u32 s85, s85, s87')
                e('s_sub_u32 s81, s81, s85')
                e(f's_mul_i32 s81, s81, {self.encm}')
                e('s_add_u32 s80, s80, s81')
            elif self.enc > 0:
                e(f's_sub_u32 s81, s{self.enc}, s58')
                e(f's_mul_i32 s81, s81, {self.encm}')
                e('s_add_u32 s80, s80, s81')
            e('L_enc:')
            e('s_memrealtime s[82:83]')
            e('s_waitcnt lgkmcnt(0)')
            e('s_sub_u32 s82, s82, s58')
            e('s_cmp_lt_u32 s82, s80')
            e('s_cbranch_scc1 L_enc')
        if self.stamps:
            e('L_sflush:')
            e('s_mov_b64 exec, -1')
            e('s_cmp_lg_u32 s3, 0')
            e('s_cbranch_scc1 L_end')
            for k, sr in enumerate((58, 60, 62, 64, 66, 68)):
                self.flush_time(k, sr)
            for k, sr in ((12, 50), (13, 52), (14, 54), (16, 70), (17, 72), (15, 76), (19, 78)):
                self.flush_time(k, sr)
        e('s_endpgm')

    def proj_role(self, shkv, stg):
        e = self.e
        if self.xm:
            e(f's_lshr_b32 s{stg}, s2, 3')
            e(f's_and_b32 s{shkv}, s2, 7')
            e(f's_cmp_ge_u32 s{stg}, 9')
            e(f's_cselect_b32 s95, 8, 0')
            e(f's_add_u32 s{shkv}, s{shkv}, s95')
            e(f's_cmp_ge_u32 s{stg}, 9')
            e(f's_cselect_b32 s95, 9, 0')
            e(f's_sub_u32 s{stg}, s{stg}, s95')
        else:
            e(f's_mul_i32 s{shkv}, s2, 57')
            e(f's_lshr_b32 s{shkv}, s{shkv}, 9')
            e(f's_mul_i32 s{stg}, s{shkv}, 9')
            e(f's_sub_u32 s{stg}, s2, s{stg}')

    def tail_setup(self):
        e = self.e
        t0, t1, t2, t3 = 200, 201, 202, 203
        self.srd(40, 18, WSWIN)
        e(f'v_lshlrev_b32 v{T_OL}, 4, v0')
        e('s_lshl_b32 s31, s3, 10')
        e(f'v_add_u32 v{T_OL}, s31, v{T_OL}')
        e('s_lshl_b32 s46, s3, 13')
        e(f's_add_u32 s46, s46, {L_WO}')
        e('s_cmp_ge_u32 s2, 144')
        e('s_cbranch_scc1 L_ts_red')
        e('s_mov_b32 s94, 9216')
        self.proj_role(35, 31)
        e('s_mul_i32 s47, s35, 9')
        e('s_add_u32 s47, s47, s31')
        self.srd(36, 12, 0 if self.abl & 4 else 4096 * 576 * 2)
        e('s_lshl_b32 s45, s35, 2')
        e('s_add_u32 s45, s45, s3')
        e(f's_mul_i32 s45, s45, {64 * 1152}')
        e('s_lshl_b32 s31, s31, 7')
        e('s_add_u32 s45, s45, s31')
        e(f'v_lshrrev_b32 v{t0}, 3, v0')
        e(f'v_mul_u32_u24 v{t1}, 1152, v{t0}')
        e(f'v_and_b32 v{t0}, 2, v{t0}')
        e(f'v_and_b32 v{t2}, 7, v0')
        e(f'v_xor_b32 v{t2}, v{t2}, v{t0}')
        e(f'v_lshl_add_u32 v{T_WO}, v{t2}, 4, v{t1}')
        e(f'v_xor_b32 v{t2}, 4, v{t2}')
        e(f'v_lshl_add_u32 v{T_WO+1}, v{t2}, 4, v{t1}')
        e(f'v_bfe_u32 v{t0}, v0, 3, 1')
        e(f'v_bfe_u32 v{t1}, v0, 2, 1')
        e(f'v_lshl_add_u32 v{t2}, v{t1}, 1, v{t0}')
        e(f'v_and_b32 v{t3}, 0x30, v0')
        e(f'v_lshl_add_u32 v{t3}, v{t0}, 7, v{t3}')
        e(f'v_add_u32 v{T_TR}, v{t3}, v{t2}')
        e(f'v_xor_b32 v{T_TR+1}, 1, v{T_TR}')
        e(f'v_bfe_u32 v{t0}, v0, 4, 1')
        e(f'v_lshl_add_u32 v{t0}, v{t0}, 1, v{t1}')
        e(f'v_xor_b32 v{t0}, s3, v{t0}')
        e(f'v_lshlrev_b32 v{t0}, 5, v{t0}')
        e(f'v_and_b32 v{t1}, 3, v0')
        e(f'v_lshl_add_u32 v{t0}, v{t1}, 3, v{t0}')
        e(f'v_lshl_add_u32 v{T_TR}, v{T_TR}, 7, v{t0}')
        e(f'v_lshl_add_u32 v{T_TR+1}, v{T_TR+1}, 7, v{t0}')
        e('s_lshl_b32 s44, s3, 4')
        e('s_add_u32 s44, s44, s35')
        e(f's_mul_i32 s44, s44, {self.PS}')
        e(f's_add_u32 s44, s44, {PBASE}')
        e(f'v_lshrrev_b32 v{t0}, 5, v0')
        e(f'v_lshl_add_u32 v{t0}, s3, 2, v{t0}')
        e(f'v_mul_u32_u24 v{t0}, 528, v{t0}')
        e(f'v_and_b32 v{t1}, 31, v0')
        e(f'v_lshl_add_u32 v{T_AW}, v{t1}, 4, v{t0}')
        e(f'v_and_b32 v{t0}, 15, v0')
        e(f'v_mul_u32_u24 v{t0}, 528, v{t0}')
        e(f'v_and_b32 v{t1}, 0x30, v0')
        e(f'v_add_u32 v{T_A}, v{t0}, v{t1}')
        e(f'v_and_b32 v{t0}, 15, v0')
        e(f'v_lshlrev_b32 v{t0}, 3, v{t0}')
        e(f'v_lshl_add_u32 v{T_P}, v{t1}, 5, v{t0}')
        e('s_lshl_b32 s47, s47, 11')
        e('s_lshl_b32 s31, s3, 7')
        e('s_add_u32 s47, s47, s31')
        e(f's_add_u32 s47, s47, {POFF}')
        e('s_branch L_ts_done')
        e('L_ts_red:')
        e('s_mov_b32 s94, 1024')
        if self.cop:
            self.srd(36, 12, 4096 * 576 * 2)
            e('s_lshr_b32 s31, s2, 3')
            e('s_sub_u32 s31, s31, 18')
            e('s_and_b32 s45, s31, 1')
            e('s_lshl_b32 s45, s45, 3')
            e('s_and_b32 s35, s2, 7')
            e('s_add_u32 s45, s45, s35')
            e(f's_mul_i32 s45, s45, {256 * 1152}')
            e('s_lshr_b32 s31, s31, 1')
            e(f's_mul_i32 s35, s3, {64 * 1152}')
            e('s_add_u32 s45, s45, s35')
            e('s_lshl_b32 s31, s31, 13')
            e(f's_add_u32 s31, s31, {64 * 1152 - 7 * 8192}')
            e('s_add_u32 s45, s45, s31')
            e(f'v_lshlrev_b32 v{T_WO}, 4, v0')
            e(f'v_lshlrev_b32 v{T_WO+1}, 4, v0')
        else:
            self.srd(36, 14, 0)
            e('s_mov_b32 s45, 0')
            e(f'v_mov_b32 v{T_WO}, 0')
            e(f'v_mov_b32 v{T_WO+1}, 0')
        e(f'v_mov_b32 v{T_TR}, 0')
        e(f'v_mov_b32 v{T_TR+1}, 0')
        e('s_sub_u32 s35, s2, 144')
        e(f'v_lshrrev_b32 v{t0}, 3, v0')
        e(f'v_mul_u32_u24 v{t0}, 18432, v{t0}')
        e(f'v_and_b32 v{t1}, 7, v0')
        e(f'v_lshl_add_u32 v{T_A}, v{t1}, 4, v{t0}')
        e('s_lshl_b32 s44, s35, 9')
        e('s_lshl_b32 s31, s3, 7')
        e('s_add_u32 s44, s44, s31')
        e(f's_add_u32 s44, s44, {POFF}')
        e(f's_add_u32 s47, s44, {8 * 18432}')
        e(f'v_lshrrev_b32 v{t0}, 4, v0')
        e(f'v_lshl_add_u32 v{t0}, v{t1}, 1, v{t0}')
        e(f'v_lshlrev_b32 v{T_P}, 1, v{t0}')
        e('L_ts_done:')

    def align(self):
        self.e('.p2align 3')

    def make_tag(self):
        self.e('s_add_u32 s34, s34, 0x7f4a7c15')

    def pack4(self, dst, z, vtag):
        e = self.e
        e(f'v_perm_b32 v{dst}, v{z[0]}, v{z[1]}, s90')
        e(f'v_perm_b32 v{dst+1}, v{z[1]}, v{vtag}, s91')
        e(f'v_perm_b32 v{dst+2}, v{z[2]}, v{z[3]}, s90')
        e(f'v_perm_b32 v{dst+3}, v{z[3]}, v{vtag}, s92')

    def pack_consts(self):
        e = self.e
        e('s_mov_b32 s90, 0x07060501')
        e('s_mov_b32 s91, 0x07060100')
        e('s_mov_b32 s92, 0x07060302')
        e('s_mov_b32 s93, 0x05040100')
        e('s_mov_b32 s94, 0x0706000c')

    def check4(self, pieces, tmp):
        e = self.e
        for i, p in enumerate(pieces):
            e(f'v_perm_b32 v{tmp+i}, v{p+3}, v{p+1}, s93')
        for i, p in enumerate(pieces):
            e(f'v_xor_b32 v{tmp+i}, s34, v{tmp+i}')
        e(f'v_or3_b32 v{tmp}, v{tmp}, v{tmp+1}, v{tmp+2}')
        e(f'v_or_b32 v{tmp}, v{tmp}, v{tmp+3}')
        e(f'v_cmp_ne_u32 vcc, 0, v{tmp}')

    def unpack_sum4(self, pieces):
        e = self.e
        for p in pieces:
            e(f'v_perm_b32 v{p+1}, v{p+1}, v{p}, s94')
            e(f'v_perm_b32 v{p+3}, v{p+3}, v{p+2}, s94')
            e(f'v_and_b32 v{p}, 0xffffff00, v{p}')
            e(f'v_and_b32 v{p+2}, 0xffffff00, v{p+2}')
        p0, p1, p2, p3 = pieces
        for t in range(4):
            e(f'v_add_f32 v{p0+t}, v{p0+t}, v{p1+t}')
            e(f'v_add_f32 v{p2+t}, v{p2+t}, v{p3+t}')
        for t in range(4):
            e(f'v_add_f32 v{p0+t}, v{p0+t}, v{p2+t}')

    def publish(self, stores):
        e = self.e
        self.npub = getattr(self, 'npub', 0) + 1
        n = self.npub
        if self.loc:
            e('s_cmp_lg_u32 s49, 0')
            e(f's_cbranch_scc1 L_pubL{n}')
        for st in stores:
            e(st + (' sc1' if st.startswith('buffer_store') else ''))
        if self.loc:
            e(f's_branch L_pubE{n}')
            e(f'L_pubL{n}:')
            for st in stores:
                e(st + (' nt' if st.startswith('buffer_store') and self.lnt >> (n - 1) & 1 else ''))
            e(f'L_pubE{n}:')

    def read_loc(self):
        e = self.e
        if not self.loc:
            return
        e('s_mov_b32 s48, 0')
        e('s_mov_b32 s49, 1')
        e('L_rz:')
        e('s_waitcnt vmcnt(0)')
        e('v_cmp_ne_u32 vcc, s37, v14')
        e('s_add_u32 s48, s48, 1')
        e('s_cbranch_vccz L_rzdone')
        e('buffer_load_dword v14, v15, s[28:31], s36 offen sc1')
        e('s_cmp_lt_u32 s48, 4')
        e('s_cbranch_scc1 L_rz')
        e('s_mov_b32 s49, 0')
        e('L_rzdone:')

    def wait_mid(self, lab, vzero, scnt):
        e = self.e
        e(f's_mov_b32 s{scnt}, 0')
        e(f'{lab}:')
        e(f's_sleep {self.slp}')
        for w in range(4):
            e(f'ds_read_b128 v[{16 + 4*w}:{19 + 4*w}], v{vzero} offset:{L_ML + 16*w}')
        e(f's_add_u32 s{scnt}, s{scnt}, 1')
        e('s_waitcnt lgkmcnt(0)')
        self.maxu(32, range(16, 32))
        e('v_cmp_eq_u32 vcc, -1, v32')
        e('s_nop 0')
        e(f's_cbranch_vccz {lab}_ok')
        e(f's_cmp_lt_u32 s{scnt}, {SPIN}')
        e(f's_cbranch_scc1 {lab}')
        e(f'{lab}_ok:')

    def maxu(self, dst, regs):
        e = self.e
        regs = list(regs)
        e(f'v_max3_u32 v{dst}, v{regs[0]}, v{regs[1]}, v{regs[2]}')
        regs = regs[3:]
        while len(regs) >= 2:
            e(f'v_max3_u32 v{dst}, v{dst}, v{regs[0]}, v{regs[1]}')
            regs = regs[2:]
        if regs:
            e(f'v_max_u32 v{dst}, v{dst}, v{regs[0]}')

    def helper(self):
        e = self.e
        rng = lambda r: f'v[{r}:{r+3}]'
        XA = 16
        WB = 64
        DQ = 40
        e('s_and_b32 s40, s32, 63')
        e('s_lshr_b32 s35, s32, 6')
        e('v_lshrrev_b32 v1, 3, v0')
        e('v_lshlrev_b32 v1, 13, v1')
        e('v_and_b32 v2, 7, v0')
        e('v_lshl_add_u32 v1, v2, 4, v1')
        e(f's_mul_i32 s42, s35, {144 * 8192}')
        e('s_lshl_b32 s41, s40, 7')
        e('s_add_u32 s42, s42, s41')
        e('v_and_b32 v2, 3, v0')
        e('v_mul_u32_u24 v2, 1152, v2')
        e('v_lshrrev_b32 v3, 4, v0')
        e('v_lshl_add_u32 v7, v3, 3, v2')
        e('v_lshl_add_u32 v2, v3, 4, v2')
        e('s_mul_i32 s43, s35, 288')
        e('s_waitcnt lgkmcnt(0)')
        e('s_load_dword s34, s[18:19], 0')
        self.srd(24, 4, 4 * 576 * 2)
        for kk in range(4):
            e(f'buffer_load_dwordx4 {rng(XA + 4*kk)}, v2, s[24:27], s43 offen offset:{kk*64}')
        e(f'buffer_load_dwordx2 v[{XA+16}:{XA+17}], v7, s[24:27], s43 offen offset:256')
        self.srd(20, 10, 576 * 4096 * 2)
        for i in range(18):
            e(f's_mov_b32 m0, {L_WQ + 1024 * i}')
            if i:
                e('s_add_u32 s42, s42, 0x10000')
            else:
                e('s_nop 0')
            if self.wqp and i >= self.wqp:
                e(f's_waitcnt vmcnt({self.wqp - 1})')
            if not self.abl & 1:
                e('buffer_load_dwordx4 v1, s[20:23], s42 offen nt lds')
        if self.pf:
            e('s_getpc_b64 s[54:55]')
            e('L_pc:')
            e(f's_sub_u32 s54, s54, L_pc-{NAME}')
            e('s_subb_u32 s55, s55, 0')
            e('v_lshlrev_b32 v14, 7, v0')
            e('global_load_dword v60, v14, s[54:55]')
            e('v_add_u32 v14, 0x2000, v14')
            e(f'v_cmp_gt_u32 vcc, L_codeend-{NAME}, v14')
            e('s_and_saveexec_b64 s[56:57], vcc')
            e('global_load_dword v61, v14, s[54:55]')
            e('s_mov_b64 exec, s[56:57]')
        self.srd(28, 18, WSWIN)
        for r in range(4):
            e(f'v_mov_b32 v{8+r}, -1')
        e('v_lshlrev_b32 v4, 4, v0')
        e('s_lshr_b32 s44, s32, 2')
        e(f's_mul_i32 s44, s44, {self.PS}')
        e(f's_add_u32 s44, s44, {PBASE}')
        e('s_and_b32 s43, s32, 3')
        e('s_lshl_b32 s45, s43, 9')
        e('s_add_u32 s45, s45, s44')
        e('s_lshl_b32 s47, s43, 8')
        e('s_add_u32 s47, s47, s44')
        e('s_mov_b64 exec, 15')
        e(f'ds_write_b128 v4, v[8:11] offset:{L_ML}')
        e('s_mov_b64 exec, -1')
        self.pack_consts()
        e('v_bfe_u32 v5, v0, 2, 2')
        e('v_lshlrev_b32 v5, 7, v5')
        e('v_and_b32 v6, 3, v0')
        e('v_lshl_add_u32 v5, v6, 3, v5')
        e('v_lshl_add_u32 v6, v3, 9, v5')
        e('v_lshl_add_u32 v5, v3, 10, v5')
        e(f's_mov_b32 s41, {16 * self.PS}')
        e('v_mul_lo_u32 v7, s41, v3')
        e('v_and_b32 v12, 15, v0')
        e('v_lshl_add_u32 v7, v12, 4, v7')
        e('s_lshr_b32 s46, s40, 2')
        e(f's_mul_i32 s46, s46, {self.PS}')
        e('s_lshl_b32 s41, s35, 10')
        e('s_add_u32 s46, s46, s41')
        e('s_and_b32 s41, s40, 3')
        e('s_lshl_b32 s41, s41, 8')
        e('s_add_u32 s46, s46, s41')
        e(f's_add_u32 s46, s46, {PBASE + 4096}')
        e('s_add_u32 s50, s44, 4096')
        e('v_and_b32 v12, 15, v0')
        e('v_lshlrev_b32 v12, 1, v12')
        e('v_lshl_add_u32 v12, v3, 7, v12')
        e('s_waitcnt lgkmcnt(0)')
        self.make_tag()
        e('v_mov_b32 v13, s34')
        if self.loc:
            e('s_getreg_b32 s36, hwreg(HW_REG_XCC_ID, 0, 4)')
            e('s_lshl_b32 s36, s36, 12')
            e(f's_add_u32 s36, s36, {BOFF + 256}')
            e('s_and_b32 s37, s2, 7')
            e('s_add_u32 s37, s37, s34')
            e('v_and_b32 v15, 31, v0')
            e('v_lshlrev_b32 v15, 2, v15')
        self.keep_time(74)
        e('s_waitcnt vmcnt(0)')
        if self.loc:
            e('buffer_load_dword v14, v15, s[28:31], s36 offen sc1')
        self.keep_time(60)
        for t in range(4):
            for kk in range(4):
                for hf in range(2):
                    r = WB + 20*t + 4*kk + 2*hf
                    e(f'ds_read_b64_tr_b16 v[{r}:{r+1}], v5 offset:{L_WQ + (32*kk + 4*hf)*128 + 32*t}')
            r = WB + 20*t + 16
            e(f'ds_read_b64_tr_b16 v[{r}:{r+1}], v6 offset:{L_WQ + 128*128 + 32*t}')
        for t in range(4):
            e(f's_waitcnt lgkmcnt({min(15, 9*(3-t))})')
            for kk in range(4):
                c = '0' if kk == 0 else rng(DQ + 4*t)
                e(f'v_mfma_f32_16x16x32_bf16 {rng(DQ + 4*t)}, {rng(XA + 4*kk)}, {rng(WB + 20*t + 4*kk)}, {c}')
        e('s_nop 3')
        for t in range(4):
            r = WB + 20*t + 16
            e(f'v_mfma_f32_16x16x16_bf16 {rng(DQ + 4*t)}, v[{XA+16}:{XA+17}], v[{r}:{r+1}], {rng(DQ + 4*t)}')
        e('s_nop 4')
        for t in range(4):
            for b in range(1, 4):
                e(f'v_mov_b32_dpp v{DQ+4*t}, v{DQ+4*t+b} quad_perm:[0,1,2,3] row_mask:{1 << b:#x} bank_mask:0xf')
        self.pack4(36, [DQ + 4*t for t in range(4)], 13)
        e('v_mov_b32 v5, 0')
        self.read_loc()
        self.publish(['buffer_store_dwordx4 v[36:39], v7, s[28:31], s46 offen',
                      's_mov_b32 exec_hi, 0',
                      'buffer_store_dwordx4 v[8:11], v4, s[28:31], s45 offen',
                      's_mov_b32 exec_hi, -1'])
        self.keep_time(62)
        e('s_mov_b32 s48, 0')
        if self.qd:
            e(f's_sleep {self.qd}')
        if self.abl & 10:
            e('s_branch L_qok')
        e('L_qpoll:')
        for k in range(4):
            e(f'buffer_load_dwordx4 {rng(16 + 4*k)}, v4, s[28:31], s50 offen offset:{1024*k} sc1')
        e('s_add_u32 s48, s48, 1')
        e('s_waitcnt vmcnt(0)')
        self.check4([16, 20, 24, 28], 32)
        e('s_nop 0')
        e('s_cbranch_vccz L_qok')
        e(f's_sleep {self.qslp}')
        e(f's_cmp_lt_u32 s48, {SPIN}')
        e('s_cbranch_scc1 L_qpoll')
        e('L_qok:')
        self.unpack_sum4([16, 20, 24, 28])
        e('v_cvt_pk_bf16_f32 v20, v16, v17')
        e('v_cvt_pk_bf16_f32 v21, v18, v19')
        e(f'ds_write_b16 v12, v20 offset:{L_Q}')
        e(f'ds_write_b16_d16_hi v12, v20 offset:{L_Q + 32}')
        e(f'ds_write_b16 v12, v21 offset:{L_Q + 64}')
        e(f'ds_write_b16_d16_hi v12, v21 offset:{L_Q + 96}')
        e('s_waitcnt lgkmcnt(0)')
        self.keep_time(64)
        e('s_barrier')
        self.wait_mid('L_mlwait', 5, 48)
        e('s_waitcnt vmcnt(0)')
        for h in range(2):
            m = [16 + 4*w + 2*h for w in range(4)]
            d = 36 + 4*h
            e(f'v_max3_f32 v{d}, v{m[0]}, v{m[1]}, v{m[2]}')
            e(f'v_max_f32 v{d}, v{d}, v{m[3]}')
            for w in range(4):
                e(f'v_sub_f32 v{44+w}, v{m[w]}, v{d}')
                e(f'v_exp_f32 v{44+w}, v{44+w}')
            e(f'v_mov_b32 v{d+1}, s34')
            e(f'v_mul_f32 v{d+2}, v44, v{m[0]+1}')
            for w in range(1, 4):
                e(f'v_fmac_f32 v{d+2}, v{44+w}, v{m[w]+1}')
            e(f'v_mov_b32 v{d+3}, s34')
        e('s_mov_b64 exec, 1')
        if self.abl & 64:
            e('s_branch L_wrdy_ok')
        self.publish(['buffer_store_dwordx4 v[36:39], v5, s[28:31], s47 offen offset:2048',
                      'buffer_store_dwordx4 v[40:43], v5, s[28:31], s47 offen offset:2064'])
        e('s_mov_b32 s48, 0')
        for _ in range(self.mld):
            e('s_sleep 127')
        e('L_gml:')
        e(f's_sleep {self.slp}')
        for s_ in range(4):
            for h in range(2):
                e(f'buffer_load_dwordx4 {rng(64 + 8*s_ + 4*h)}, v5, s[28:31], s44 offen offset:{2048 + 256*s_ + 16*h} sc1')
        e('s_add_u32 s48, s48, 1')
        e('s_waitcnt vmcnt(0)')
        e('v_mov_b32 v32, 0')
        for i in range(8):
            e(f'v_xor_b32 v33, s34, v{65 + 4*i}')
            e(f'v_xor_b32 v34, s34, v{67 + 4*i}')
            e('v_or3_b32 v32, v32, v33, v34')
        e('v_cmp_ne_u32 vcc, 0, v32')
        e('s_nop 0')
        e('s_cbranch_vccz L_gmlok')
        e(f's_cmp_lt_u32 s48, {SPIN}')
        e('s_cbranch_scc1 L_gml')
        e('L_gmlok:')
        for h in range(2):
            m = [64 + 8*s_ + 4*h for s_ in range(4)]
            e(f'v_max3_f32 v36, v{m[0]}, v{m[1]}, v{m[2]}')
            e(f'v_max_f32 v36, v36, v{m[3]}')
            for s_ in range(4):
                e(f'v_sub_f32 v{44+s_}, v{m[s_]}, v36')
                e(f'v_exp_f32 v{44+s_}, v{44+s_}')
            e('s_nop 0')
            e(f'v_mul_f32 v37, v44, v{m[0]+2}')
            for s_ in range(1, 4):
                e(f'v_fmac_f32 v37, v{44+s_}, v{m[s_]+2}')
            e('v_rcp_f32 v37, v37')
            for w in range(4):
                e(f'v_sub_f32 v{44+w}, v{16 + 4*w + 2*h}, v36')
                e(f'v_exp_f32 v{44+w}, v{44+w}')
            e('s_nop 0')
            for w in range(4):
                e(f'v_mul_f32 v{44+w}, v{44+w}, v37')
            e('s_nop 0')
            for w in range(4):
                e(f'v_readfirstlane_b32 s{50 + 2*w + h}, v{44+w}')
        e('s_cmp_ge_u32 s2, 144')
        e('s_cbranch_scc1 L_wrdy_ok')
        e('s_mov_b64 exec, 0xffff')
        self.proj_role(40, 41)
        e(f's_mul_i32 s40, s40, {self.PS}')
        e(f's_add_u32 s40, s40, {PBASE + 2052}')
        e(f's_mov_b32 s41, {16 * self.PS}')
        e('v_lshrrev_b32 v6, 2, v0')
        e('v_mul_lo_u32 v6, s41, v6')
        e('v_and_b32 v7, 3, v0')
        e('v_lshl_add_u32 v6, v7, 8, v6')
        e('s_mov_b32 s48, 0')
        e('L_wrdy:')
        e(f's_sleep {self.slp}')
        e('buffer_load_dword v8, v6, s[28:31], s40 offen sc1')
        e('s_add_u32 s48, s48, 1')
        e('s_waitcnt vmcnt(0)')
        e('v_cmp_ne_u32 vcc, s34, v8')
        e('s_nop 0')
        e('s_cbranch_vccz L_wrdy_ok')
        e(f's_cmp_lt_u32 s48, {SPIN}')
        e('s_cbranch_scc1 L_wrdy')
        e('L_wrdy_ok:')
        if self.tch:
            e('; first touch of the pages used by the tail (wo slice, out); the loaded words are not used')
            e('s_mov_b64 exec, 3')
            if self.tch & 1:
                self.srd(20, 12, 4096 * 576 * 2)
                self.proj_role(40, 41)
                e('s_and_b32 s40, s40, 15')
                e(f's_mul_i32 s40, s40, {256 * 1152}')
                e(f'v_mul_u32_u24 v6, {255 * 1152}, v0')
                e('buffer_load_dword v60, v6, s[20:23], s40 offen nt')
            if self.tch & 2:
                self.srd(24, 14, 4 * 576 * 2)
                e('buffer_load_dword v61, v5, s[24:27], 0 offen nt')
        e('s_mov_b64 exec, -1')
        e('v_lshlrev_b32 v5, 3, v0')
        if self.pf2:
            e('s_getpc_b64 s[60:61]')
            e('L_pc2:')
            e(f's_sub_u32 s60, s60, L_pc2-L_tailcode')
            e('s_subb_u32 s61, s61, 0')
            e('v_lshlrev_b32 v14, 7, v0')
            e(f'v_cmp_gt_u32 vcc, L_codeend-L_tailcode, v14')
            e('s_and_saveexec_b64 s[62:63], vcc')
            e('global_load_dword v61, v14, s[60:61]')
            e('s_mov_b64 exec, s[62:63]')
        e('s_mov_b32 s48, 0x55555555')
        e('s_setprio 3')
        self.keep_time(66)
        e('s_barrier')
        self.keep_time(68)
        for w in range(4):
            e(f'ds_read_b128 {rng(16 + 4*w)}, v4 offset:{L_O + 1024*w}')
        for w in range(4):
            e(f's_waitcnt lgkmcnt({3-w})')
            for r in range(4):
                if w == 0:
                    e(f'v_mul_f32 v{32+r}, s{50 + (r & 1)}, v{16+r}')
                else:
                    e(f'v_fmac_f32 v{32+r}, s{50 + 2*w + (r & 1)}, v{16 + 4*w + r}')
        e('v_cvt_pk_bf16_f32 v36, v32, v34')
        e('v_cvt_pk_bf16_f32 v37, v33, v35')
        e('v_min_u32 v36, 0xfffffffe, v36')
        e('v_min_u32 v37, 0xfffffffe, v37')
        e('s_nop 0')
        e('v_mov_b32_dpp v38, v36 quad_perm:[1,1,3,3] row_mask:0xf bank_mask:0xf')
        e('v_mov_b32_dpp v39, v37 quad_perm:[1,1,3,3] row_mask:0xf bank_mask:0xf')
        e('s_mov_b32 exec_lo, s48')
        e('s_mov_b32 exec_hi, s48')
        self.publish(['buffer_store_dwordx4 v[36:39], v5, s[28:31], s45 offen'])
        self.keep_time(70)
        if self.rb:
            e('s_barrier')
        e('s_cmp_ge_u32 s2, 144')
        e('s_cbranch_scc1 L_hdone')
        if not self.rb:
            e('s_barrier')
        e('s_barrier')
        e('s_barrier')
        e('L_hdone:')
        if self.stamps:
            e('s_mov_b64 exec, -1')
            for k, sr in enumerate((60, 62, 64, 66, 68, 70)):
                self.flush_time(6 + k, sr)
            self.flush_time(18, 74)
        e('s_endpgm')

    def balancer(self):
        e = self.e
        e('s_getreg_b32 s40, hwreg(HW_REG_XCC_ID, 0, 4)')
        e('v_lshlrev_b32 v1, 2, v0')
        e('v_lshlrev_b32 v2, 4, v0')
        for r in range(4):
            e(f'v_mov_b32 v{4+r}, 0')
        e(f'ds_write_b128 v2, v[4:7] offset:{L_PR + 1024}')
        if self.snap:
            for r in range(4):
                e(f'v_mov_b32 v{8+r}, 48')
            e(f'ds_write_b128 v2, v[8:11] offset:{L_PR}')
            e('v_and_b32 v18, 0x300, v2')
        else:
            e(f'ds_write_b128 v2, v[4:7] offset:{L_PR}')
        e('s_waitcnt lgkmcnt(0)')
        e('s_load_dword s34, s[18:19], 0')
        if self.kfirst:
            e('s_lshr_b32 s31, s32, 2')
            e('s_lshl_b32 s31, s31, 21')
            e('s_add_u32 s20, s6, s31')
            e('s_addc_u32 s21, s7, 0')
            e('s_mov_b64 exec, 1')
            e('global_load_dword v30, v4, s[20:21] nt')
            e('s_mov_b64 exec, -1')
        self.srd(28, 18, WSWIN)
        e('s_mul_i32 s46, s40, 4352')
        e(f's_add_u32 s46, s46, {XOFF}')
        e('s_lshl_b32 s40, s40, 12')
        e(f's_add_u32 s40, s40, {BOFF}')
        e('s_lshr_b32 s41, s2, 3')
        e('s_lshl_b32 s41, s41, 2')
        e('v_mov_b32 v3, s41')
        e('s_mov_b32 s48, 0')
        e('s_waitcnt lgkmcnt(0)')
        self.make_tag()
        if self.loc:
            e('; announce this workgroup on the line of the XCD it runs on: slot wg>>3 = tag + wg%8')
            e('s_and_b32 s41, s2, 7')
            e('s_add_u32 s41, s41, s34')
            e('v_mov_b32 v8, s41')
            e('s_mov_b64 exec, 1')
            e('buffer_store_dword v8, v3, s[28:31], s40 offen offset:256')
            e('s_mov_b64 exec, -1')
        if self.hot:
            e('s_lshr_b32 s50, s32, 2')
            e(f's_mul_i32 s50, s50, {self.PS}')
            e(f's_add_u32 s50, s50, {PBASE}')
            e('s_and_b32 s51, s32, 3')
            e('s_lshl_b32 s52, s51, 10')
            e('s_add_u32 s52, s52, 4096')
            e('s_lshl_b32 s51, s51, 9')
            e('s_sub_u32 s51, s51, 1024')
            e('v_mov_b32 v20, s52')
            e('v_mov_b32 v21, s51')
            e('v_cmp_gt_u32 vcc, 8, v0')
            e('s_nop 1')
            e('v_cndmask_b32 v20, v21, v20, vcc')
            e('v_lshl_add_u32 v20, v0, 7, v20')
        if self.xb:
            e(f's_mov_b32 s60, {self.ck0}')
            for j in range(8):
                e(f's_mov_b32 s{72+j}, -1')
                e(f's_mov_b32 s{80+j}, 0')
        e('s_cmp_lt_u32 s2, 144')
        e(f's_cselect_b32 s61, {self.bias + (self.sb + 1) // 2}, {self.bias - self.sb // 2}')
        e('s_lshl_b32 s34, s34, 16')
        e('s_barrier')
        e('L_bal:')
        e(f's_sleep {self.bslp}')
        e(f'ds_read2st64_b32 v[8:9], v4 offset0:{L_PR // 256} offset1:{L_PR // 256 + 1}')
        e(f'ds_read2st64_b32 v[10:11], v4 offset0:{L_PR // 256 + 2} offset1:{L_PR // 256 + 3}')
        if self.snap:
            e(f'ds_read_b32 v19, v18 offset:{L_PR}')
        e('s_add_u32 s48, s48, 1')
        e('s_waitcnt lgkmcnt(0)')
        e('v_add3_u32 v8, v8, v9, v10')
        e('v_add_u32 v8, v8, v11')
        e('v_or_b32 v9, s34, v8')
        e('v_readfirstlane_b32 s42, v8')
        e('s_mov_b64 exec, 1')
        e('buffer_store_dword v9, v3, s[28:31], s40 offen')
        e('s_mov_b64 exec, -1')
        e(f's_cmp_ge_u32 s42, {4 * 248}')
        e('s_cbranch_scc1 L_end')
        if self.xb:
            e('s_cmp_ge_u32 s2, 8')
            e('s_cbranch_scc1 L_nosl')
            for j in range(8):
                e(f's_load_dword s{64+j}, s[18:19], {XOFF + 4352*j} glc')
            e('L_nosl:')
        e('v_mov_b32 v10, 0')
        e(f's_mov_b32 exec_hi, {1 if self.xb else 0}')
        e('buffer_load_dword v10, v1, s[28:31], s40 offen sc1')
        if self.hot:
            e('s_mov_b64 exec, 0xfff')
            e('buffer_load_dword v21, v20, s[28:31], s50 offen sc1')
            e('s_mov_b32 exec_lo, -1')
        e('s_mov_b32 exec_hi, -1')
        e('s_waitcnt vmcnt(0)')
        e('v_xor_b32 v10, s34, v10')
        e('v_add_u32 v11, -1, v10')
        e('v_cmp_gt_u32 vcc, 0xffff, v11')
        e('s_nop 1')
        e('v_cndmask_b32 v10, 0, v10, vcc')
        e('s_bcnt1_i32_b32 s43, vcc_lo')
        for k in (1, 2, 4, 8):
            e('s_nop 1')
            e(f'v_add_u32_dpp v10, v10, v10 row_ror:{k} row_mask:0xf bank_mask:0xf')
        e('s_lshl_b32 s43, s43, 2')
        e('v_cvt_f32_u32 v12, s43')
        e('v_readlane_b32 s44, v10, 0')
        e('v_readlane_b32 s45, v10, 16')
        e('v_rcp_f32 v12, v12')
        e('s_add_u32 s44, s44, s45')
        e('v_cvt_f32_u32 v13, s44')
        e('v_mul_f32 v13, v13, v12')
        e('v_cvt_u32_f32 v16, v13')
        e('v_add_u32 v12, s61, v16')
        if self.xb:
            e('v_readlane_b32 s45, v10, 32')
            e('s_cmp_eq_u32 s45, 0')
            e('s_cselect_b32 s45, 32, s45')
            e('s_sub_u32 s45, s45, 32')
            e('v_add_u32 v12, s45, v12')
        if self.snap:
            e('v_sub_u32 v12, v19, v12')
        e('v_mov_b32 v13, v12')
        e('v_mov_b32 v14, v12')
        e('v_mov_b32 v15, v12')
        e(f'ds_write_b128 v2, v[12:15] offset:{L_PR + 1024}')
        if self.xb:
            e('s_cmp_ge_u32 s2, 8')
            e('s_cbranch_scc1 L_balnext')
            e('v_readfirstlane_b32 s47, v16')
            e('v_or_b32 v17, s34, v16')
            e('s_mov_b64 exec, 1')
            e('s_cmp_lt_u32 s47, s60')
            e('s_cbranch_scc1 L_nopub')
            e('buffer_store_dword v17, v4, s[28:31], s46 offen sc1')
            e(f's_add_u32 s60, s60, {self.ck}')
            e('L_nopub:')
            e('s_mov_b32 s43, 0')
            e('s_mov_b32 s44, 0')
            e('s_waitcnt lgkmcnt(0)')
            for j in range(8):
                e(f's_xor_b32 s{64+j}, s{64+j}, s34')
                e(f's_or_b32 s43, s43, s{64+j}')
                e(f's_sub_i32 s45, s{64+j}, s47')
                e(f's_cmp_lg_u32 s{64+j}, s{72+j}')
                e(f's_cselect_b32 s{80+j}, s45, s{80+j}')
                e(f's_mov_b32 s{72+j}, s{64+j}')
                e(f's_add_i32 s44, s44, s{80+j}')
            e('s_ashr_i32 s44, s44, 3')
            e(f's_add_i32 s44, s44, {self.lagc}')
            e(f's_max_i32 s44, s44, {-self.xmin}')
            e(f's_min_i32 s44, s44, {self.xmax}')
            e('s_add_i32 s44, s44, 32')
            e('s_cmp_lt_u32 s43, 0x10000')
            e('s_cselect_b32 s44, s44, 0')
            e('s_or_b32 s44, s44, s34')
            e('v_mov_b32 v17, s44')
            e('buffer_store_dword v17, v4, s[28:31], s40 offen offset:128')
            e('s_mov_b64 exec, -1')
            e('L_balnext:')
        e(f's_cmp_lt_u32 s48, {SPIN}')
        e('s_cbranch_scc1 L_bal')
        e('s_endpgm')

    def others(self):
        e = self.e
        e('L_helper:')
        self.helper()
        if self.bal:
            e('L_balancer:')
            self.balancer()

    def build(self):
        e = self.e
        e('.amdgcn_target "amdgcn-amd-amdhsa--gfx950"')
        e('.text')
        if self.padt:
            e(f'.fill {self.padt // 4}, 4, 0xbf810000')
        e(f'.globl {NAME}')
        if self.al12:
            e('.p2align 12')
        e('.p2align 8')
        e(f'.type {NAME},@function')
        e(f'{NAME}:')
        e('s_cmp_ge_u32 s2, 256')
        e('s_cbranch_scc1 L_end')
        self.keep_time(58)
        if self.clk:
            e('s_memrealtime s[88:89]')
        e('s_load_dwordx16 s[4:19], s[0:1], 0')
        e('v_lshrrev_b32 v1, 6, v0')
        e('v_and_b32 v0, 63, v0')
        e('v_readfirstlane_b32 s3, v1')
        e('s_and_b32 s32, s2, 15')
        e('s_lshl_b32 s32, s32, 2')
        e('s_bfe_u32 s31, s2, 0x20004')
        e('s_or_b32 s32, s32, s31')
        e('s_and_b32 s31, s2, 0xc0')
        e('s_or_b32 s32, s32, s31')
        e('s_cmp_eq_u32 s3, 4')
        e('s_cbranch_scc1 L_helper')
        if self.bal:
            e('s_cmp_eq_u32 s3, 5')
            e('s_cbranch_scc1 L_balancer')
        self.stream()
        if not self.lay:
            self.others()
        e('L_end:')
        e('s_endpgm')
        e('L_codeend:')
        nv = 256 if self.stamps else 248
        e('.section .rodata,"a"')
        if self.padr:
            e(f'.fill {self.padr // 4}, 4, 0')
        e('.p2align 6')
        e(f'.amdhsa_kernel {NAME}')
        e(f'  .amdhsa_next_free_vgpr {nv}')
        e('  .amdhsa_next_free_sgpr 96')
        e(f'  .amdhsa_accum_offset {nv}')
        e('  .amdhsa_group_segment_fixed_size 0')
        e('  .amdhsa_kernarg_size 64')
        e('  .amdhsa_user_sgpr_count 2')
        e('  .amdhsa_user_sgpr_kernarg_segment_ptr 1')
        e('  .amdhsa_system_sgpr_workgroup_id_x 1')
        e('.end_amdhsa_kernel')
        errs = check([l.lstrip() if l.lstrip().startswith('.') else l for l in self.o])
        for x in errs:
            print('HAZARD', x, file=sys.stderr)
        txt = HEADER + DOC + f'; @launch grid=(256,1,1) block=({384 if self.bal else 320},1,1) lds={LDS_BYTES}\n' + '\n'.join(self.o) + '\n'
        return txt, errs


if __name__ == '__main__':
    kw = {}
    out = sys.argv[1]
    for a in sys.argv[2:]:
        k, v = a.split('=')
        kw[k] = int(v)
    txt, errs = G(**kw).build()
    open(out, 'w').write(txt)
    sys.exit(1 if errs else 0)
```
